```python
import torch

def _softmax(x, axis=-1):
    return torch.softmax(x, dim=axis)
def _gelu(x):
    return torch.nn.functional.gelu(x, approximate="tanh")
def _silu(x):
    return torch.nn.functional.silu(x)
def _sigmoid(x):
    return torch.sigmoid(x)
def _layernorm(x, axis=-1, eps=1e-5):
    m = x.mean(dim=axis, keepdim=True)
    v = x.var(dim=axis, keepdim=True, unbiased=False)
    return (x - m) / torch.sqrt(v + eps)
def _scatter_add(tgt, idx, src, axis=0):
    return tgt.clone().index_add_(axis, idx, src)
def _segment_sum(src, seg, n):
    out = torch.zeros((n,) + src.shape[1:], dtype=src.dtype)
    return out.index_add_(0, seg, src)
def _pad(x, pw):
    flat = tuple(v for pair in reversed(pw) for v in pair)
    return torch.nn.functional.pad(x, flat)

kernel_name = 'standalone__gqa_block_cached__near_ridge'

def setup_inputs():

    _w = (lambda a: (lambda t: t.to(torch.bfloat16) if t.is_floating_point() else t)(torch.as_tensor(a)))
    B, Sq, D = 8, 160, 576
    Hq, Hkv, Sk, Dh = 32, 16, 2048, 128
    assert Hq % Hkv == 0, (Hq, Hkv)
    return {
        "x": _w((lambda *s: torch.randn(*s, dtype=torch.bfloat16) * 0.8)(B, Sq, D)),
        "k_cache": _w((lambda *s: torch.randn(*s, dtype=torch.bfloat16) * 0.8)(B, Hkv, Sk, Dh)),
        "v_cache": _w((lambda *s: torch.randn(*s, dtype=torch.bfloat16) * 0.05)(B, Hkv, Sk, Dh)),
        "wq": _w((lambda *s: torch.randn(*s, dtype=torch.bfloat16) * 0.8)(D, Hq * Dh) * (D ** -0.5)),
        "wo": _w((lambda *s: torch.randn(*s, dtype=torch.bfloat16) * 0.05)(Hq * Dh, D) * ((Hq * Dh) ** -0.5)),
    }

def reference(x, k_cache, v_cache, wq, wo):
    B, Sq, D = x.shape
    Hq, Dh = 32, 128
    Hkv = k_cache.shape[1]
    rep = Hq // Hkv
    q = (lambda x, *d: x.permute(*d))((x @ wq).reshape(B, Sq, Hq, Dh), 0, 2, 1, 3)
    k = (lambda x, n, axis: torch.repeat_interleave(x, n, dim=axis))(k_cache, rep, axis=1)
    v = (lambda x, n, axis: torch.repeat_interleave(x, n, dim=axis))(v_cache, rep, axis=1)
    scores = torch.einsum("bhqd,bhkd->bhqk", q, k) * (Dh ** -0.5)
    p = _softmax(scores, axis=-1)
    o = torch.einsum("bhqk,bhkd->bhqd", p, v)
    return (lambda x, *d: x.permute(*d))(o, 0, 2, 1, 3).reshape(B, Sq, Hq * Dh) @ wo
```

```python
import re
class Asm:
    def __init__(self):
        self.lines = []
    def __call__(self, s=""):
        for l in s.split("\n"):
            l = l.strip()
            if l: self.lines.append(l)
    def label(self, n): self.lines.append(n + ":")
    def text(self):
        out = []
        for l in self.lines:
            if l.endswith(":") or l.startswith("."): out.append(l)
            else: out.append("  " + l)
        return "\n".join(out) + "\n"

def vr(i, n=1): return f"v{i}" if n == 1 else f"v[{i}:{i+n-1}]"
def ar(i, n=1): return f"a{i}" if n == 1 else f"a[{i}:{i+n-1}]"
def sr(i, n=1): return f"s{i}" if n == 1 else f"s[{i}:{i+n-1}]"

_reg = re.compile(r"\b([vas])(?:\[(\d+):(\d+)\]|(\d+))")
def regs_of(tok):
    out = set()
    for m in _reg.finditer(tok):
        p = m.group(1)
        if m.group(2) is not None:
            for i in range(int(m.group(2)), int(m.group(3)) + 1): out.add((p, i))
        else: out.add((p, int(m.group(4))))
    return out

TRANS = ("v_exp_f32", "v_log_f32", "v_rcp_f32", "v_rsq_f32", "v_sqrt_f32", "v_sin_f32", "v_cos_f32")
def parse(line):
    line = line.split(";")[0].split("//")[0].strip()
    if not line or line.endswith(":") or line.startswith("."): return None
    parts = line.split(None, 1)
    op = parts[0]; rest = parts[1] if len(parts) > 1 else ""
    ops = []
    depth = 0; cur = ""
    for ch in rest:
        if ch == "[": depth += 1
        if ch == "]": depth -= 1
        if ch == "," and depth == 0: ops.append(cur.strip()); cur = ""
        else: cur += ch
    if cur.strip(): ops.append(cur.strip())
    return op, ops

def is_valu(op): return op.startswith("v_") and not op.startswith("v_mfma")
def is_mfma(op): return op.startswith("v_mfma")
def is_vmem(op): return op.startswith(("buffer_", "global_", "flat_"))
def is_ds(op): return op.startswith("ds_")

def rw(op, ops):
    R, W = set(), set()
    if is_mfma(op):
        W |= regs_of(ops[0]); R |= regs_of(ops[1]) | regs_of(ops[2]) | regs_of(ops[3])
    elif op.startswith("v_cmp"):
        W |= regs_of(ops[0]);
        for o in ops[1:]: R |= regs_of(o)
    elif op.startswith(("v_permlane32_swap", "v_permlane16_swap", "v_swap")):
        W |= regs_of(ops[0]) | regs_of(ops[1]); R |= regs_of(ops[0]) | regs_of(ops[1])
    elif op.startswith(("v_fmac", "v_dot2c")):
        W |= regs_of(ops[0]);
        for o in ops: R |= regs_of(o)
    elif op.startswith("v_"):
        W |= regs_of(ops[0])
        for o in ops[1:]: R |= regs_of(o)
        if op.startswith(("v_add_co", "v_sub_co", "v_addc_co", "v_subb_co")):
            W |= regs_of(ops[1])
    elif op.startswith("ds_read") or op.startswith("ds_bpermute") or op.startswith("ds_swizzle") or op.startswith("ds_permute"):
        W |= regs_of(ops[0])
        for o in ops[1:]: R |= regs_of(o)
    elif op.startswith("ds_"):
        for o in ops: R |= regs_of(o)
    elif is_vmem(op):
        joined = " ".join(ops)
        if "store" in op or ("atomic" in op and " sc0" not in " " + joined):
            for o in ops: R |= regs_of(o)
        elif joined.rstrip().endswith("lds") or " lds" in joined or "_lds_" in op:
            for o in ops: R |= regs_of(o)
        elif op.startswith(("buffer_inv", "buffer_wbl2")):
            pass
        else:
            W |= regs_of(ops[0])
            for o in ops[1:]: R |= regs_of(o)
    elif op.startswith("s_"):
        if op.startswith(("s_cmp", "s_waitcnt", "s_barrier", "s_nop", "s_branch", "s_cbranch", "s_endpgm", "s_setprio", "s_sleep", "s_bitcmp")):
            for o in ops: R |= regs_of(o)
        elif ops:
            W |= regs_of(ops[0])
            for o in ops[1:]: R |= regs_of(o)
    return R, W

def states(op, ops):
    if op == "s_nop": return int(ops[0], 0) + 1
    return 1

def passes(op):
    if "32x32x16" in op or "32x32x8" in op: return 8
    if "16x16x32" in op or "16x16x16" in op: return 4
    if "4x4x4" in op: return 2
    return 16

def check_hazards(lines, name="", wrap=None):
    ins = []
    for l in lines:
        p = parse(l)
        if p: ins.append((p[0], p[1], l))
    problems = []
    n = len(ins)
    info = [rw(o, a) for o, a, _ in ins]
    def isv(s): return {r for r in s if r[0] in "va"}
    for i in range(n):
        op, ops, l = ins[i]
        R, W = info[i]
        dist = 0
        j = i - 1
        while j >= 0 and dist < 24:
            pop, pops, pl = ins[j]
            PR, PW = info[j]
            need = 0; why = ""
            if is_mfma(pop):
                ps = passes(pop)
                D = isv(PW)
                xr = {2: 5, 4: 8, 8: 12, 16: 20}[ps]
                if is_mfma(op):
                    A_B = regs_of(ops[1]) | regs_of(ops[2]); C = regs_of(ops[3])
                    if D & A_B: need = xr; why = "mfma D -> mfma A/B"
                    elif D & C:
                        if C == D and passes(op) == ps: need = 2 if ps == 2 else 0
                        else: need = {2: 4, 4: 6, 8: 10, 16: 18}[ps]; why = "mfma D -> mfma C overlap"
                elif is_valu(op) or is_vmem(op) or is_ds(op):
                    if D & (isv(R) | isv(W)): need = xr; why = "mfma D -> valu/mem"
                if is_valu(op):
                    C = regs_of(pops[3])
                    if C & isv(W) and not (D & isv(W)):
                        need = max(need, {2: 1, 4: 3, 8: 7, 16: 15}[ps]); why = "mfma C read -> valu write"
            elif is_valu(pop):
                Wv = isv(PW)
                if is_mfma(op) and Wv & isv(R): need = 2; why = "valu -> mfma operand"
                if pop.startswith(TRANS) and is_valu(op) and not op.startswith(TRANS) and Wv & isv(R): need = max(need, 1); why = "trans -> valu"
                if op.startswith(("v_permlane32_swap", "v_permlane16_swap")) and Wv & isv(R): need = max(need, 2); why = "valu -> permlane"
                if op.startswith(("v_readfirstlane", "v_readlane")) and Wv & isv(R): need = max(need, 1); why = "valu -> readlane"
                if "dpp" in l or "row_" in l or "quad_perm" in l:
                    if Wv & isv(R): need = max(need, 2); why = "valu -> dpp"
                Ws = {r for r in PW if r[0] == "s"}
                vcc_w = ("vcc" in pops[0]) if pops else False
                if Ws and is_vmem(op) and Ws & R: need = max(need, 5); why = "valu sgpr -> vmem"
                if Ws and is_valu(op) and Ws & R: need = max(need, 2); why = "valu sgpr -> valu const"
                if vcc_w and is_valu(op) and any("vcc" in o for o in ops[1:]): need = max(need, 2); why = "vcc -> valu"
                if pop.startswith(("v_readfirstlane", "v_readlane")) and op.startswith("s_") and Ws & R: need = max(need, 1); why = "readlane -> salu (pad)"
            elif is_vmem(pop) and "store" in pop and ("x4" in pop or "x3" in pop):
                data = regs_of(pops[0]) if pop.startswith("buffer_") else regs_of(pops[1])
                if isv(data) & isv(W):
                    need = 2 if is_valu(op) else 1; why = "wide store data WAR"
            elif pop.startswith("s_") and pops and pops[0] == "m0":
                if (is_vmem(op) and ("lds" in " ".join(ops) or "_lds_" in op)): need = 1; why = "m0 -> lds dma"
            if need > dist:
                problems.append(f"{name}: [{why}] need {need} have {dist}:\n    {pl}\n    {l}")
            dist += states(pop, pops)
            j -= 1
    return problems
```

```python
from asmlib import *
import struct, math

KA = "standalone__gqa_block_cached__near_ridge_kernel"
KB = "gqa_oproj_kernel"

V_KD0, V_KD1, V_VD0, V_VD1 = 1, 2, 3, 4
V_KR = 5
V_VR = 9
V_LANE = 17
V_XD0, V_XD1 = 18, 19
V_WD = 20
V_XR = 21
V_WR = 23
V_QW = 27
V_T = 28
V_S = 32
V_NM = 112
V_OK = 132
V_KF = 212
V_ONE = 244
V_X = 248
A_OS = 0
A_L = 80
A_VF = 100
A_Q = 132

def S(sig, t, a, r=0): return V_S + sig*40 + t*8 + a*4 + r
def NM(t): return V_NM + 4*t
def QF(t, s): return A_Q + (t*4 + s)*4
def KF(a, s): return V_KF + (a*4 + s)*4
def VF(db): return A_VF + db*4
def O(t, idx):
    return vr(V_OK + t*16 + idx*4, 4) if idx < 4 else ar(A_OS + t*16 + (idx-4)*4, 4)
def L(t): return A_L + 4*t
def ACC(t, d): return V_S + (t*4 + d)*4
def PA(p, d): return V_KF + p*16 + d*4
def PB(p, t): return A_Q + p*20 + t*4

S_K = 12; S_V = 16; S_WS = 20
S_W, S_I, S_J, S_M0 = 24, 25, 26, 27
S_KO0, S_KO1, S_VO0, S_VO1 = 28, 29, 30, 31
S_CNT = 32
S_B, S_H = 33, 34
S_T0, S_T1 = 35, 36
S_X = 40
S_WQ = 44
S_XO = 48
S_WO = 53
S_MX = 57
S_FB = 58
S_SC = 60
S_ST = 64

LDS_K = 0; LDS_V = 0x10000; LDS_SP = 0x20000
HEAD_BYTES = 2048*128*2
WQB = [0x8000, 0xC000, 0x14000]
XB = [0x18000, 0x1D000, 0x22000]
QIMG = 0x1E000
LDS_A = 163840

def f32hex(x): return hex(struct.unpack("<I", struct.pack("<f", x))[0])
SCALE = math.log2(math.e) / math.sqrt(128.0)
T_HI = 2.0**64
T_LO = 2.0**-40

def mfma(d, a, b, c): return f"v_mfma_f32_16x16x32_bf16 {d}, {a}, {b}, {c}"

def qk_mfma(sig, g):
    a = g // 20; s = (g % 20) // 5; t = g % 5
    d = vr(S(sig, t, a), 4)
    c = d if s else vr(NM(t), 4)
    return mfma(d, vr(KF(a, s), 4), ar(QF(t, s), 4), c)
def pv_mfma(sigp, idx):
    db = idx // 5; t = idx % 5
    p = vr(S(sigp, t, 0), 4)
    if db < 8: return mfma(O(t, db), ar(VF(db), 4), p, O(t, db))
    return mfma(ar(L(t), 4), vr(V_ONE, 4), p, ar(L(t), 4))

def exp_op(sig, t, a, r): return f"v_exp_f32 {vr(S(sig,t,a,r))}, {vr(S(sig,t,a,r))}"
def cvt_op(sig, t, a, h):
    return f"v_cvt_pk_bf16_f32 {vr(S(sig,t,0,2*a+h))}, {vr(S(sig,t,a,2*h))}, {vr(S(sig,t,a,2*h+1))}"
def kread(slot, a, s): return f"ds_read_b128 {vr(KF(a,s),4)}, {vr(V_KR+s)} offset:{slot*16384 + a*4096}"
def vread(slot, db, hf): return f"ds_read_b64_tr_b16 {ar(VF(db)+2*hf,2)}, {vr(V_VR+db)} offset:{slot*16384 + hf*4096}"

def dma_ops(kind, slot, grp):
    base = (LDS_K if kind == 'K' else LDS_V) + slot*16384 + grp*8192
    srd = sr(S_K if kind == 'K' else S_V, 4)
    so = sr((S_KO0 if kind == 'K' else S_VO0) + grp)
    v0, v1 = (V_KD0, V_KD1) if kind == 'K' else (V_VD0, V_VD1)
    return (f"s_add_u32 m0, {sr(S_M0)}, {hex(base)}",
            [f"buffer_load_dwordx4 {vr(v0)}, {srd}, {so} offen lds",
             f"buffer_load_dwordx4 {vr(v1)}, {srd}, {so} offen offset:1024 lds"])

def emit_gaps(A, mf, sc, ve):
    for g in range(len(mf)):
        A(mf[g])
        assert len(sc[g]) <= 1, (g, sc[g])
        for x in sc[g]: A(x)
        for x in ve[g]: A(x)

def step(A, n4, last_in_loop=False, loop_label=None):
    sig = n4 & 1; sp = 1 - sig
    NG = 85
    sc = [[] for _ in range(NG)]
    ve = [[] for _ in range(NG)]
    for t in range(5):
        for r in range(4): ve[8*t + 2*r].append(exp_op(sp, t, 1, r))
    vslot = (n4 - 1) & 3
    vr_ops = [vread(vslot, db, hf) for db in range(8) for hf in range(2)]
    k = 0
    for g in range(1, 40, 2):
        if g % 4 == 1:
            if k < 16:
                ve[g].append(vr_ops[k]); k += 1
                if k < 16: ve[g].append(vr_ops[k]); k += 1
        else:
            if k < 16: ve[g].append(vr_ops[k]); k += 1
            t = g // 8; h = (g % 8) // 4
            ve[g].append(cvt_op(sp, t, 1, h))
    assert k == 16
    for t in range(5):
        for r in range(4): ve[40 + 8*t + 2*r].append(exp_op(sig, t, 0, r))
    kslot = (n4 + 1) & 3
    kr_ops = [kread(kslot, a, s) for a in range(2) for s in range(4)]
    k = 0
    for g in range(43, 80, 4):
        if k < 8: ve[g].append(kr_ops[k]); k += 1
        t = (g - 40) // 8; h = ((g - 40) % 8) // 4
        ve[g].append(cvt_op(sig, t, 0, h))
    dk = n4 & 3; dv = (n4 + 2) & 3
    groups = [dma_ops('K', dk, 0), dma_ops('K', dk, 1), dma_ops('V', dv, 0), dma_ops('V', dv, 1)]
    dgaps = [25, 29, 33, 37, 41, 45, 49, 53]
    for q in range(4):
        m0, dd = groups[q]
        g0, g1 = dgaps[2*q], dgaps[2*q+1]
        assert not ve[g0] and not ve[g1], (g0, g1, ve[g0], ve[g1])
        sc[g0-1].append(m0)
        ve[g0].append(dd[0]); ve[g1].append(dd[1])
    sc[2].append(f"s_cmp_lt_u32 {sr(S_KO0)}, {hex(HEAD_BYTES)}")
    sc[3].append(f"s_cselect_b32 {sr(S_K+2)}, {hex(HEAD_BYTES)}, 0")
    sc[4].append(f"s_cmp_lt_u32 {sr(S_VO0)}, {hex(HEAD_BYTES)}")
    sc[5].append(f"s_cselect_b32 {sr(S_V+2)}, {hex(HEAD_BYTES)}, 0")
    sc[56].append(f"s_add_u32 {sr(S_KO0)}, {sr(S_KO0)}, 0x4000")
    sc[57].append(f"s_add_u32 {sr(S_KO1)}, {sr(S_KO1)}, 0x4000")
    sc[58].append(f"s_add_u32 {sr(S_VO0)}, {sr(S_VO0)}, 0x4000")
    sc[59].append(f"s_add_u32 {sr(S_VO1)}, {sr(S_VO1)}, 0x4000")
    sc[39].append("s_waitcnt lgkmcnt(0)")
    if last_in_loop:
        sc[82].append(f"s_sub_u32 {sr(S_CNT)}, {sr(S_CNT)}, 1")
    A("s_waitcnt vmcnt(16) lgkmcnt(0)")
    A("s_barrier")
    mf = [qk_mfma(sig, g) if g < 40 else pv_mfma(sp, g - 40) for g in range(NG)]
    emit_gaps(A, mf, sc, ve)
    if last_in_loop:
        A(f"s_cmp_lg_u32 {sr(S_CNT)}, 0")
        A(f"s_cbranch_scc1 {loop_label}")

def setup_ids(A, endlabel):
    A(f"""
    s_load_dwordx4 s[4:7], s[0:1], 8
    s_load_dwordx2 s[8:9], s[0:1], 56
    s_load_dwordx2 s[{S_X}:{S_X+1}], s[0:1], 0
    s_load_dwordx2 s[{S_WQ}:{S_WQ+1}], s[0:1], 24
    s_cmp_ge_u32 s2, 256
    s_cbranch_scc1 {endlabel}
    v_lshrrev_b32 v{V_T}, 6, v0
    v_and_b32 v{V_LANE}, 63, v0
    v_readfirstlane_b32 s{S_W}, v{V_T}
    s_and_b32 s3, s2, 7
    s_lshr_b32 s10, s2, 3
    s_and_b32 s11, s3, 1
    s_lshl_b32 s11, s11, 2
    s_lshr_b32 s{S_T0}, s10, 3
    s_add_u32 s{S_B}, s11, s{S_T0}
    s_lshr_b32 s11, s3, 1
    s_lshl_b32 s11, s11, 3
    s_and_b32 s{S_T0}, s10, 7
    s_add_u32 s{S_H}, s11, s{S_T0}
    s_lshr_b32 s{S_I}, s{S_W}, 1
    s_and_b32 s{S_J}, s{S_W}, 1
    s_lshl_b32 s{S_M0}, s{S_W}, 11
    s_mul_i32 s{S_MX}, s{S_W}, 5120
    s_lshl_b32 s11, s{S_B}, 4
    s_lshr_b32 s{S_T0}, s{S_H}, 1
    s_add_u32 s11, s11, s{S_T0}
    s_lshr_b32 s{S_T1}, s11, 13
    s_lshl_b32 s{S_T0}, s11, 19
    s_mul_i32 s10, s{S_B}, 184320
    s_lshl_b32 s11, s{S_H}, 8
    s_waitcnt lgkmcnt(0)
    s_add_u32 s{S_X}, s{S_X}, s10
    s_addc_u32 s{S_X+1}, s{S_X+1}, 0
    s_mov_b32 s{S_X+2}, 184320
    s_mov_b32 s{S_X+3}, 0x20000
    s_add_u32 s{S_WQ}, s{S_WQ}, s11
    s_addc_u32 s{S_WQ+1}, s{S_WQ+1}, 0
    s_sub_u32 s{S_WQ+2}, {576*8192}, s11
    s_mov_b32 s{S_WQ+3}, 0x20000
    s_add_u32 s{S_K}, s4, s{S_T0}
    s_addc_u32 s{S_K+1}, s5, s{S_T1}
    s_mov_b32 s{S_K+2}, {hex(HEAD_BYTES)}
    s_mov_b32 s{S_K+3}, 0x20000
    s_add_u32 s{S_V}, s6, s{S_T0}
    s_addc_u32 s{S_V+1}, s7, s{S_T1}
    s_mov_b32 s{S_V+2}, {hex(HEAD_BYTES)}
    s_mov_b32 s{S_V+3}, 0x20000
    s_mov_b32 s{S_WS}, s8
    s_mov_b32 s{S_WS+1}, s9
    s_mov_b32 s{S_WS+2}, 0x10000000
    s_mov_b32 s{S_WS+3}, 0x20000
    """)

def setup_dma_addrs(A):
    T = V_X; L_ = V_LANE
    A(f"""
    v_lshrrev_b32 v{T}, 4, v{L_}
    v_and_b32 v{T+1}, 15, v{L_}
    v_lshrrev_b32 v{T+2}, 3, v{L_}
    v_and_b32 v{T+3}, 7, v{L_}
    s_mul_i32 s{S_T0}, s{S_W}, {40*1152}
    s_and_b32 s{S_T1}, s{S_W}, 1
    s_lshl_b32 s{S_T1}, s{S_T1}, 2
    v_mul_u32_u24 v{T+4}, 1152, v{T+2}
    v_add_u32 v{T+4}, s{S_T0}, v{T+4}
    v_xor_b32 v{T+5}, v{T+3}, v{T}
    v_xor_b32 v{T+5}, s{S_T1}, v{T+5}
    v_lshlrev_b32 v{T+6}, 4, v{T+5}
    v_add_u32 v{V_XD0}, v{T+4}, v{T+6}
    v_xor_b32 v{T+6}, 64, v{T+6}
    v_add_u32 v{V_XD1}, v{T+4}, v{T+6}
    """)
    A(f"""
    v_or_b32 v{T+4}, s{S_T1}, v{T}
    v_lshlrev_b32 v{T+4}, 1, v{T+4}
    v_xor_b32 v{T+4}, v{T+4}, v{T+1}
    v_lshlrev_b32 v{T+4}, 4, v{T+4}
    s_lshl_b32 s{S_T0}, s{S_W}, 3
    v_add_u32 v{T+5}, s{S_T0}, v{T}
    v_lshlrev_b32 v{T+6}, 13, v{T+5}
    v_add_u32 v{V_WD}, v{T+4}, v{T+6}
    """)
    for e in range(5): A(f"s_mov_b32 s{S_XO+e}, {e*8192 if e < 4 else 4*9216}")
    for e in range(4): A(f"s_mov_b32 s{S_WO+e}, {(e>>1)*32*8192 + (e&1)*(32768-1024)}")
    for e, (vk, vv) in enumerate([(V_KD0, V_VD0), (V_KD1, V_VD1)]):
        A(f"""
        v_add_u32 v{T+2}, {4*e}, v{T+5}
        v_and_b32 v{T+3}, 15, v{T+2}
        v_xor_b32 v{T+3}, v{T+3}, v{T+1}
        v_lshlrev_b32 v{T+3}, 4, v{T+3}
        v_lshlrev_b32 v{T+4}, 8, v{T+2}
        v_add_u32 v{vk}, v{T+3}, v{T+4}
        v_and_b32 v{T+3}, 7, v{T+2}
        v_lshlrev_b32 v{T+3}, 1, v{T+3}
        v_xor_b32 v{T+3}, v{T+3}, v{T+1}
        v_lshlrev_b32 v{T+3}, 4, v{T+3}
        v_add_u32 v{vv}, v{T+3}, v{T+4}
        """)
        if e:
            A(f"v_subrev_u32 v{vk}, 1024, v{vk}")
            A(f"v_subrev_u32 v{vv}, 1024, v{vv}")

def xdma_ops(u):
    srd = sr(S_X, 4)
    out = []
    for e in range(5):
        m0 = None
        if e == 0: m0 = f"s_add_u32 m0, {sr(S_MX)}, {hex(XB[u])}"
        if e == 4: m0 = f"s_add_u32 m0, {sr(S_MX)}, {hex(XB[u] + 4096)}"
        v = V_XD0 if e % 2 == 0 else V_XD1
        off = f" offset:{e*1024}" if 0 < e < 4 else ""
        out.append((m0, f"buffer_load_dwordx4 {vr(v)}, {srd}, {sr(S_XO+e)} offen{off} lds"))
    return out
def xadv(): return [f"s_add_u32 {sr(S_XO+e)}, {sr(S_XO+e)}, 128" for e in range(5)]
def wdma_ops(u):
    srd = sr(S_WQ, 4)
    out = []
    for e in range(4):
        m0 = f"s_add_u32 m0, {sr(S_M0)}, {hex(WQB[u] + (e>>1)*8192)}" if e % 2 == 0 else None
        off = " offset:1024" if e & 1 else ""
        out.append((m0, f"buffer_load_dwordx4 {vr(V_WD)}, {srd}, {sr(S_WO+e)} offen{off} lds"))
    return out
def wadv(): return [f"s_add_u32 {sr(S_WO+e)}, {sr(S_WO+e)}, 0x80000" for e in range(4)]
def kvdma_ops(kind, tile_n, slot):
    out = []
    for grp in range(2):
        so = (S_KO0 if kind == 'K' else S_VO0) + grp
        m0, dd = dma_ops(kind, slot, grp)
        out.append(([f"s_mov_b32 s{so}, {hex(tile_n*16384 + grp*8192)}", m0], dd[0]))
        out.append(([], dd[1]))
    return out

def emit_plain(A, ops):
    for pre, d in ops:
        if pre:
            for x in (pre if isinstance(pre, list) else [pre]): A(x)
            A("s_nop 0")
        A(d)

def setup_read_addrs(A):
    T = V_X; L_ = V_LANE
    A(f"""
    v_lshrrev_b32 v{T}, 4, v{L_}
    v_and_b32 v{T+1}, 15, v{L_}
    """)
    A(f"""
    s_mul_i32 s{S_T0}, s{S_I}, {80*128}
    s_add_u32 s{S_T0}, s{S_T0}, {hex(XB[0])}
    v_lshrrev_b32 v{T+2}, 1, v{T+1}
    v_xor_b32 v{T+2}, v{T+2}, v{T}
    v_lshlrev_b32 v{T+2}, 4, v{T+2}
    v_lshlrev_b32 v{T+3}, 7, v{T+1}
    v_add_u32 v{T+3}, s{S_T0}, v{T+3}
    v_add_u32 v{V_XR}, v{T+2}, v{T+3}
    v_xor_b32 v{T+2}, 64, v{T+2}
    v_add_u32 v{V_XR+1}, v{T+2}, v{T+3}
    """)
    A(f"""
    v_lshrrev_b32 v{T+2}, 2, v{T+1}
    v_and_b32 v{T+3}, 1, v{T}
    v_lshlrev_b32 v{T+3}, 2, v{T+3}
    v_or_b32 v{T+3}, v{T+3}, v{T+2}
    v_lshlrev_b32 v{T+4}, 3, v{T}
    v_add_u32 v{T+4}, v{T+4}, v{T+2}
    v_lshlrev_b32 v{T+4}, 8, v{T+4}
    v_and_b32 v{T+5}, 3, v{L_}
    v_lshlrev_b32 v{T+5}, 3, v{T+5}
    v_add_u32 v{T+4}, v{T+4}, v{T+5}
    v_add_u32 v{T+4}, {hex(WQB[0])}, v{T+4}
    s_lshl_b32 s{S_T0}, s{S_J}, 2
    v_xor_b32 v{T+3}, s{S_T0}, v{T+3}
    """)
    for d in range(4):
        A(f"""
        v_xor_b32 v{T+5}, {d}, v{T+3}
        v_lshlrev_b32 v{T+5}, 5, v{T+5}
        v_add_u32 v{V_WR+d}, v{T+4}, v{T+5}
        """)
    A(f"""
    s_mul_i32 s{S_T0}, s{S_I}, 20480
    s_lshl_b32 s{S_T1}, s{S_J}, 11
    s_add_u32 s{S_T0}, s{S_T0}, s{S_T1}
    s_add_u32 s{S_T0}, s{S_T0}, {hex(QIMG)}
    v_lshrrev_b32 v{T+2}, 1, v{T}
    v_lshlrev_b32 v{T+2}, 8, v{T+2}
    v_lshlrev_b32 v{T+3}, 4, v{T+1}
    v_add_u32 v{T+2}, v{T+2}, v{T+3}
    v_and_b32 v{T+3}, 1, v{T}
    v_lshlrev_b32 v{T+3}, 3, v{T+3}
    v_add_u32 v{T+2}, v{T+2}, v{T+3}
    v_add_u32 v{V_QW}, s{S_T0}, v{T+2}
    """)
    A(f"s_lshl_b32 s{S_T0}, s{S_J}, 13")
    for s in range(4):
        A(f"""
        v_add_u32 v{T+2}, {4*s}, v{T}
        v_xor_b32 v{T+2}, v{T+2}, v{T+1}
        v_lshlrev_b32 v{T+2}, 4, v{T+2}
        v_lshlrev_b32 v{T+3}, 8, v{T+1}
        v_add_u32 v{T+2}, v{T+2}, v{T+3}
        v_add_u32 v{V_KR+s}, s{S_T0}, v{T+2}
        """)
    A(f"""
    v_lshrrev_b32 v{T+2}, 2, v{T+1}
    v_lshlrev_b32 v{T+3}, 2, v{T}
    v_add_u32 v{T+2}, v{T+2}, v{T+3}
    v_and_b32 v{T+3}, 7, v{T+2}
    v_lshlrev_b32 v{T+2}, 8, v{T+2}
    v_and_b32 v{T+4}, 3, v{L_}
    v_lshlrev_b32 v{T+4}, 3, v{T+4}
    v_add_u32 v{T+2}, v{T+2}, v{T+4}
    s_add_u32 s{S_T0}, s{S_T0}, {hex(LDS_V)}
    v_add_u32 v{T+2}, s{S_T0}, v{T+2}
    s_lshl_b32 s{S_T1}, s{S_J}, 2
    v_xor_b32 v{T+3}, s{S_T1}, v{T+3}
    """)
    for idx in range(8):
        A(f"""
        v_xor_b32 v{T+4}, {idx}, v{T+3}
        v_lshlrev_b32 v{T+4}, 5, v{T+4}
        v_add_u32 v{V_VR+idx}, v{T+2}, v{T+4}
        """)
    A(f"""
    v_and_b32 v{T+2}, 3, v{L_}
    v_cmp_eq_u32 vcc, 0, v{T+2}
    v_mov_b32 v{T+3}, 0x3f803f80
    s_mov_b32 s{S_SC}, {f32hex(SCALE)}
    s_mov_b32 s{S_SC+1}, {f32hex(SCALE)}
    v_cndmask_b32 v{V_ONE}, 0, v{T+3}, vcc
    v_cndmask_b32 v{V_ONE+1}, 0, v{T+3}, vcc
    v_cndmask_b32 v{V_ONE+2}, 0, v{T+3}, vcc
    v_cndmask_b32 v{V_ONE+3}, 0, v{T+3}, vcc
    """)

def zero_state(A, acc=True, nm=True):
    if acc:
        for r in range(V_S, V_S+80, 2): A(f"v_mov_b64 {vr(r,2)}, 0")
    if nm:
        for r in range(V_NM, V_NM+20, 2): A(f"v_mov_b64 {vr(r,2)}, 0")
    for r in range(V_OK, V_OK+80, 2): A(f"v_mov_b64 {vr(r,2)}, 0")
    A("v_accvgpr_write_b32 a0, 0")
    A("s_nop 1")
    for r in range(1, 100): A(f"v_accvgpr_mov_b32 a{r}, a0")

def xread(u, kap, p, t): return f"ds_read_b128 {ar(PB(p,t),4)}, {vr(V_XR+kap)} offset:{u*0x5000 + t*2048}"
def wread(u, kap, p, d, hf):
    return f"ds_read_b64_tr_b16 {vr(PA(p,d)+2*hf,2)}, {vr(V_WR+d)} offset:{(WQB[u]-WQB[0]) + kap*8192 + hf*1024}"
def p1_reads(u, kap, p):
    g = [[xread(u, kap, p, 0)], [wread(u, kap, p, 0, 0), wread(u, kap, p, 0, 1)]]
    g += [[xread(u, kap, p, t)] for t in range(1, 5)]
    g += [[wread(u, kap, p, d, 0), wread(u, kap, p, d, 1)] for d in range(1, 4)]
    return g
def p1_mfma(p, g):
    d = g // 5; t = g % 5
    a = vr(ACC(t, d), 4)
    return mfma(a, vr(PA(p, d), 4), ar(PB(p, t), 4), a)

def p1_half(A, p, reads, dmas, advs):
    sc = [[] for _ in range(20)]; ve = [[] for _ in range(20)]
    for k, grp in enumerate(reads): ve[k] = list(grp)
    g = 10
    pend = []
    slots = list(range(20))
    dg = []
    n = len(dmas)
    gaps = [10, 12, 14, 16, 18][:n] if n <= 5 else None
    assert gaps is not None
    used = set()
    for (pre, d), gg in zip(dmas, gaps):
        pre = [] if pre is None else (pre if isinstance(pre, list) else [pre])
        assert len(pre) <= 2
        for k, x in enumerate(pre):
            sc[gg - len(pre) + k].append(x)
        ve[gg].append(d)
    k = 0
    for gg in range(0, 8):
        if k < len(advs) and not sc[gg]:
            sc[gg].append(advs[k]); k += 1
    assert k == len(advs)
    mf = [p1_mfma(p, g) for g in range(20)]
    emit_gaps(A, mf, sc, ve)

def p1_chunk(A, u, first_dmas, first_advs, vm_mid, second_dmas, second_advs, last=False):
    p1_half(A, 0, p1_reads(u, 1, 1), first_dmas, first_advs)
    A(f"s_waitcnt vmcnt({vm_mid}) lgkmcnt(0)" if vm_mid is not None else "s_waitcnt lgkmcnt(0)")
    A("s_barrier")
    p1_half(A, 1, [] if last else p1_reads((u+1) % 3, 0, 0), second_dmas, second_advs)
    if not last: A("s_waitcnt lgkmcnt(0)")

def p1(A):
    A("s_waitcnt vmcnt(18)")
    A("s_barrier")
    for grp in p1_reads(0, 0, 0):
        for x in grp: A(x)
    A(f"s_mov_b32 s{S_CNT}, 2")
    A("s_waitcnt lgkmcnt(0)")
    A(".p2align 5")
    A.label("L_p1")
    i0 = len(A.lines)
    for u in range(3):
        p1_chunk(A, u, wdma_ops((u+2) % 3), xadv(), 9, xdma_ops(u), wadv())
    A(f"s_sub_u32 s{S_CNT}, s{S_CNT}, 1")
    A(f"s_cmp_lg_u32 s{S_CNT}, 0")
    A("s_cbranch_scc1 L_p1")
    i1 = len(A.lines)
    for p in check_hazards(A.lines[i0:i1]*2, "p1loop"): print("HAZARD", p)
    p1_chunk(A, 0, wdma_ops(2), [], 9, kvdma_ops('K', 1, 1), [])
    p1_chunk(A, 1, kvdma_ops('V', 0, 0), [], 8, kvdma_ops('K', 2, 2), [])
    p1_chunk(A, 2, kvdma_ops('K', 3, 3), [], None, kvdma_ops('V', 1, 1), [], last=True)

def q_exchange(A):
    A("s_nop 7")
    for d in range(4):
        for t in range(5):
            a = ACC(t, d)
            A(f"v_pk_mul_f32 {vr(a,2)}, {vr(a,2)}, {sr(S_SC,2)}")
            A(f"v_pk_mul_f32 {vr(a+2,2)}, {vr(a+2,2)}, {sr(S_SC,2)}")
            A(f"v_cvt_pk_bf16_f32 {vr(a)}, {vr(a)}, {vr(a+1)}")
            A(f"v_cvt_pk_bf16_f32 {vr(a+1)}, {vr(a+2)}, {vr(a+3)}")
            A(f"ds_write_b64 {vr(V_QW)}, {vr(a,2)} offset:{t*4096 + (d>>1)*1024 + (d&1)*512}")
    A(f"""
    s_mul_i32 s{S_T0}, s{S_I}, 20480
    s_add_u32 s{S_T0}, s{S_T0}, {hex(QIMG)}
    v_lshlrev_b32 v{V_T}, 4, v{V_LANE}
    v_add_u32 v{V_T}, s{S_T0}, v{V_T}
    s_waitcnt vmcnt(16) lgkmcnt(0)
    s_barrier
    """)
    for t in range(5):
        for s in range(4):
            A(f"ds_read_b128 {ar(QF(t,s),4)}, v{V_T} offset:{(t*4+s)*1024}")

def qk0(A):
    for a in range(2):
        for s in range(4): A(kread(0, a, s))
    A("s_waitcnt lgkmcnt(0)")
    sc = [[] for _ in range(40)]; ve = [[] for _ in range(40)]
    k = 0
    for g in range(24, 40):
        t, r = k // 4, k % 4
        ve[g].append(exp_op(0, t, 0, r)); k += 1
    emit_gaps(A, [qk_mfma(0, g) for g in range(40)], sc, ve)
    for a in range(2):
        for s in range(4): A(kread(1, a, s))
    for r in range(4): A(exp_op(0, 4, 0, r))
    for t in range(5):
        A(cvt_op(0, t, 0, 0)); A(cvt_op(0, t, 0, 1))
    A("s_waitcnt lgkmcnt(0)\ns_barrier")
    emit_plain(A, kvdma_ops('K', 4, 0)); emit_plain(A, kvdma_ops('V', 2, 2))
    A(f"""
    s_mov_b32 s{S_KO0}, {hex(5*16384)}
    s_mov_b32 s{S_KO1}, {hex(5*16384+8192)}
    s_mov_b32 s{S_VO0}, {hex(3*16384)}
    s_mov_b32 s{S_VO1}, {hex(3*16384+8192)}
    s_mov_b32 s{S_CNT}, 8
    """)

def epilogue(A):
    T = V_X
    XL = LDS_SP
    XF = LDS_SP + 5120
    R = V_S
    A("s_nop 7")
    for t in range(5): A(f"v_accvgpr_read_b32 v{V_KF+t}, a{L(t)}")
    A(f"""
    s_mov_b32 s{S_T0}, {f32hex(T_HI)}
    s_mov_b32 s{S_T1}, {f32hex(T_LO)}
    v_max3_f32 v{T}, v{V_KF}, v{V_KF+1}, v{V_KF+2}
    v_max3_f32 v{T}, v{T}, v{V_KF+3}, v{V_KF+4}
    v_min3_f32 v{T+1}, v{V_KF}, v{V_KF+1}, v{V_KF+2}
    v_min3_f32 v{T+1}, v{T+1}, v{V_KF+3}, v{V_KF+4}
    v_add_f32 v{T+2}, v{V_KF}, v{V_KF+1}
    v_add_f32 v{T+3}, v{V_KF+2}, v{V_KF+3}
    v_add_f32 v{T+2}, v{T+2}, v{V_KF+4}
    v_add_f32 v{T+2}, v{T+2}, v{T+3}
    v_cmp_nge_f32 vcc, s{S_T0}, v{T}
    v_cmp_nle_f32 s[{S_ST+14}:{S_ST+15}], s{S_T1}, v{T+1}
    v_cmp_u_f32 s[{S_ST+12}:{S_ST+13}], v{T+2}, v{T+2}
    s_or_b64 vcc, vcc, s[{S_ST+14}:{S_ST+15}]
    s_or_b64 vcc, vcc, s[{S_ST+12}:{S_ST+13}]
    s_cmp_lg_u64 vcc, 0
    s_cselect_b32 s{S_T0}, 1, 0
    v_mov_b32 v{T+3}, s{S_T0}
    """)
    A(f"""
    v_lshlrev_b32 v{V_T}, 2, v{V_LANE}
    s_mul_i32 s{S_T0}, s{S_W}, 1280
    s_add_u32 s{S_T0}, s{S_T0}, {hex(XL)}
    v_add_u32 v{V_T+1}, s{S_T0}, v{V_T}
    s_xor_b32 s{S_T1}, s{S_W}, 1
    s_mul_i32 s{S_T1}, s{S_T1}, 1280
    s_add_u32 s{S_T1}, s{S_T1}, {hex(XL)}
    v_add_u32 v{V_T+2}, s{S_T1}, v{V_T}
    s_lshl_b32 s{S_T0}, s{S_W}, 2
    s_add_u32 s{S_T0}, s{S_T0}, {hex(XF)}
    v_mov_b32 v{T+4}, s{S_T0}
    v_mov_b32 v{T+5}, {hex(XF)}
    v_lshlrev_b32 v{V_T}, 4, v{V_LANE}
    s_mul_i32 s{S_T0}, s{S_W}, 20480
    v_add_u32 v{T+6}, s{S_T0}, v{V_T}
    s_xor_b32 s{S_T1}, s{S_W}, 1
    s_mul_i32 s{S_T1}, s{S_T1}, 20480
    v_add_u32 v{T+7}, s{S_T1}, v{V_T}
    s_waitcnt vmcnt(0) lgkmcnt(0)
    s_barrier
    """)
    for t in range(5): A(f"ds_write_b32 v{V_T+1}, v{V_KF+t} offset:{t*256}")
    A(f"ds_write_b32 v{T+4}, v{T+3}")
    for t in range(5):
        for q in range(4):
            A(f"ds_write_b128 v{T+6}, {O(t, 4+q)} offset:{(t*4+q)*1024}")
    A("s_waitcnt lgkmcnt(0)\ns_barrier")
    A(f"ds_read_b128 {vr(V_KF+8,4)}, v{T+5}")
    for t in range(5): A(f"ds_read_b32 v{V_KF+16+2*t}, v{V_T+2} offset:{t*256}")
    for t in range(5):
        for q in range(4):
            A(f"ds_read_b128 {vr(R+(t*4+q)*4,4)}, v{T+7} offset:{(t*4+q)*1024}")
    A(f"""
    s_mul_i32 s{S_T0}, s{S_B}, 10
    s_mul_i32 s{S_T1}, s{S_I}, 5
    s_add_u32 s{S_T0}, s{S_T0}, s{S_T1}
    s_lshl_b32 s{S_T0}, s{S_T0}, 5
    s_add_u32 s{S_T0}, s{S_T0}, s{S_H}
    s_lshl_b32 s{S_T0}, s{S_T0}, 1
    s_add_u32 s{S_T0}, s{S_T0}, s{S_J}
    s_lshl_b32 s{S_T0}, s{S_T0}, 11
    s_waitcnt lgkmcnt(14)
    v_or3_b32 v{T}, v{V_KF+8}, v{V_KF+9}, v{V_KF+10}
    v_or_b32 v{T}, v{T}, v{V_KF+11}
    s_nop 0
    v_readfirstlane_b32 s{S_T1}, v{T}
    s_nop 0
    s_andn2_b32 s{S_T1}, s{S_T1}, s{S_FB}
    s_cmp_lg_u32 s{S_T1}, 0
    s_cbranch_scc1 L_fallback
    """)
    for t in range(5):
        A(f"v_add_f32 v{V_KF+16+2*t}, v{V_KF+16+2*t}, v{V_KF+t}")
    for t in range(5):
        A(f"v_rcp_f32 v{V_KF+16+2*t}, v{V_KF+16+2*t}")
    for t in range(5):
        A(f"s_waitcnt lgkmcnt({min(14, 16-4*t)})" if t < 4 else "s_waitcnt lgkmcnt(0)")
        inv = V_KF + 16 + 2*t
        for mm in range(2):
            for e in range(2):
                q = 2*mm + e
                o = V_OK + t*16 + q*4; r = R + (t*4+q)*4
                A(f"v_pk_add_f32 {vr(o,2)}, {vr(o,2)}, {vr(r,2)}")
                A(f"v_pk_add_f32 {vr(o+2,2)}, {vr(o+2,2)}, {vr(r+2,2)}")
                A(f"v_pk_mul_f32 {vr(o,2)}, {vr(o,2)}, {vr(inv,2)} op_sel_hi:[1,0]")
                A(f"v_pk_mul_f32 {vr(o+2,2)}, {vr(o+2,2)}, {vr(inv,2)} op_sel_hi:[1,0]")
            o = V_OK + t*16 + mm*8
            A(f"v_cvt_pk_bf16_f32 v{o}, v{o}, v{o+1}")
            A(f"v_cvt_pk_bf16_f32 v{o+1}, v{o+2}, v{o+3}")
            A(f"v_cvt_pk_bf16_f32 v{o+2}, v{o+4}, v{o+5}")
            A(f"v_cvt_pk_bf16_f32 v{o+3}, v{o+6}, v{o+7}")
            A(f"s_add_u32 s{S_T1}, s{S_T0}, {t*32*4*1024 + mm*1024}")
            A(f"buffer_store_dwordx4 {vr(o,4)}, v{V_T}, {sr(S_WS,4)}, s{S_T1} offen")

def fallback(A):
    T = V_X; M = V_T
    A.label("L_fallback")
    A("s_waitcnt vmcnt(0) lgkmcnt(0)\ns_barrier")
    for t in range(5):
        A(f"v_mov_b32 v{V_X+t}, 0xff800000")
    for r in range(V_NM, V_NM+20, 2): A(f"v_mov_b64 {vr(r,2)}, 0")
    A(f"s_mov_b32 s{S_K+2}, {hex(HEAD_BYTES)}\ns_mov_b32 s{S_V+2}, {hex(HEAD_BYTES)}")
    A(f"s_mov_b32 s{S_KO0}, 0\ns_mov_b32 s{S_KO1}, 0x2000")
    A.label("L_fb_loop")
    for grp in range(2):
        m0, dd = dma_ops('K', 0, grp)
        A(m0); A("s_nop 0"); A(dd[0]); A(dd[1])
    A("s_waitcnt vmcnt(0)\ns_barrier")
    for a in range(2):
        for s in range(4): A(kread(0, a, s))
    A("s_waitcnt lgkmcnt(0)\ns_barrier")
    for g in range(40): A(qk_mfma(0, g))
    A("s_nop 7")
    for t in range(5):
        s = [S(0, t, a, r) for a in range(2) for r in range(4)]
        for k in range(0, 8, 2):
            A(f"v_max3_f32 v{V_X+t}, v{s[k]}, v{s[k+1]}, v{V_X+t}")
    A(f"""
    s_add_u32 s{S_KO0}, s{S_KO0}, 0x4000
    s_add_u32 s{S_KO1}, s{S_KO1}, 0x4000
    s_cmp_lt_u32 s{S_KO0}, {hex(HEAD_BYTES)}
    s_cbranch_scc1 L_fb_loop
    """)
    for t in range(5):
        x = V_X + t; y = V_X + 5
        A(f"""
        v_mov_b32 v{y}, v{x}
        s_nop 1
        v_permlane32_swap_b32 v{x}, v{y}
        v_max_f32 v{x}, v{x}, v{y}
        v_mov_b32 v{y}, v{x}
        s_nop 1
        v_permlane16_swap_b32 v{x}, v{y}
        v_max_f32 v{x}, v{x}, v{y}
        """)
    A(f"""
    v_lshlrev_b32 v{V_T}, 2, v{V_LANE}
    s_mul_i32 s{S_T0}, s{S_W}, 1280
    s_add_u32 s{S_T0}, s{S_T0}, {hex(LDS_SP)}
    v_add_u32 v{V_T+1}, s{S_T0}, v{V_T}
    s_xor_b32 s{S_T1}, s{S_W}, 1
    s_mul_i32 s{S_T1}, s{S_T1}, 1280
    s_add_u32 s{S_T1}, s{S_T1}, {hex(LDS_SP)}
    v_add_u32 v{V_T+2}, s{S_T1}, v{V_T}
    """)
    for t in range(5): A(f"ds_write_b32 v{V_T+1}, v{V_X+t} offset:{t*256}")
    A("s_waitcnt lgkmcnt(0)\ns_barrier")
    for t in range(5): A(f"ds_read_b32 v{V_S+t}, v{V_T+2} offset:{t*256}")
    A("s_waitcnt lgkmcnt(0)")
    for t in range(5):
        A(f"v_max_f32 v{V_X+t}, v{V_X+t}, v{V_S+t}")
        for r in range(4): A(f"v_sub_f32 v{NM(t)+r}, 0, v{V_X+t}")
    zero_state(A, acc=False, nm=False)
    emit_plain(A, kvdma_ops('K', 0, 0)); emit_plain(A, kvdma_ops('K', 1, 1)); emit_plain(A, kvdma_ops('V', 0, 0))
    emit_plain(A, kvdma_ops('K', 2, 2)); emit_plain(A, kvdma_ops('K', 3, 3)); emit_plain(A, kvdma_ops('V', 1, 1))
    A(f"s_mov_b32 s{S_FB}, 1")
    A("s_waitcnt vmcnt(0)\ns_barrier\ns_branch L_qk0")

def stamp(A, k):
    A(f"s_memtime s[{S_ST+2*k}:{S_ST+2*k+1}]")

def kernel_a(A, stamps=False):
    A(f""".text
    .globl {KA}
    .p2align 8
    .type {KA},@function""")
    A.label(KA)
    setup_ids(A, "L_a_end")
    if stamps:
        stamp(A, 0); A(f"s_memrealtime s[80:81]")
    setup_dma_addrs(A)
    def adv(ops):
        for x in ops: A(x)
    emit_plain(A, xdma_ops(0)); adv(xadv())
    emit_plain(A, wdma_ops(0)); adv(wadv())
    emit_plain(A, kvdma_ops('K', 0, 0))
    emit_plain(A, xdma_ops(1)); adv(xadv())
    emit_plain(A, wdma_ops(1)); adv(wadv())
    emit_plain(A, xdma_ops(2))
    A(f"s_mov_b32 s{S_FB}, 0")
    setup_read_addrs(A)
    zero_state(A)
    if stamps: stamp(A, 1)
    p1(A)
    if stamps: stamp(A, 2)
    q_exchange(A)
    A.label("L_qk0")
    qk0(A)
    if stamps: stamp(A, 3)
    A(".p2align 6")
    A.label("L_loop")
    i0 = len(A.lines)
    for u in range(4):
        step(A, (1 + u) & 3, last_in_loop=(u == 3), loop_label="L_loop")
    i1 = len(A.lines)
    for p in check_hazards(A.lines[i0:i1]*2, "loop"): print("HAZARD", p)
    if stamps: stamp(A, 4); A("s_memrealtime s[82:83]")
    epilogue(A)
    if stamps:
        A(f"""
        s_memtime s[{S_ST+10}:{S_ST+11}]
        s_waitcnt lgkmcnt(0)
        s_sub_u32 s{S_ST+2}, s{S_ST+2}, s{S_ST}
        s_sub_u32 s{S_ST+4}, s{S_ST+4}, s{S_ST}
        s_sub_u32 s{S_ST+6}, s{S_ST+6}, s{S_ST}
        s_sub_u32 s{S_ST+8}, s{S_ST+8}, s{S_ST}
        s_sub_u32 s{S_ST+10}, s{S_ST+10}, s{S_ST}
        s_sub_u32 s82, s82, s80
        v_mov_b32 v32, s{S_ST+2}
        v_mov_b32 v33, s{S_ST+4}
        v_mov_b32 v34, s{S_ST+6}
        v_mov_b32 v35, s{S_ST+8}
        v_mov_b32 v36, s{S_ST+10}
        v_mov_b32 v37, s82
        v_mov_b32 v38, s80
        v_mov_b32 v39, s{S_FB}
        s_lshl_b32 s{S_T0}, s2, 2
        s_add_u32 s{S_T0}, s{S_T0}, s{S_W}
        s_lshl_b32 s{S_T0}, s{S_T0}, 5
        s_add_u32 s{S_T0}, s{S_T0}, 0x4000000
        v_mov_b32 v40, s{S_T0}
        s_mov_b64 exec, 1
        buffer_store_dwordx4 v[32:35], v40, {sr(S_WS,4)}, 0 offen
        buffer_store_dwordx4 v[36:39], v40, {sr(S_WS,4)}, 0 offen offset:16
        """)
    A.label("L_a_end")
    A("s_endpgm")
    fallback(A)

B_DEPTH = 8
def kernel_b(A, stamps=False):
    V_L = 1
    V_OA = 2
    V_WD_ = 6
    V_WR_ = 9
    V_TT = 10
    V_ACC = 20
    V_AF = 68
    V_BF = 92
    S_O = 12; S_WOS = 16; S_OUT = 20
    S_W_, S_RT, S_CT, S_MB = 24, 25, 26, 27
    S_KO, S_WK, S_C = 28, 29, 30
    def ACCB(tl, nt): return V_ACC + (tl*3 + nt)*4
    def AF(p, nt): return V_AF + p*12 + nt*4
    def BF(sl, tl): return V_BF + sl*16 + tl*4
    A(f""".text
    .globl {KB}
    .p2align 8
    .type {KB},@function""")
    A.label(KB)
    T = V_TT
    A(f"""
    s_load_dwordx4 s[4:7], s[0:1], 32
    s_load_dwordx2 s[8:9], s[0:1], 56
    s_cmp_ge_u32 s2, 240
    s_cbranch_scc1 L_b_end
    v_lshrrev_b32 v{T}, 6, v0
    v_and_b32 v{V_L}, 63, v0
    v_readfirstlane_b32 s{S_W_}, v{T}
    s_and_b32 s3, s2, 7
    s_lshr_b32 s10, s2, 3
    s_mul_i32 s11, s10, 43
    s_lshr_b32 s11, s11, 8
    s_lshr_b32 s35, s3, 1
    s_mul_i32 s35, s35, 5
    s_add_u32 s{S_RT}, s35, s11
    s_mul_i32 s11, s11, 6
    s_sub_u32 s10, s10, s11
    s_and_b32 s35, s3, 1
    s_mul_i32 s35, s35, 6
    s_add_u32 s{S_CT}, s35, s10
    s_lshl_b32 s35, s{S_RT}, 19
    s_mul_i32 s36, s{S_CT}, 96
    s_mul_i32 s37, s{S_RT}, {64*1152}
    s_add_u32 s37, s37, s36
    s_waitcnt lgkmcnt(0)
    s_add_u32 s{S_O}, s8, s35
    s_addc_u32 s{S_O+1}, s9, 0
    s_mov_b32 s{S_O+2}, 0x80000
    s_mov_b32 s{S_O+3}, 0x20000
    s_add_u32 s{S_WOS}, s4, s36
    s_addc_u32 s{S_WOS+1}, s5, 0
    s_sub_u32 s{S_WOS+2}, {4096*1152}, s36
    s_mov_b32 s{S_WOS+3}, 0x20000
    s_add_u32 s{S_OUT}, s6, s37
    s_addc_u32 s{S_OUT+1}, s7, 0
    s_sub_u32 s{S_OUT+2}, {1280*1152}, s37
    s_mov_b32 s{S_OUT+3}, 0x20000
    s_lshl_b32 s35, s{S_W_}, 15
    v_lshlrev_b32 v{T}, 4, v{V_L}
    v_add_u32 v{V_OA}, s35, v{T}
    v_add_u32 v{V_OA+1}, 0x20000, v{V_OA}
    v_add_u32 v{V_OA+2}, 0x40000, v{V_OA}
    v_add_u32 v{V_OA+3}, 0x60000, v{V_OA}
    """)
    for e in range(3):
        A(f"""
        v_add_u32 v{T}, {64*e}, v{V_L}
        v_mul_u32_u24 v{T+1}, 171, v{T}
        v_lshrrev_b32 v{T+1}, 10, v{T+1}
        v_mul_u32_u24 v{T+2}, 6, v{T+1}
        v_sub_u32 v{T+2}, v{T}, v{T+2}
        v_mul_u32_u24 v{T+1}, 1152, v{T+1}
        v_lshlrev_b32 v{T+2}, 4, v{T+2}
        v_add_u32 v{V_WD_+e}, v{T+1}, v{T+2}
        """)
        if e: A(f"v_subrev_u32 v{V_WD_+e}, {e*1024}, v{V_WD_+e}")
    A(f"""
    s_mul_i32 s{S_MB}, s{S_W_}, {B_DEPTH*3072}
    s_mul_i32 s{S_WK}, s{S_W_}, {32*32*1152}
    s_mov_b32 s{S_KO}, 0
    """)
    def issue(sl, koff):
        ops = []
        for tl in range(4):
            off = f" offset:{koff*1024}" if koff else ""
            ops.append(f"buffer_load_dwordx4 {vr(BF(sl,tl),4)}, v{V_OA+tl}, {sr(S_O,4)}, s{S_KO} offen{off}")
        ops.append(f"s_add_u32 m0, s{S_MB}, {sl*3072}")
        ops.append("s_nop 0")
        for e in range(3):
            off = f" offset:{e*1024}" if e else ""
            ops.append(f"buffer_load_dwordx4 v{V_WD_+e}, {sr(S_WOS,4)}, s{S_WK} offen{off} lds")
        ops.append(f"s_add_u32 s{S_WK}, s{S_WK}, {32*1152}")
        if koff == 3: ops.append(f"s_add_u32 s{S_KO}, s{S_KO}, 4096")
        return ops
    for sl in range(B_DEPTH):
        for x in issue(sl, sl & 3): A(x)
    A(f"""
    v_lshrrev_b32 v{T}, 2, v{V_L}
    v_mul_u32_u24 v{T}, 96, v{T}
    v_and_b32 v{T+1}, 3, v{V_L}
    v_lshlrev_b32 v{T+1}, 3, v{T+1}
    v_add_u32 v{T}, v{T}, v{T+1}
    v_add_u32 v{V_WR_}, s{S_MB}, v{T}
    """)
    for r in range(V_ACC, V_ACC+48, 2): A(f"v_mov_b64 {vr(r,2)}, 0")
    def areads(sl, p):
        return [f"ds_read_b64_tr_b16 {vr(AF(p,nt)+2*hf,2)}, v{V_WR_} offset:{sl*3072 + hf*1536 + nt*32}"
                for nt in range(3) for hf in range(2)]
    A(f"s_waitcnt vmcnt({7*(B_DEPTH-1)})")
    for x in areads(0, 0): A(x)
    A(f"s_mov_b32 s{S_C}, {32//B_DEPTH}")
    A.label("L_b_loop")
    i0 = len(A.lines)
    A(f"s_cmp_eq_u32 s{S_C}, 1\ns_cselect_b32 s{S_O+2}, 0, s{S_O+2}\ns_cselect_b32 s{S_WOS+2}, 0, s{S_WOS+2}")
    for sl in range(B_DEPTH):
        p = sl & 1
        A(f"s_waitcnt vmcnt({7*(B_DEPTH-2)}) lgkmcnt(0)")
        for x in areads((sl+1) % B_DEPTH, 1-p): A(x)
        for nt in range(3):
            for tl in range(4):
                a = vr(ACCB(tl, nt), 4)
                A(mfma(a, vr(AF(p, nt), 4), vr(BF(sl, tl), 4), a))
        for x in issue(sl, sl & 3): A(x)
    A(f"s_sub_u32 s{S_C}, s{S_C}, 1\ns_cmp_lg_u32 s{S_C}, 0\ns_cbranch_scc1 L_b_loop")
    i1 = len(A.lines)
    for p in check_hazards(A.lines[i0:i1]*2, "bloop"): print("HAZARD", p)
    RB = 0
    A(f"""
    s_waitcnt vmcnt(0) lgkmcnt(0)
    v_lshlrev_b32 v{T}, 4, v{V_L}
    v_add_u32 v{T+1}, s{S_MB}, v{T}
    s_nop 7
    """)
    for tl in range(4):
        for nt in range(3):
            A(f"ds_write_b128 v{T+1}, {vr(ACCB(tl,nt),4)} offset:{(tl*3+nt)*1024}")
    A(f"""
    s_mul_i32 s35, s{S_W_}, 3072
    v_add_u32 v{T+2}, s35, v{T}
    v_add_u32 v{T+3}, 0x10000, v{T+2}
    s_waitcnt lgkmcnt(0)
    s_barrier
    """)
    R = V_BF
    for w in range(4):
        for nt in range(3):
            off = w*B_DEPTH*3072 + nt*1024
            if off > 65535 - 3072:
                pass
            A(f"ds_read_b128 {vr(R+(w*3+nt)*4,4)}, v{T+2 if off < 65536 else T+3} offset:{off if off < 65536 else off-65536}"
              if True else "")
    return ACCB, R, T, V_L, S_OUT, S_W_

def kernel_b_tail(A, ACCB, R, T, V_L, S_OUT, S_W_):
    A(f"""
    v_and_b32 v{T+4}, 15, v{V_L}
    s_lshl_b32 s35, s{S_W_}, 4
    v_add_u32 v{T+4}, s35, v{T+4}
    v_mul_u32_u24 v{T+4}, 1152, v{T+4}
    v_lshrrev_b32 v{T+5}, 4, v{V_L}
    v_lshlrev_b32 v{T+5}, 3, v{T+5}
    v_add_u32 v{T+4}, v{T+4}, v{T+5}
    s_waitcnt lgkmcnt(0)
    """)
    for nt in range(3):
        a = R + nt*4
        for w in range(1, 4):
            b = R + (w*3+nt)*4
            A(f"v_pk_add_f32 {vr(a,2)}, {vr(a,2)}, {vr(b,2)}")
            A(f"v_pk_add_f32 {vr(a+2,2)}, {vr(a+2,2)}, {vr(b+2,2)}")
        A(f"v_cvt_pk_bf16_f32 v{a}, v{a}, v{a+1}")
        A(f"v_cvt_pk_bf16_f32 v{a+1}, v{a+2}, v{a+3}")
        A(f"buffer_store_dwordx2 {vr(a,2)}, v{T+4}, {sr(S_OUT,4)}, 0 offen offset:{nt*32}")
    A.label("L_b_end")
    A("s_endpgm")

def descriptor(name, vgpr, accum, sgpr=102):
    return f""".amdhsa_kernel {name}
    .amdhsa_next_free_vgpr {vgpr}
    .amdhsa_next_free_sgpr {sgpr}
    .amdhsa_accum_offset {accum}
    .amdhsa_group_segment_fixed_size 0
    .amdhsa_kernarg_size 64
    .amdhsa_user_sgpr_count 2
    .amdhsa_user_sgpr_kernarg_segment_ptr 1
    .amdhsa_system_sgpr_workgroup_id_x 1
    .end_amdhsa_kernel"""

HEADER = """; Kernarg layout for this problem (64 bytes, ptrs only, base s[0:1]):
; @launch kernel=%s grid=(256,1,1) block=(256,1,1) lds=%d
; @launch kernel=%s grid=(240,1,1) block=(256,1,1) lds=%d
"""

def gen(stamps=False):
    A = Asm()
    kernel_a(A, stamps)
    r = kernel_b(A, stamps)
    kernel_b_tail(A, *r)
    A('.section .rodata,"a"\n.p2align 6')
    A(descriptor(KA, 512, 256))
    A(".p2align 6")
    A(descriptor(KB, 224, 224))
    for p in check_hazards(A.lines, "all"): print("HAZARD", p)
    hdr = HEADER % (KA, LDS_A, KB, 4*B_DEPTH*3072)
    return hdr + '.amdgcn_target "amdgcn-amd-amdhsa--gfx950"\n' + A.text()

if __name__ == "__main__":
    import sys
    from hiprt import add_meta
    stamps = len(sys.argv) > 1 and sys.argv[1] == "stamps"
    txt = gen(stamps)
    if stamps:
        open("full_st.s", "w").write(add_meta(txt, [(KA, 512, 256), (KB, 224, 256)]))
    else:
        open("full.s", "w").write(txt)
    print("written")
```

```python
from asmlib import *
import struct, math

KA = "standalone__gqa_block_cached__near_ridge_kernel"
KB = "gqa_oproj_kernel"

V_KD0, V_KD1, V_VD0, V_VD1 = 1, 2, 3, 4
V_KR = 5
V_VR = 9
V_LANE = 17
V_XD0, V_XD1 = 18, 19
V_WD = 20
V_XR = 21
V_WR = 23
V_QW = 27
V_T = 28
V_S = 32
V_NM = 112
V_OK = 132
V_KF = 212
V_ONE = 244
V_X = 248
A_OS = 0
A_L = 80
A_VF = 100
A_Q = 132

def S(sig, t, a, r=0): return V_S + sig*40 + t*8 + a*4 + r
def NM(t): return V_NM + 4*t
def QF(t, s): return A_Q + (t*4 + s)*4
def KF(a, s): return V_KF + (a*4 + s)*4
def VF(db): return A_VF + db*4
def O(t, idx):
    return vr(V_OK + t*16 + idx*4, 4) if idx < 4 else ar(A_OS + t*16 + (idx-4)*4, 4)
def L(t): return A_L + 4*t
def ACC(t, d): return V_S + (t*4 + d)*4
def PA(p, d): return V_KF + p*16 + d*4
def PB(p, t): return A_Q + p*20 + t*4

S_K = 12; S_V = 16; S_WS = 20
S_W, S_I, S_J, S_M0 = 24, 25, 26, 27
S_KO0, S_KO1, S_VO0, S_VO1 = 28, 29, 30, 31
S_CNT = 32
S_B, S_H = 33, 34
S_T0, S_T1 = 35, 36
S_X = 40
S_WQ = 44
S_XO = 48
S_WO = 53
S_MX = 57
S_FB = 58
S_SC = 60
S_ST = 64

LDS_K = 0; LDS_V = 0x10000; LDS_SP = 0x20000
HEAD_BYTES = 2048*128*2
WQB = [0x8000, 0xC000, 0x14000]
XB = [0x18000, 0x1D000, 0x22000]
QIMG = 0x1E000
LDS_A = 163840

def f32hex(x): return hex(struct.unpack("<I", struct.pack("<f", x))[0])
SCALE = math.log2(math.e) / math.sqrt(128.0)
T_HI = 2.0**64
T_LO = 2.0**-40

def mfma(d, a, b, c): return f"v_mfma_f32_16x16x32_bf16 {d}, {a}, {b}, {c}"

def qk_mfma(sig, g):
    a = g // 20; s = (g % 20) // 5; t = g % 5
    d = vr(S(sig, t, a), 4)
    c = d if s else vr(NM(t), 4)
    return mfma(d, vr(KF(a, s), 4), ar(QF(t, s), 4), c)
def pv_mfma(sigp, idx):
    db = idx // 5; t = idx % 5
    p = vr(S(sigp, t, 0), 4)
    if db < 8: return mfma(O(t, db), ar(VF(db), 4), p, O(t, db))
    return mfma(ar(L(t), 4), vr(V_ONE, 4), p, ar(L(t), 4))

def exp_op(sig, t, a, r): return f"v_exp_f32 {vr(S(sig,t,a,r))}, {vr(S(sig,t,a,r))}"
def cvt_op(sig, t, a, h):
    return f"v_cvt_pk_bf16_f32 {vr(S(sig,t,0,2*a+h))}, {vr(S(sig,t,a,2*h))}, {vr(S(sig,t,a,2*h+1))}"
def kread(slot, a, s): return f"ds_read_b128 {vr(KF(a,s),4)}, {vr(V_KR+s)} offset:{slot*16384 + a*4096}"
def vread(slot, db, hf): return f"ds_read_b64_tr_b16 {ar(VF(db)+2*hf,2)}, {vr(V_VR+db)} offset:{slot*16384 + hf*4096}"

KV_AUX = " nt"
def dma_ops(kind, slot, grp):
    base = (LDS_K if kind == 'K' else LDS_V) + slot*16384 + grp*8192
    srd = sr(S_K if kind == 'K' else S_V, 4)
    so = sr((S_KO0 if kind == 'K' else S_VO0) + grp)
    v0, v1 = (V_KD0, V_KD1) if kind == 'K' else (V_VD0, V_VD1)
    return (f"s_add_u32 m0, {sr(S_M0)}, {hex(base)}",
            [f"buffer_load_dwordx4 {vr(v0)}, {srd}, {so} offen{KV_AUX} lds",
             f"buffer_load_dwordx4 {vr(v1)}, {srd}, {so} offen offset:1024{KV_AUX} lds"])

def emit_gaps(A, mf, sc, ve):
    for g in range(len(mf)):
        A(mf[g])
        assert len(sc[g]) <= 1, (g, sc[g])
        for x in sc[g]: A(x)
        for x in ve[g]: A(x)

def step(A, n4, last_in_loop=False, loop_label=None):
    sig = n4 & 1; sp = 1 - sig
    NG = 85
    sc = [[] for _ in range(NG)]
    ve = [[] for _ in range(NG)]
    for t in range(5):
        for r in range(4): ve[8*t + 2*r].append(exp_op(sp, t, 1, r))
    vslot = (n4 - 1) & 3
    vr_ops = [vread(vslot, db, hf) for db in range(8) for hf in range(2)]
    k = 0
    for g in range(1, 40, 2):
        if g % 4 == 1:
            if k < 16:
                ve[g].append(vr_ops[k]); k += 1
                if k < 16: ve[g].append(vr_ops[k]); k += 1
        else:
            if k < 16: ve[g].append(vr_ops[k]); k += 1
            t = g // 8; h = (g % 8) // 4
            ve[g].append(cvt_op(sp, t, 1, h))
    assert k == 16
    for t in range(5):
        for r in range(4): ve[40 + 8*t + 2*r].append(exp_op(sig, t, 0, r))
    kslot = (n4 + 1) & 3
    kr_ops = [kread(kslot, a, s) for a in range(2) for s in range(4)]
    k = 0
    for g in range(43, 80, 4):
        if k < 8: ve[g].append(kr_ops[k]); k += 1
        t = (g - 40) // 8; h = ((g - 40) % 8) // 4
        ve[g].append(cvt_op(sig, t, 0, h))
    dk = n4 & 3; dv = (n4 + 2) & 3
    groups = [dma_ops('K', dk, 0), dma_ops('K', dk, 1), dma_ops('V', dv, 0), dma_ops('V', dv, 1)]
    dgaps = [25, 29, 33, 37, 41, 45, 49, 53]
    for q in range(4):
        m0, dd = groups[q]
        g0, g1 = dgaps[2*q], dgaps[2*q+1]
        assert not ve[g0] and not ve[g1], (g0, g1, ve[g0], ve[g1])
        sc[g0-1].append(m0)
        ve[g0].append(dd[0]); ve[g1].append(dd[1])
    sc[2].append(f"s_cmp_lt_u32 {sr(S_KO0)}, {hex(HEAD_BYTES)}")
    sc[3].append(f"s_cselect_b32 {sr(S_K+2)}, {hex(HEAD_BYTES)}, 0")
    sc[4].append(f"s_cmp_lt_u32 {sr(S_VO0)}, {hex(HEAD_BYTES)}")
    sc[5].append(f"s_cselect_b32 {sr(S_V+2)}, {hex(HEAD_BYTES)}, 0")
    sc[56].append(f"s_add_u32 {sr(S_KO0)}, {sr(S_KO0)}, 0x4000")
    sc[57].append(f"s_add_u32 {sr(S_KO1)}, {sr(S_KO1)}, 0x4000")
    sc[58].append(f"s_add_u32 {sr(S_VO0)}, {sr(S_VO0)}, 0x4000")
    sc[59].append(f"s_add_u32 {sr(S_VO1)}, {sr(S_VO1)}, 0x4000")
    sc[39].append("s_waitcnt lgkmcnt(0)")
    if last_in_loop:
        sc[82].append(f"s_sub_u32 {sr(S_CNT)}, {sr(S_CNT)}, 1")
    A("s_waitcnt vmcnt(16) lgkmcnt(0)")
    A("s_barrier")
    mf = [qk_mfma(sig, g) if g < 40 else pv_mfma(sp, g - 40) for g in range(NG)]
    emit_gaps(A, mf, sc, ve)
    if last_in_loop:
        A(f"s_cmp_lg_u32 {sr(S_CNT)}, 0")
        A(f"s_cbranch_scc1 {loop_label}")

def setup_ids(A, endlabel):
    A(f"""
    s_load_dwordx4 s[4:7], s[0:1], 8
    s_load_dwordx2 s[8:9], s[0:1], 56
    s_load_dwordx2 s[{S_X}:{S_X+1}], s[0:1], 0
    s_load_dwordx2 s[{S_WQ}:{S_WQ+1}], s[0:1], 24
    s_cmp_ge_u32 s2, 256
    s_cbranch_scc1 {endlabel}
    v_lshrrev_b32 v{V_T}, 6, v0
    v_and_b32 v{V_LANE}, 63, v0
    v_readfirstlane_b32 s{S_W}, v{V_T}
    s_and_b32 s3, s2, 7
    s_lshr_b32 s10, s2, 3
    s_and_b32 s11, s3, 1
    s_lshl_b32 s11, s11, 2
    s_lshr_b32 s{S_T0}, s10, 3
    s_add_u32 s{S_B}, s11, s{S_T0}
    s_lshr_b32 s11, s3, 1
    s_lshl_b32 s11, s11, 3
    s_and_b32 s{S_T0}, s10, 7
    s_add_u32 s{S_H}, s11, s{S_T0}
    s_lshr_b32 s{S_I}, s{S_W}, 1
    s_and_b32 s{S_J}, s{S_W}, 1
    s_lshl_b32 s{S_M0}, s{S_W}, 11
    s_mul_i32 s{S_MX}, s{S_W}, 5120
    s_lshl_b32 s11, s{S_B}, 4
    s_lshr_b32 s{S_T0}, s{S_H}, 1
    s_add_u32 s11, s11, s{S_T0}
    s_lshr_b32 s{S_T1}, s11, 13
    s_lshl_b32 s{S_T0}, s11, 19
    s_mul_i32 s10, s{S_B}, 184320
    s_lshl_b32 s11, s{S_H}, 8
    s_waitcnt lgkmcnt(0)
    s_add_u32 s{S_X}, s{S_X}, s10
    s_addc_u32 s{S_X+1}, s{S_X+1}, 0
    s_mov_b32 s{S_X+2}, 184320
    s_mov_b32 s{S_X+3}, 0x20000
    s_add_u32 s{S_WQ}, s{S_WQ}, s11
    s_addc_u32 s{S_WQ+1}, s{S_WQ+1}, 0
    s_sub_u32 s{S_WQ+2}, {576*8192}, s11
    s_mov_b32 s{S_WQ+3}, 0x20000
    s_add_u32 s{S_K}, s4, s{S_T0}
    s_addc_u32 s{S_K+1}, s5, s{S_T1}
    s_mov_b32 s{S_K+2}, {hex(HEAD_BYTES)}
    s_mov_b32 s{S_K+3}, 0x20000
    s_add_u32 s{S_V}, s6, s{S_T0}
    s_addc_u32 s{S_V+1}, s7, s{S_T1}
    s_mov_b32 s{S_V+2}, {hex(HEAD_BYTES)}
    s_mov_b32 s{S_V+3}, 0x20000
    s_mov_b32 s{S_WS}, s8
    s_mov_b32 s{S_WS+1}, s9
    s_mov_b32 s{S_WS+2}, 0x10000000
    s_mov_b32 s{S_WS+3}, 0x20000
    """)

def setup_dma_addrs(A):
    T = V_X; L_ = V_LANE
    A(f"""
    v_lshrrev_b32 v{T}, 4, v{L_}
    v_and_b32 v{T+1}, 15, v{L_}
    v_lshrrev_b32 v{T+2}, 3, v{L_}
    v_and_b32 v{T+3}, 7, v{L_}
    s_mul_i32 s{S_T0}, s{S_W}, {40*1152}
    s_and_b32 s{S_T1}, s{S_W}, 1
    s_lshl_b32 s{S_T1}, s{S_T1}, 2
    v_mul_u32_u24 v{T+4}, 1152, v{T+2}
    v_add_u32 v{T+4}, s{S_T0}, v{T+4}
    v_xor_b32 v{T+5}, v{T+3}, v{T}
    v_xor_b32 v{T+5}, s{S_T1}, v{T+5}
    v_lshlrev_b32 v{T+6}, 4, v{T+5}
    v_add_u32 v{V_XD0}, v{T+4}, v{T+6}
    v_xor_b32 v{T+6}, 64, v{T+6}
    v_add_u32 v{V_XD1}, v{T+4}, v{T+6}
    """)
    A(f"""
    v_or_b32 v{T+4}, s{S_T1}, v{T}
    v_lshlrev_b32 v{T+4}, 1, v{T+4}
    v_xor_b32 v{T+4}, v{T+4}, v{T+1}
    v_lshlrev_b32 v{T+4}, 4, v{T+4}
    s_lshl_b32 s{S_T0}, s{S_W}, 3
    v_add_u32 v{T+5}, s{S_T0}, v{T}
    v_lshlrev_b32 v{T+6}, 13, v{T+5}
    v_add_u32 v{V_WD}, v{T+4}, v{T+6}
    """)
    for e in range(5): A(f"s_mov_b32 s{S_XO+e}, {e*8192 if e < 4 else 4*9216}")
    for e in range(4): A(f"s_mov_b32 s{S_WO+e}, {(e>>1)*32*8192 + (e&1)*(32768-1024)}")
    for e, (vk, vv) in enumerate([(V_KD0, V_VD0), (V_KD1, V_VD1)]):
        A(f"""
        v_add_u32 v{T+2}, {4*e}, v{T+5}
        v_and_b32 v{T+3}, 15, v{T+2}
        v_xor_b32 v{T+3}, v{T+3}, v{T+1}
        v_lshlrev_b32 v{T+3}, 4, v{T+3}
        v_lshlrev_b32 v{T+4}, 8, v{T+2}
        v_add_u32 v{vk}, v{T+3}, v{T+4}
        v_and_b32 v{T+3}, 7, v{T+2}
        v_lshlrev_b32 v{T+3}, 1, v{T+3}
        v_xor_b32 v{T+3}, v{T+3}, v{T+1}
        v_lshlrev_b32 v{T+3}, 4, v{T+3}
        v_add_u32 v{vv}, v{T+3}, v{T+4}
        """)
        if e:
            A(f"v_subrev_u32 v{vk}, 1024, v{vk}")
            A(f"v_subrev_u32 v{vv}, 1024, v{vv}")

def xdma_ops(u):
    srd = sr(S_X, 4)
    out = []
    for e in range(5):
        m0 = None
        if e == 0: m0 = f"s_add_u32 m0, {sr(S_MX)}, {hex(XB[u])}"
        if e == 4: m0 = f"s_add_u32 m0, {sr(S_MX)}, {hex(XB[u] + 4096)}"
        v = V_XD0 if e % 2 == 0 else V_XD1
        off = f" offset:{e*1024}" if 0 < e < 4 else ""
        out.append((m0, f"buffer_load_dwordx4 {vr(v)}, {srd}, {sr(S_XO+e)} offen{off} lds"))
    return out
def xadv(): return [f"s_add_u32 {sr(S_XO+e)}, {sr(S_XO+e)}, 128" for e in range(5)]
def wdma_ops(u):
    srd = sr(S_WQ, 4)
    out = []
    for e in range(4):
        m0 = f"s_add_u32 m0, {sr(S_M0)}, {hex(WQB[u] + (e>>1)*8192)}" if e % 2 == 0 else None
        off = " offset:1024" if e & 1 else ""
        out.append((m0, f"buffer_load_dwordx4 {vr(V_WD)}, {srd}, {sr(S_WO+e)} offen{off} lds"))
    return out
def wadv(): return [f"s_add_u32 {sr(S_WO+e)}, {sr(S_WO+e)}, 0x80000" for e in range(4)]
def kvdma_ops(kind, tile_n, slot):
    out = []
    for grp in range(2):
        so = (S_KO0 if kind == 'K' else S_VO0) + grp
        m0, dd = dma_ops(kind, slot, grp)
        out.append(([f"s_mov_b32 s{so}, {hex(tile_n*16384 + grp*8192)}", m0], dd[0]))
        out.append(([], dd[1]))
    return out

def emit_plain(A, ops):
    for pre, d in ops:
        if pre:
            for x in (pre if isinstance(pre, list) else [pre]): A(x)
            A("s_nop 0")
        A(d)

def setup_read_addrs(A):
    T = V_X; L_ = V_LANE
    A(f"""
    v_lshrrev_b32 v{T}, 4, v{L_}
    v_and_b32 v{T+1}, 15, v{L_}
    """)
    A(f"""
    s_mul_i32 s{S_T0}, s{S_I}, {80*128}
    s_add_u32 s{S_T0}, s{S_T0}, {hex(XB[0])}
    v_lshrrev_b32 v{T+2}, 1, v{T+1}
    v_xor_b32 v{T+2}, v{T+2}, v{T}
    v_lshlrev_b32 v{T+2}, 4, v{T+2}
    v_lshlrev_b32 v{T+3}, 7, v{T+1}
    v_add_u32 v{T+3}, s{S_T0}, v{T+3}
    v_add_u32 v{V_XR}, v{T+2}, v{T+3}
    v_xor_b32 v{T+2}, 64, v{T+2}
    v_add_u32 v{V_XR+1}, v{T+2}, v{T+3}
    """)
    A(f"""
    v_lshrrev_b32 v{T+2}, 2, v{T+1}
    v_and_b32 v{T+3}, 1, v{T}
    v_lshlrev_b32 v{T+3}, 2, v{T+3}
    v_or_b32 v{T+3}, v{T+3}, v{T+2}
    v_lshlrev_b32 v{T+4}, 3, v{T}
    v_add_u32 v{T+4}, v{T+4}, v{T+2}
    v_lshlrev_b32 v{T+4}, 8, v{T+4}
    v_and_b32 v{T+5}, 3, v{L_}
    v_lshlrev_b32 v{T+5}, 3, v{T+5}
    v_add_u32 v{T+4}, v{T+4}, v{T+5}
    v_add_u32 v{T+4}, {hex(WQB[0])}, v{T+4}
    s_lshl_b32 s{S_T0}, s{S_J}, 2
    v_xor_b32 v{T+3}, s{S_T0}, v{T+3}
    """)
    for d in range(4):
        A(f"""
        v_xor_b32 v{T+5}, {d}, v{T+3}
        v_lshlrev_b32 v{T+5}, 5, v{T+5}
        v_add_u32 v{V_WR+d}, v{T+4}, v{T+5}
        """)
    A(f"""
    s_mul_i32 s{S_T0}, s{S_I}, 20480
    s_lshl_b32 s{S_T1}, s{S_J}, 11
    s_add_u32 s{S_T0}, s{S_T0}, s{S_T1}
    s_add_u32 s{S_T0}, s{S_T0}, {hex(QIMG)}
    v_lshrrev_b32 v{T+2}, 1, v{T}
    v_lshlrev_b32 v{T+2}, 8, v{T+2}
    v_lshlrev_b32 v{T+3}, 4, v{T+1}
    v_add_u32 v{T+2}, v{T+2}, v{T+3}
    v_and_b32 v{T+3}, 1, v{T}
    v_lshlrev_b32 v{T+3}, 3, v{T+3}
    v_add_u32 v{T+2}, v{T+2}, v{T+3}
    v_add_u32 v{V_QW}, s{S_T0}, v{T+2}
    """)
    A(f"s_lshl_b32 s{S_T0}, s{S_J}, 13")
    for s in range(4):
        A(f"""
        v_add_u32 v{T+2}, {4*s}, v{T}
        v_xor_b32 v{T+2}, v{T+2}, v{T+1}
        v_lshlrev_b32 v{T+2}, 4, v{T+2}
        v_lshlrev_b32 v{T+3}, 8, v{T+1}
        v_add_u32 v{T+2}, v{T+2}, v{T+3}
        v_add_u32 v{V_KR+s}, s{S_T0}, v{T+2}
        """)
    A(f"""
    v_lshrrev_b32 v{T+2}, 2, v{T+1}
    v_lshlrev_b32 v{T+3}, 2, v{T}
    v_add_u32 v{T+2}, v{T+2}, v{T+3}
    v_and_b32 v{T+3}, 7, v{T+2}
    v_lshlrev_b32 v{T+2}, 8, v{T+2}
    v_and_b32 v{T+4}, 3, v{L_}
    v_lshlrev_b32 v{T+4}, 3, v{T+4}
    v_add_u32 v{T+2}, v{T+2}, v{T+4}
    s_add_u32 s{S_T0}, s{S_T0}, {hex(LDS_V)}
    v_add_u32 v{T+2}, s{S_T0}, v{T+2}
    s_lshl_b32 s{S_T1}, s{S_J}, 2
    v_xor_b32 v{T+3}, s{S_T1}, v{T+3}
    """)
    for idx in range(8):
        A(f"""
        v_xor_b32 v{T+4}, {idx}, v{T+3}
        v_lshlrev_b32 v{T+4}, 5, v{T+4}
        v_add_u32 v{V_VR+idx}, v{T+2}, v{T+4}
        """)
    A(f"""
    v_and_b32 v{T+2}, 3, v{L_}
    v_cmp_eq_u32 vcc, 0, v{T+2}
    v_mov_b32 v{T+3}, 0x3f803f80
    s_mov_b32 s{S_SC}, {f32hex(SCALE)}
    s_mov_b32 s{S_SC+1}, {f32hex(SCALE)}
    v_cndmask_b32 v{V_ONE}, 0, v{T+3}, vcc
    v_cndmask_b32 v{V_ONE+1}, 0, v{T+3}, vcc
    v_cndmask_b32 v{V_ONE+2}, 0, v{T+3}, vcc
    v_cndmask_b32 v{V_ONE+3}, 0, v{T+3}, vcc
    """)

def zero_state(A, acc=True, nm=True):
    if acc:
        for r in range(V_S, V_S+80, 2): A(f"v_mov_b64 {vr(r,2)}, 0")
    if nm:
        for r in range(V_NM, V_NM+20, 2): A(f"v_mov_b64 {vr(r,2)}, 0")
    for r in range(V_OK, V_OK+80, 2): A(f"v_mov_b64 {vr(r,2)}, 0")
    A("v_accvgpr_write_b32 a0, 0")
    A("s_nop 1")
    for r in range(1, 100): A(f"v_accvgpr_mov_b32 a{r}, a0")

def xread(u, kap, p, t): return f"ds_read_b128 {ar(PB(p,t),4)}, {vr(V_XR+kap)} offset:{u*0x5000 + t*2048}"
def wread(u, kap, p, d, hf):
    return f"ds_read_b64_tr_b16 {vr(PA(p,d)+2*hf,2)}, {vr(V_WR+d)} offset:{(WQB[u]-WQB[0]) + kap*8192 + hf*1024}"
def p1_reads(u, kap, p):
    g = [[xread(u, kap, p, 0)], [wread(u, kap, p, 0, 0), wread(u, kap, p, 0, 1)]]
    g += [[xread(u, kap, p, t)] for t in range(1, 5)]
    g += [[wread(u, kap, p, d, 0), wread(u, kap, p, d, 1)] for d in range(1, 4)]
    return g
def p1_mfma(p, g):
    d = g // 5; t = g % 5
    a = vr(ACC(t, d), 4)
    return mfma(a, vr(PA(p, d), 4), ar(PB(p, t), 4), a)

def p1_half(A, p, reads, dmas, advs):
    sc = [[] for _ in range(20)]; ve = [[] for _ in range(20)]
    for k, grp in enumerate(reads): ve[k] = list(grp)
    g = 10
    pend = []
    slots = list(range(20))
    dg = []
    n = len(dmas)
    gaps = [10, 12, 14, 16, 18][:n] if n <= 5 else None
    assert gaps is not None
    used = set()
    for (pre, d), gg in zip(dmas, gaps):
        pre = [] if pre is None else (pre if isinstance(pre, list) else [pre])
        assert len(pre) <= 2
        for k, x in enumerate(pre):
            sc[gg - len(pre) + k].append(x)
        ve[gg].append(d)
    k = 0
    for gg in range(0, 8):
        if k < len(advs) and not sc[gg]:
            sc[gg].append(advs[k]); k += 1
    assert k == len(advs)
    mf = [p1_mfma(p, g) for g in range(20)]
    emit_gaps(A, mf, sc, ve)

def p1_chunk(A, u, first_dmas, first_advs, vm_mid, second_dmas, second_advs, last=False):
    p1_half(A, 0, p1_reads(u, 1, 1), first_dmas, first_advs)
    A(f"s_waitcnt vmcnt({vm_mid}) lgkmcnt(0)" if vm_mid is not None else "s_waitcnt lgkmcnt(0)")
    A("s_barrier")
    p1_half(A, 1, [] if last else p1_reads((u+1) % 3, 0, 0), second_dmas, second_advs)
    if not last: A("s_waitcnt lgkmcnt(0)")

def p1(A):
    A("s_waitcnt vmcnt(18)")
    A("s_barrier")
    for grp in p1_reads(0, 0, 0):
        for x in grp: A(x)
    A(f"s_mov_b32 s{S_CNT}, 2")
    A("s_waitcnt lgkmcnt(0)")
    A(".p2align 5")
    A.label("L_p1")
    i0 = len(A.lines)
    for u in range(3):
        p1_chunk(A, u, wdma_ops((u+2) % 3), xadv(), 9, xdma_ops(u), wadv())
    A(f"s_sub_u32 s{S_CNT}, s{S_CNT}, 1")
    A(f"s_cmp_lg_u32 s{S_CNT}, 0")
    A("s_cbranch_scc1 L_p1")
    i1 = len(A.lines)
    for p in check_hazards(A.lines[i0:i1]*2, "p1loop"): print("HAZARD", p)
    p1_chunk(A, 0, wdma_ops(2), [], 9, kvdma_ops('K', 1, 1), [])
    p1_chunk(A, 1, kvdma_ops('V', 0, 0), [], 8, kvdma_ops('K', 2, 2), [])
    p1_chunk(A, 2, kvdma_ops('K', 3, 3), [], None, kvdma_ops('V', 1, 1), [], last=True)

def q_exchange(A):
    A("s_nop 7")
    for d in range(4):
        for t in range(5):
            a = ACC(t, d)
            A(f"v_pk_mul_f32 {vr(a,2)}, {vr(a,2)}, {sr(S_SC,2)}")
            A(f"v_pk_mul_f32 {vr(a+2,2)}, {vr(a+2,2)}, {sr(S_SC,2)}")
            A(f"v_cvt_pk_bf16_f32 {vr(a)}, {vr(a)}, {vr(a+1)}")
            A(f"v_cvt_pk_bf16_f32 {vr(a+1)}, {vr(a+2)}, {vr(a+3)}")
            A(f"ds_write_b64 {vr(V_QW)}, {vr(a,2)} offset:{t*4096 + (d>>1)*1024 + (d&1)*512}")
    A(f"""
    s_mul_i32 s{S_T0}, s{S_I}, 20480
    s_add_u32 s{S_T0}, s{S_T0}, {hex(QIMG)}
    v_lshlrev_b32 v{V_T}, 4, v{V_LANE}
    v_add_u32 v{V_T}, s{S_T0}, v{V_T}
    s_waitcnt vmcnt(16) lgkmcnt(0)
    s_barrier
    """)
    for t in range(5):
        for s in range(4):
            A(f"ds_read_b128 {ar(QF(t,s),4)}, v{V_T} offset:{(t*4+s)*1024}")

def qk0(A):
    for a in range(2):
        for s in range(4): A(kread(0, a, s))
    A("s_waitcnt lgkmcnt(0)")
    sc = [[] for _ in range(40)]; ve = [[] for _ in range(40)]
    k = 0
    for g in range(24, 40):
        t, r = k // 4, k % 4
        ve[g].append(exp_op(0, t, 0, r)); k += 1
    emit_gaps(A, [qk_mfma(0, g) for g in range(40)], sc, ve)
    for a in range(2):
        for s in range(4): A(kread(1, a, s))
    for r in range(4): A(exp_op(0, 4, 0, r))
    for t in range(5):
        A(cvt_op(0, t, 0, 0)); A(cvt_op(0, t, 0, 1))
    A("s_waitcnt lgkmcnt(0)\ns_barrier")
    emit_plain(A, kvdma_ops('K', 4, 0)); emit_plain(A, kvdma_ops('V', 2, 2))
    A(f"""
    s_mov_b32 s{S_KO0}, {hex(5*16384)}
    s_mov_b32 s{S_KO1}, {hex(5*16384+8192)}
    s_mov_b32 s{S_VO0}, {hex(3*16384)}
    s_mov_b32 s{S_VO1}, {hex(3*16384+8192)}
    s_mov_b32 s{S_CNT}, 8
    """)

def epilogue(A):
    T = V_X
    XL = LDS_SP
    XF = LDS_SP + 5120
    R = V_S
    A("s_nop 7")
    for t in range(5): A(f"v_accvgpr_read_b32 v{V_KF+t}, a{L(t)}")
    A(f"""
    s_mov_b32 s{S_T0}, {f32hex(T_HI)}
    s_mov_b32 s{S_T1}, {f32hex(T_LO)}
    v_max3_f32 v{T}, v{V_KF}, v{V_KF+1}, v{V_KF+2}
    v_max3_f32 v{T}, v{T}, v{V_KF+3}, v{V_KF+4}
    v_min3_f32 v{T+1}, v{V_KF}, v{V_KF+1}, v{V_KF+2}
    v_min3_f32 v{T+1}, v{T+1}, v{V_KF+3}, v{V_KF+4}
    v_add_f32 v{T+2}, v{V_KF}, v{V_KF+1}
    v_add_f32 v{T+3}, v{V_KF+2}, v{V_KF+3}
    v_add_f32 v{T+2}, v{T+2}, v{V_KF+4}
    v_add_f32 v{T+2}, v{T+2}, v{T+3}
    v_cmp_nge_f32 vcc, s{S_T0}, v{T}
    v_cmp_nle_f32 s[{S_ST+14}:{S_ST+15}], s{S_T1}, v{T+1}
    v_cmp_u_f32 s[{S_ST+12}:{S_ST+13}], v{T+2}, v{T+2}
    s_or_b64 vcc, vcc, s[{S_ST+14}:{S_ST+15}]
    s_or_b64 vcc, vcc, s[{S_ST+12}:{S_ST+13}]
    s_cmp_lg_u64 vcc, 0
    s_cselect_b32 s{S_T0}, 1, 0
    v_mov_b32 v{T+3}, s{S_T0}
    """)
    A(f"""
    v_lshlrev_b32 v{V_T}, 2, v{V_LANE}
    s_mul_i32 s{S_T0}, s{S_W}, 1280
    s_add_u32 s{S_T0}, s{S_T0}, {hex(XL)}
    v_add_u32 v{V_T+1}, s{S_T0}, v{V_T}
    s_xor_b32 s{S_T1}, s{S_W}, 1
    s_mul_i32 s{S_T1}, s{S_T1}, 1280
    s_add_u32 s{S_T1}, s{S_T1}, {hex(XL)}
    v_add_u32 v{V_T+2}, s{S_T1}, v{V_T}
    s_lshl_b32 s{S_T0}, s{S_W}, 2
    s_add_u32 s{S_T0}, s{S_T0}, {hex(XF)}
    v_mov_b32 v{T+4}, s{S_T0}
    v_mov_b32 v{T+5}, {hex(XF)}
    v_lshlrev_b32 v{V_T}, 4, v{V_LANE}
    s_mul_i32 s{S_T0}, s{S_W}, 20480
    v_add_u32 v{T+6}, s{S_T0}, v{V_T}
    s_xor_b32 s{S_T1}, s{S_W}, 1
    s_mul_i32 s{S_T1}, s{S_T1}, 20480
    v_add_u32 v{T+7}, s{S_T1}, v{V_T}
    s_waitcnt vmcnt(0) lgkmcnt(0)
    s_barrier
    """)
    for t in range(5): A(f"ds_write_b32 v{V_T+1}, v{V_KF+t} offset:{t*256}")
    A(f"ds_write_b32 v{T+4}, v{T+3}")
    for t in range(5):
        for q in range(4):
            A(f"ds_write_b128 v{T+6}, {O(t, 4+q)} offset:{(t*4+q)*1024}")
    A("s_waitcnt lgkmcnt(0)\ns_barrier")
    A(f"ds_read_b128 {vr(V_KF+8,4)}, v{T+5}")
    for t in range(5): A(f"ds_read_b32 v{V_KF+16+2*t}, v{V_T+2} offset:{t*256}")
    for t in range(5):
        for q in range(4):
            A(f"ds_read_b128 {vr(R+(t*4+q)*4,4)}, v{T+7} offset:{(t*4+q)*1024}")
    A(f"""
    s_mul_i32 s{S_T0}, s{S_B}, 10
    s_mul_i32 s{S_T1}, s{S_I}, 5
    s_add_u32 s{S_T0}, s{S_T0}, s{S_T1}
    s_lshl_b32 s{S_T0}, s{S_T0}, 5
    s_add_u32 s{S_T0}, s{S_T0}, s{S_H}
    s_lshl_b32 s{S_T0}, s{S_T0}, 1
    s_add_u32 s{S_T0}, s{S_T0}, s{S_J}
    s_lshl_b32 s{S_T0}, s{S_T0}, 11
    s_waitcnt lgkmcnt(14)
    v_or3_b32 v{T}, v{V_KF+8}, v{V_KF+9}, v{V_KF+10}
    v_or_b32 v{T}, v{T}, v{V_KF+11}
    s_nop 0
    v_readfirstlane_b32 s{S_T1}, v{T}
    s_nop 0
    s_andn2_b32 s{S_T1}, s{S_T1}, s{S_FB}
    s_cmp_lg_u32 s{S_T1}, 0
    s_cbranch_scc1 L_fallback
    """)
    for t in range(5):
        A(f"v_add_f32 v{V_KF+16+2*t}, v{V_KF+16+2*t}, v{V_KF+t}")
    for t in range(5):
        A(f"v_rcp_f32 v{V_KF+16+2*t}, v{V_KF+16+2*t}")
    for t in range(5):
        A(f"s_waitcnt lgkmcnt({min(14, 16-4*t)})" if t < 4 else "s_waitcnt lgkmcnt(0)")
        inv = V_KF + 16 + 2*t
        for mm in range(2):
            for e in range(2):
                q = 2*mm + e
                o = V_OK + t*16 + q*4; r = R + (t*4+q)*4
                A(f"v_pk_add_f32 {vr(o,2)}, {vr(o,2)}, {vr(r,2)}")
                A(f"v_pk_add_f32 {vr(o+2,2)}, {vr(o+2,2)}, {vr(r+2,2)}")
                A(f"v_pk_mul_f32 {vr(o,2)}, {vr(o,2)}, {vr(inv,2)} op_sel_hi:[1,0]")
                A(f"v_pk_mul_f32 {vr(o+2,2)}, {vr(o+2,2)}, {vr(inv,2)} op_sel_hi:[1,0]")
            o = V_OK + t*16 + mm*8
            A(f"v_cvt_pk_bf16_f32 v{o}, v{o}, v{o+1}")
            A(f"v_cvt_pk_bf16_f32 v{o+1}, v{o+2}, v{o+3}")
            A(f"v_cvt_pk_bf16_f32 v{o+2}, v{o+4}, v{o+5}")
            A(f"v_cvt_pk_bf16_f32 v{o+3}, v{o+6}, v{o+7}")
            A(f"s_add_u32 s{S_T1}, s{S_T0}, {t*32*4*1024 + mm*1024}")
            A(f"buffer_store_dwordx4 {vr(o,4)}, v{V_T}, {sr(S_WS,4)}, s{S_T1} offen")

def fallback(A):
    T = V_X; M = V_T
    A.label("L_fallback")
    A("s_waitcnt vmcnt(0) lgkmcnt(0)\ns_barrier")
    for t in range(5):
        A(f"v_mov_b32 v{V_X+t}, 0xff800000")
    for r in range(V_NM, V_NM+20, 2): A(f"v_mov_b64 {vr(r,2)}, 0")
    A(f"s_mov_b32 s{S_K+2}, {hex(HEAD_BYTES)}\ns_mov_b32 s{S_V+2}, {hex(HEAD_BYTES)}")
    A(f"s_mov_b32 s{S_KO0}, 0\ns_mov_b32 s{S_KO1}, 0x2000")
    A.label("L_fb_loop")
    for grp in range(2):
        m0, dd = dma_ops('K', 0, grp)
        A(m0); A("s_nop 0"); A(dd[0]); A(dd[1])
    A("s_waitcnt vmcnt(0)\ns_barrier")
    for a in range(2):
        for s in range(4): A(kread(0, a, s))
    A("s_waitcnt lgkmcnt(0)\ns_barrier")
    for g in range(40): A(qk_mfma(0, g))
    A("s_nop 7")
    for t in range(5):
        s = [S(0, t, a, r) for a in range(2) for r in range(4)]
        for k in range(0, 8, 2):
            A(f"v_max3_f32 v{V_X+t}, v{s[k]}, v{s[k+1]}, v{V_X+t}")
    A(f"""
    s_add_u32 s{S_KO0}, s{S_KO0}, 0x4000
    s_add_u32 s{S_KO1}, s{S_KO1}, 0x4000
    s_cmp_lt_u32 s{S_KO0}, {hex(HEAD_BYTES)}
    s_cbranch_scc1 L_fb_loop
    """)
    for t in range(5):
        x = V_X + t; y = V_X + 5
        A(f"""
        v_mov_b32 v{y}, v{x}
        s_nop 1
        v_permlane32_swap_b32 v{x}, v{y}
        v_max_f32 v{x}, v{x}, v{y}
        v_mov_b32 v{y}, v{x}
        s_nop 1
        v_permlane16_swap_b32 v{x}, v{y}
        v_max_f32 v{x}, v{x}, v{y}
        """)
    A(f"""
    v_lshlrev_b32 v{V_T}, 2, v{V_LANE}
    s_mul_i32 s{S_T0}, s{S_W}, 1280
    s_add_u32 s{S_T0}, s{S_T0}, {hex(LDS_SP)}
    v_add_u32 v{V_T+1}, s{S_T0}, v{V_T}
    s_xor_b32 s{S_T1}, s{S_W}, 1
    s_mul_i32 s{S_T1}, s{S_T1}, 1280
    s_add_u32 s{S_T1}, s{S_T1}, {hex(LDS_SP)}
    v_add_u32 v{V_T+2}, s{S_T1}, v{V_T}
    """)
    for t in range(5): A(f"ds_write_b32 v{V_T+1}, v{V_X+t} offset:{t*256}")
    A("s_waitcnt lgkmcnt(0)\ns_barrier")
    for t in range(5): A(f"ds_read_b32 v{V_S+t}, v{V_T+2} offset:{t*256}")
    A("s_waitcnt lgkmcnt(0)")
    for t in range(5):
        A(f"v_max_f32 v{V_X+t}, v{V_X+t}, v{V_S+t}")
        for r in range(4): A(f"v_sub_f32 v{NM(t)+r}, 0, v{V_X+t}")
    zero_state(A, acc=False, nm=False)
    emit_plain(A, kvdma_ops('K', 0, 0)); emit_plain(A, kvdma_ops('K', 1, 1)); emit_plain(A, kvdma_ops('V', 0, 0))
    emit_plain(A, kvdma_ops('K', 2, 2)); emit_plain(A, kvdma_ops('K', 3, 3)); emit_plain(A, kvdma_ops('V', 1, 1))
    A(f"s_mov_b32 s{S_FB}, 1")
    A("s_waitcnt vmcnt(0)\ns_barrier\ns_branch L_qk0")

def stamp(A, k):
    A(f"s_memtime s[{S_ST+2*k}:{S_ST+2*k+1}]")

def kernel_a(A, stamps=False):
    A(f""".text
    .globl {KA}
    .p2align 8
    .type {KA},@function""")
    A.label(KA)
    setup_ids(A, "L_a_end")
    if stamps:
        stamp(A, 0); A(f"s_memrealtime s[80:81]")
    setup_dma_addrs(A)
    def adv(ops):
        for x in ops: A(x)
    emit_plain(A, xdma_ops(0)); adv(xadv())
    emit_plain(A, wdma_ops(0)); adv(wadv())
    emit_plain(A, kvdma_ops('K', 0, 0))
    emit_plain(A, xdma_ops(1)); adv(xadv())
    emit_plain(A, wdma_ops(1)); adv(wadv())
    emit_plain(A, xdma_ops(2))
    A(f"s_mov_b32 s{S_FB}, 0")
    setup_read_addrs(A)
    zero_state(A)
    if stamps: stamp(A, 1)
    p1(A)
    if stamps: stamp(A, 2)
    q_exchange(A)
    A.label("L_qk0")
    qk0(A)
    if stamps: stamp(A, 3)
    A(".p2align 6")
    A.label("L_loop")
    i0 = len(A.lines)
    for u in range(4):
        step(A, (1 + u) & 3, last_in_loop=(u == 3), loop_label="L_loop")
    i1 = len(A.lines)
    for p in check_hazards(A.lines[i0:i1]*2, "loop"): print("HAZARD", p)
    if stamps: stamp(A, 4); A("s_memrealtime s[82:83]")
    epilogue(A)
    if stamps:
        A(f"""
        s_memtime s[{S_ST+10}:{S_ST+11}]
        s_waitcnt lgkmcnt(0)
        s_sub_u32 s{S_ST+2}, s{S_ST+2}, s{S_ST}
        s_sub_u32 s{S_ST+4}, s{S_ST+4}, s{S_ST}
        s_sub_u32 s{S_ST+6}, s{S_ST+6}, s{S_ST}
        s_sub_u32 s{S_ST+8}, s{S_ST+8}, s{S_ST}
        s_sub_u32 s{S_ST+10}, s{S_ST+10}, s{S_ST}
        s_sub_u32 s82, s82, s80
        v_mov_b32 v32, s{S_ST+2}
        v_mov_b32 v33, s{S_ST+4}
        v_mov_b32 v34, s{S_ST+6}
        v_mov_b32 v35, s{S_ST+8}
        v_mov_b32 v36, s{S_ST+10}
        v_mov_b32 v37, s82
        v_mov_b32 v38, s80
        v_mov_b32 v39, s{S_FB}
        s_lshl_b32 s{S_T0}, s2, 2
        s_add_u32 s{S_T0}, s{S_T0}, s{S_W}
        s_lshl_b32 s{S_T0}, s{S_T0}, 5
        s_add_u32 s{S_T0}, s{S_T0}, 0x4000000
        v_mov_b32 v40, s{S_T0}
        s_mov_b64 exec, 1
        buffer_store_dwordx4 v[32:35], v40, {sr(S_WS,4)}, 0 offen
        buffer_store_dwordx4 v[36:39], v40, {sr(S_WS,4)}, 0 offen offset:16
        """)
        if stamps == 2:
            A(f"""
            s_load_dwordx2 s[84:85], s[0:1], 48
            s_waitcnt lgkmcnt(0)
            s_mov_b32 s86, 256
            s_mov_b32 s87, 0x20000
            s_lshl_b32 s{S_T0}, s2, 2
            s_add_u32 s{S_T0}, s{S_T0}, s{S_W}
            s_lshl_b32 s{S_T0}, s{S_T0}, 5
            v_mov_b32 v40, s{S_T0}
            buffer_store_dwordx4 v[32:35], v40, s[84:87], 0 offen
            buffer_store_dwordx4 v[36:39], v40, s[84:87], 0 offen offset:16
            """)
    A.label("L_a_end")
    A("s_endpgm")
    fallback(A)

B_DEPTH = 8
def kernel_b(A, stamps=False):
    V_L = 1
    V_OA = 2
    V_WD_ = 6
    V_WR_ = 9
    V_TT = 10
    V_ACC = 20
    V_AF = 68
    V_BF = 92
    S_O = 12; S_WOS = 16; S_OUT = 20
    S_W_, S_RT, S_CT, S_MB = 24, 25, 26, 27
    S_KO, S_WK, S_C = 28, 29, 30
    def ACCB(tl, nt): return V_ACC + (tl*3 + nt)*4
    def AF(p, nt): return V_AF + p*12 + nt*4
    def BF(sl, tl): return V_BF + sl*16 + tl*4
    A(f""".text
    .globl {KB}
    .p2align 8
    .type {KB},@function""")
    A.label(KB)
    T = V_TT
    A(f"""
    s_load_dwordx4 s[4:7], s[0:1], 32
    s_load_dwordx2 s[8:9], s[0:1], 56
    s_cmp_ge_u32 s2, 240
    s_cbranch_scc1 L_b_end
    {"s_memrealtime s[60:61]" if stamps else ""}
    {"s_memtime s[62:63]" if stamps else ""}
    v_lshrrev_b32 v{T}, 6, v0
    v_and_b32 v{V_L}, 63, v0
    v_readfirstlane_b32 s{S_W_}, v{T}
    s_and_b32 s3, s2, 7
    s_lshr_b32 s10, s2, 3
    s_mul_i32 s11, s10, 43
    s_lshr_b32 s11, s11, 8
    s_lshr_b32 s35, s3, 1
    s_mul_i32 s35, s35, 5
    s_add_u32 s{S_RT}, s35, s11
    s_mul_i32 s11, s11, 6
    s_sub_u32 s10, s10, s11
    s_and_b32 s35, s3, 1
    s_mul_i32 s35, s35, 6
    s_add_u32 s{S_CT}, s35, s10
    s_lshl_b32 s35, s{S_RT}, 19
    s_mul_i32 s36, s{S_CT}, 96
    s_mul_i32 s37, s{S_RT}, {64*1152}
    s_add_u32 s37, s37, s36
    s_waitcnt lgkmcnt(0)
    s_add_u32 s{S_O}, s8, s35
    s_addc_u32 s{S_O+1}, s9, 0
    s_mov_b32 s{S_O+2}, 0x80000
    s_mov_b32 s{S_O+3}, 0x20000
    s_add_u32 s{S_WOS}, s4, s36
    s_addc_u32 s{S_WOS+1}, s5, 0
    s_sub_u32 s{S_WOS+2}, {4096*1152}, s36
    s_mov_b32 s{S_WOS+3}, 0x20000
    s_add_u32 s{S_OUT}, s6, s37
    s_addc_u32 s{S_OUT+1}, s7, 0
    s_sub_u32 s{S_OUT+2}, {1280*1152}, s37
    s_mov_b32 s{S_OUT+3}, 0x20000
    s_lshl_b32 s35, s{S_W_}, 15
    v_lshlrev_b32 v{T}, 4, v{V_L}
    v_add_u32 v{V_OA}, s35, v{T}
    v_add_u32 v{V_OA+1}, 0x20000, v{V_OA}
    v_add_u32 v{V_OA+2}, 0x40000, v{V_OA}
    v_add_u32 v{V_OA+3}, 0x60000, v{V_OA}
    """)
    for e in range(3):
        A(f"""
        v_add_u32 v{T}, {64*e}, v{V_L}
        v_mul_u32_u24 v{T+1}, 171, v{T}
        v_lshrrev_b32 v{T+1}, 10, v{T+1}
        v_mul_u32_u24 v{T+2}, 6, v{T+1}
        v_sub_u32 v{T+2}, v{T}, v{T+2}
        v_mul_u32_u24 v{T+1}, 1152, v{T+1}
        v_lshlrev_b32 v{T+2}, 4, v{T+2}
        v_add_u32 v{V_WD_+e}, v{T+1}, v{T+2}
        """)
        if e: A(f"v_subrev_u32 v{V_WD_+e}, {e*1024}, v{V_WD_+e}")
    A(f"""
    s_mul_i32 s{S_MB}, s{S_W_}, {B_DEPTH*3072}
    s_mul_i32 s{S_WK}, s{S_W_}, {32*32*1152}
    s_mov_b32 s{S_KO}, 0
    """)
    def issue(sl, koff):
        ops = []
        for tl in range(4):
            off = f" offset:{koff*1024}" if koff else ""
            ops.append(f"buffer_load_dwordx4 {vr(BF(sl,tl),4)}, v{V_OA+tl}, {sr(S_O,4)}, s{S_KO} offen{off}")
        ops.append(f"s_add_u32 m0, s{S_MB}, {sl*3072}")
        ops.append("s_nop 0")
        for e in range(3):
            off = f" offset:{e*1024}" if e else ""
            ops.append(f"buffer_load_dwordx4 v{V_WD_+e}, {sr(S_WOS,4)}, s{S_WK} offen{off} lds")
        ops.append(f"s_add_u32 s{S_WK}, s{S_WK}, {32*1152}")
        if koff == 3: ops.append(f"s_add_u32 s{S_KO}, s{S_KO}, 4096")
        return ops
    for sl in range(B_DEPTH):
        for x in issue(sl, sl & 3): A(x)
    A(f"""
    v_lshrrev_b32 v{T}, 2, v{V_L}
    v_mul_u32_u24 v{T}, 96, v{T}
    v_and_b32 v{T+1}, 3, v{V_L}
    v_lshlrev_b32 v{T+1}, 3, v{T+1}
    v_add_u32 v{T}, v{T}, v{T+1}
    v_add_u32 v{V_WR_}, s{S_MB}, v{T}
    """)
    for r in range(V_ACC, V_ACC+48, 2): A(f"v_mov_b64 {vr(r,2)}, 0")
    def areads(sl, p):
        return [f"ds_read_b64_tr_b16 {vr(AF(p,nt)+2*hf,2)}, v{V_WR_} offset:{sl*3072 + hf*1536 + nt*32}"
                for nt in range(3) for hf in range(2)]
    A(f"s_waitcnt vmcnt({7*(B_DEPTH-1)})")
    if stamps: A("s_memtime s[70:71]\ns_waitcnt lgkmcnt(0)")
    for x in areads(0, 0): A(x)
    A(f"s_mov_b32 s{S_C}, {32//B_DEPTH}")
    A.label("L_b_loop")
    i0 = len(A.lines)
    A(f"s_cmp_eq_u32 s{S_C}, 1\ns_cselect_b32 s{S_O+2}, 0, s{S_O+2}\ns_cselect_b32 s{S_WOS+2}, 0, s{S_WOS+2}")
    for sl in range(B_DEPTH):
        p = sl & 1
        A(f"s_waitcnt vmcnt({7*(B_DEPTH-2)}) lgkmcnt(0)")
        for x in areads((sl+1) % B_DEPTH, 1-p): A(x)
        for nt in range(3):
            for tl in range(4):
                a = vr(ACCB(tl, nt), 4)
                A(mfma(a, vr(AF(p, nt), 4), vr(BF(sl, tl), 4), a))
        for x in issue(sl, sl & 3): A(x)
    A(f"s_sub_u32 s{S_C}, s{S_C}, 1\ns_cmp_lg_u32 s{S_C}, 0\ns_cbranch_scc1 L_b_loop")
    i1 = len(A.lines)
    for p in check_hazards(A.lines[i0:i1]*2, "bloop"): print("HAZARD", p)
    if stamps: A("s_memtime s[72:73]")
    RB = 0
    A(f"""
    s_waitcnt vmcnt(0) lgkmcnt(0)
    v_lshlrev_b32 v{T}, 4, v{V_L}
    v_add_u32 v{T+1}, s{S_MB}, v{T}
    s_nop 7
    """)
    for tl in range(4):
        for nt in range(3):
            A(f"ds_write_b128 v{T+1}, {vr(ACCB(tl,nt),4)} offset:{(tl*3+nt)*1024}")
    A(f"""
    s_mul_i32 s35, s{S_W_}, 3072
    v_add_u32 v{T+2}, s35, v{T}
    v_add_u32 v{T+3}, 0x10000, v{T+2}
    s_waitcnt lgkmcnt(0)
    s_barrier
    """)
    R = V_BF
    for w in range(4):
        for nt in range(3):
            off = w*B_DEPTH*3072 + nt*1024
            if off > 65535 - 3072:
                pass
            A(f"ds_read_b128 {vr(R+(w*3+nt)*4,4)}, v{T+2 if off < 65536 else T+3} offset:{off if off < 65536 else off-65536}"
              if True else "")
    return ACCB, R, T, V_L, S_OUT, S_W_, stamps

def kernel_b_tail(A, ACCB, R, T, V_L, S_OUT, S_W_, stamps):
    A(f"""
    v_and_b32 v{T+4}, 15, v{V_L}
    s_lshl_b32 s35, s{S_W_}, 4
    v_add_u32 v{T+4}, s35, v{T+4}
    v_mul_u32_u24 v{T+4}, 1152, v{T+4}
    v_lshrrev_b32 v{T+5}, 4, v{V_L}
    v_lshlrev_b32 v{T+5}, 3, v{T+5}
    v_add_u32 v{T+4}, v{T+4}, v{T+5}
    s_waitcnt lgkmcnt(0)
    """)
    for nt in range(3):
        a = R + nt*4
        for w in range(1, 4):
            b = R + (w*3+nt)*4
            A(f"v_pk_add_f32 {vr(a,2)}, {vr(a,2)}, {vr(b,2)}")
            A(f"v_pk_add_f32 {vr(a+2,2)}, {vr(a+2,2)}, {vr(b+2,2)}")
        A(f"v_cvt_pk_bf16_f32 v{a}, v{a}, v{a+1}")
        A(f"v_cvt_pk_bf16_f32 v{a+1}, v{a+2}, v{a+3}")
        A(f"buffer_store_dwordx2 {vr(a,2)}, v{T+4}, {sr(S_OUT,4)}, 0 offen offset:{nt*32}")
    if stamps:
        A(f"""
        s_waitcnt vmcnt(0)
        s_memrealtime s[64:65]
        s_memtime s[66:67]
        s_load_dwordx2 s[84:85], s[0:1], 48
        s_load_dwordx2 s[88:89], s[0:1], 56
        s_waitcnt lgkmcnt(0)
        s_mov_b32 s86, 256
        s_mov_b32 s87, 0x20000
        s_mov_b32 s90, 0x10000000
        s_mov_b32 s91, 0x20000
        s_sub_u32 s66, s66, s62
        s_sub_u32 s68, s70, s62
        s_sub_u32 s69, s72, s62
        v_mov_b32 v32, s60
        v_mov_b32 v33, s64
        v_mov_b32 v34, s66
        v_mov_b32 v35, s68
        v_mov_b32 v36, s69
        v_mov_b32 v37, s2
        v_mov_b32 v38, 0
        v_mov_b32 v39, 0
        s_lshl_b32 s35, s2, 2
        s_add_u32 s35, s35, s{S_W_}
        s_lshl_b32 s35, s35, 5
        s_add_u32 s36, s35, 0x4010000
        v_mov_b32 v40, s36
        s_mov_b64 exec, 1
        buffer_store_dwordx4 v[32:35], v40, s[88:91], 0 offen
        buffer_store_dwordx4 v[36:39], v40, s[88:91], 0 offen offset:16
        """)
        if stamps == 2:
            A(f"""
            v_mov_b32 v41, 0x4000000
            buffer_load_dwordx4 v[44:47], v41, s[88:91], 0 offen
            buffer_load_dwordx4 v[48:51], v41, s[88:91], 0 offen offset:16
            s_lshl_b32 s35, s35, 1
            v_mov_b32 v40, s35
            s_waitcnt vmcnt(0)
            buffer_store_dwordx4 v[44:47], v40, s[84:87], 0 offen
            buffer_store_dwordx4 v[48:51], v40, s[84:87], 0 offen offset:16
            buffer_store_dwordx4 v[32:35], v40, s[84:87], 0 offen offset:32
            buffer_store_dwordx4 v[36:39], v40, s[84:87], 0 offen offset:48
            """)
    A.label("L_b_end")
    A("s_endpgm")

def descriptor(name, vgpr, accum, sgpr=102):
    return f""".amdhsa_kernel {name}
    .amdhsa_next_free_vgpr {vgpr}
    .amdhsa_next_free_sgpr {sgpr}
    .amdhsa_accum_offset {accum}
    .amdhsa_group_segment_fixed_size 0
    .amdhsa_kernarg_size 64
    .amdhsa_user_sgpr_count 2
    .amdhsa_user_sgpr_kernarg_segment_ptr 1
    .amdhsa_system_sgpr_workgroup_id_x 1
    .end_amdhsa_kernel"""

HEADER = """; Kernarg layout for this problem (64 bytes, ptrs only, base s[0:1]):
; @launch kernel=%s grid=(256,1,1) block=(256,1,1) lds=%d
; @launch kernel=%s grid=(240,1,1) block=(256,1,1) lds=%d
"""

def gen(stamps=False):
    A = Asm()
    kernel_a(A, stamps)
    r = kernel_b(A, stamps)
    kernel_b_tail(A, *r)
    A('.section .rodata,"a"\n.p2align 6')
    A(descriptor(KA, 512, 256))
    A(".p2align 6")
    A(descriptor(KB, 224, 224))
    for p in check_hazards(A.lines, "all"): print("HAZARD", p)
    hdr = HEADER % (KA, LDS_A, KB, 4*B_DEPTH*3072)
    return hdr + '.amdgcn_target "amdgcn-amd-amdhsa--gfx950"\n' + A.text()

if __name__ == "__main__":
    import sys
    from hiprt import add_meta
    mode = sys.argv[1] if len(sys.argv) > 1 else ""
    stamps = {"": 0, "stamps": 1, "dbg": 2}[mode]
    txt = gen(stamps)
    if stamps == 1:
        open("full_st.s", "w").write(add_meta(txt, [(KA, 512, 256), (KB, 224, 256)]))
    elif stamps == 2:
        open("full_dbg.s", "w").write(txt)
    else:
        open("full.s", "w").write(txt)
    print("written")
```

```python
from asmlib import *
import struct, math

KA = "standalone__gqa_block_cached__near_ridge_kernel"
KB = "gqa_oproj_kernel"

V_KD0, V_KD1, V_VD0, V_VD1 = 1, 2, 3, 4
V_KR = 5
V_VR = 9
V_LANE = 17
V_XD0, V_XD1 = 18, 19
V_WD = 20
V_XR = 21
V_WR = 23
V_QW = 27
V_T = 28
V_S = 32
V_NM = 112
V_OK = 132
V_KF = 212
V_ONE = 244
V_X = 248
A_OS = 0
A_L = 80
A_VF = 100
A_Q = 132

def S(sig, t, a, r=0): return V_S + sig*40 + t*8 + a*4 + r
def NM(t): return V_NM + 4*t
def QF(t, s): return A_Q + (t*4 + s)*4
def KF(a, s): return V_KF + (a*4 + s)*4
def VF(db): return A_VF + db*4
def O(t, idx):
    return vr(V_OK + t*16 + idx*4, 4) if idx < 4 else ar(A_OS + t*16 + (idx-4)*4, 4)
def L(t): return A_L + 4*t
def ACC(t, d): return V_S + (t*4 + d)*4
def PA(p, d): return V_KF + p*16 + d*4
def PB(p, t): return A_Q + p*20 + t*4

S_K = 12; S_V = 16; S_WS = 20
S_W, S_I, S_J, S_M0 = 24, 25, 26, 27
S_KO0, S_KO1, S_VO0, S_VO1 = 28, 29, 30, 31
S_CNT = 32
S_B, S_H = 33, 34
S_T0, S_T1 = 35, 36
S_X = 40
S_WQ = 44
S_XO = 48
S_WO = 53
S_MX = 57
S_FB = 58
S_SC = 60
S_ST = 64
S_SLOT, S_XCD = 37, 38
S_CO = 39
S_MSK = 62
S_DBG = 84
S_OUT = 88
S_WOR = 92
S_MSK2 = 94
S_WFS = 96
S_OO, S_OW, S_OW2, S_PA0, S_PA1, S_CONS = 4, 5, 6, 7, 8, 9
S_OB = 59
V_POLL = 31
V_WA = 28
V_WB = 29
V_L16 = 30
WOF = 0x1000000
RAW0, RAW1 = 0x4000, 0x10000
RAWB = 0x2400

LDS_K = 0; LDS_V = 0x10000; LDS_SP = 0x20000
HEAD_BYTES = 2048*128*2
WQB = [0x8000, 0xC000, 0x14000]
XB = [0x18000, 0x1D000, 0x22000]
QIMG = 0x1E000
LDS_A = 163840

def f32hex(x): return hex(struct.unpack("<I", struct.pack("<f", x))[0])
SCALE = math.log2(math.e) / math.sqrt(128.0)
T_HI = 2.0**64
T_LO = 2.0**-40

def mfma(d, a, b, c): return f"v_mfma_f32_16x16x32_bf16 {d}, {a}, {b}, {c}"

def qk_mfma(sig, g):
    a = g // 20; s = (g % 20) // 5; t = g % 5
    d = vr(S(sig, t, a), 4)
    c = d if s else vr(NM(t), 4)
    return mfma(d, vr(KF(a, s), 4), ar(QF(t, s), 4), c)
def pv_mfma(sigp, idx):
    db = idx // 5; t = idx % 5
    p = vr(S(sigp, t, 0), 4)
    if db < 8: return mfma(O(t, db), ar(VF(db), 4), p, O(t, db))
    return mfma(ar(L(t), 4), vr(V_ONE, 4), p, ar(L(t), 4))

def exp_op(sig, t, a, r): return f"v_exp_f32 {vr(S(sig,t,a,r))}, {vr(S(sig,t,a,r))}"
def cvt_op(sig, t, a, h):
    return f"v_cvt_pk_bf16_f32 {vr(S(sig,t,0,2*a+h))}, {vr(S(sig,t,a,2*h))}, {vr(S(sig,t,a,2*h+1))}"
def kread(slot, a, s): return f"ds_read_b128 {vr(KF(a,s),4)}, {vr(V_KR+s)} offset:{slot*16384 + a*4096}"
def vread(slot, db, hf): return f"ds_read_b64_tr_b16 {ar(VF(db)+2*hf,2)}, {vr(V_VR+db)} offset:{slot*16384 + hf*4096}"

KV_AUX = " nt"
def dma_ops(kind, slot, grp):
    base = (LDS_K if kind == 'K' else LDS_V) + slot*16384 + grp*8192
    srd = sr(S_K if kind == 'K' else S_V, 4)
    so = sr((S_KO0 if kind == 'K' else S_VO0) + grp)
    v0, v1 = (V_KD0, V_KD1) if kind == 'K' else (V_VD0, V_VD1)
    return (f"s_add_u32 m0, {sr(S_M0)}, {hex(base)}",
            [f"buffer_load_dwordx4 {vr(v0)}, {srd}, {so} offen{KV_AUX} lds",
             f"buffer_load_dwordx4 {vr(v1)}, {srd}, {so} offen offset:1024{KV_AUX} lds"])

def emit_gaps(A, mf, sc, ve):
    for g in range(len(mf)):
        A(mf[g])
        assert len(sc[g]) <= 1, (g, sc[g])
        for x in sc[g]: A(x)
        for x in ve[g]: A(x)

def step(A, n4, last_in_loop=False, loop_label=None):
    sig = n4 & 1; sp = 1 - sig
    NG = 85
    sc = [[] for _ in range(NG)]
    ve = [[] for _ in range(NG)]
    for t in range(5):
        for r in range(4): ve[8*t + 2*r].append(exp_op(sp, t, 1, r))
    vslot = (n4 - 1) & 3
    vr_ops = [vread(vslot, db, hf) for db in range(8) for hf in range(2)]
    k = 0
    for g in range(1, 40, 2):
        if g % 4 == 1:
            if k < 16:
                ve[g].append(vr_ops[k]); k += 1
                if k < 16: ve[g].append(vr_ops[k]); k += 1
        else:
            if k < 16: ve[g].append(vr_ops[k]); k += 1
            t = g // 8; h = (g % 8) // 4
            ve[g].append(cvt_op(sp, t, 1, h))
    assert k == 16
    for t in range(5):
        for r in range(4): ve[40 + 8*t + 2*r].append(exp_op(sig, t, 0, r))
    kslot = (n4 + 1) & 3
    kr_ops = [kread(kslot, a, s) for a in range(2) for s in range(4)]
    k = 0
    for g in range(43, 80, 4):
        if k < 8: ve[g].append(kr_ops[k]); k += 1
        t = (g - 40) // 8; h = ((g - 40) % 8) // 4
        ve[g].append(cvt_op(sig, t, 0, h))
    dk = n4 & 3; dv = (n4 + 2) & 3
    groups = [dma_ops('K', dk, 0), dma_ops('K', dk, 1), dma_ops('V', dv, 0), dma_ops('V', dv, 1)]
    dgaps = [25, 29, 33, 37, 41, 45, 49, 53]
    for q in range(4):
        m0, dd = groups[q]
        g0, g1 = dgaps[2*q], dgaps[2*q+1]
        assert not ve[g0] and not ve[g1], (g0, g1, ve[g0], ve[g1])
        sc[g0-1].append(m0)
        ve[g0].append(dd[0]); ve[g1].append(dd[1])
    sc[2].append(f"s_cmp_lt_u32 {sr(S_KO0)}, {hex(HEAD_BYTES)}")
    sc[3].append(f"s_cselect_b32 {sr(S_K+2)}, {hex(HEAD_BYTES)}, 0")
    sc[4].append(f"s_cmp_lt_u32 {sr(S_VO0)}, {hex(HEAD_BYTES)}")
    sc[5].append(f"s_cselect_b32 {sr(S_V+2)}, {hex(HEAD_BYTES)}, 0")
    sc[56].append(f"s_add_u32 {sr(S_KO0)}, {sr(S_KO0)}, 0x4000")
    sc[57].append(f"s_add_u32 {sr(S_KO1)}, {sr(S_KO1)}, 0x4000")
    sc[58].append(f"s_add_u32 {sr(S_VO0)}, {sr(S_VO0)}, 0x4000")
    sc[59].append(f"s_add_u32 {sr(S_VO1)}, {sr(S_VO1)}, 0x4000")
    sc[39].append("s_waitcnt lgkmcnt(0)")
    if last_in_loop:
        sc[82].append(f"s_sub_u32 {sr(S_CNT)}, {sr(S_CNT)}, 1")
    A("s_waitcnt vmcnt(16) lgkmcnt(0)")
    A("s_barrier")
    mf = [qk_mfma(sig, g) if g < 40 else pv_mfma(sp, g - 40) for g in range(NG)]
    emit_gaps(A, mf, sc, ve)
    if last_in_loop:
        A(f"s_cmp_gt_u32 {sr(S_CNT)}, 1")
        A(f"s_cbranch_scc1 {loop_label}")
        A(f"s_cmp_eq_u32 {sr(S_CNT)}, 0")
        A("s_cbranch_scc1 L_loop_exit")
        A(f"buffer_load_dword v{V_POLL}, off, {sr(S_DBG,4)}, 0 sc1")
        A(f"s_branch {loop_label}")
        A.label("L_loop_exit")

def setup_ids(A, endlabel):
    A(f"""
    s_load_dwordx4 s[4:7], s[0:1], 8
    s_load_dwordx2 s[8:9], s[0:1], 56
    s_load_dwordx2 s[{S_X}:{S_X+1}], s[0:1], 0
    s_load_dwordx2 s[{S_WQ}:{S_WQ+1}], s[0:1], 24
    s_load_dwordx2 s[{S_WOR}:{S_WOR+1}], s[0:1], 32
    s_load_dwordx2 s[{S_OUT}:{S_OUT+1}], s[0:1], 40
    s_load_dwordx2 s[{S_DBG}:{S_DBG+1}], s[0:1], 48
    s_cmp_ge_u32 s2, 256
    s_cbranch_scc1 {endlabel}
    v_lshrrev_b32 v{V_T}, 6, v0
    v_and_b32 v{V_LANE}, 63, v0
    v_readfirstlane_b32 s{S_W}, v{V_T}
    s_and_b32 s3, s2, 7
    s_lshr_b32 s10, s2, 3
    s_mov_b32 s{S_XCD}, s3
    s_mov_b32 s{S_SLOT}, s10
    s_and_b32 s11, s3, 1
    s_lshl_b32 s11, s11, 2
    s_lshr_b32 s{S_T0}, s10, 3
    s_add_u32 s{S_B}, s11, s{S_T0}
    s_lshr_b32 s11, s3, 1
    s_lshl_b32 s11, s11, 3
    s_and_b32 s{S_T0}, s10, 7
    s_add_u32 s{S_H}, s11, s{S_T0}
    s_lshr_b32 s{S_I}, s{S_W}, 1
    s_and_b32 s{S_J}, s{S_W}, 1
    s_lshl_b32 s{S_M0}, s{S_W}, 11
    s_mul_i32 s{S_MX}, s{S_W}, 5120
    s_lshl_b32 s11, s{S_B}, 4
    s_lshr_b32 s{S_T0}, s{S_H}, 1
    s_add_u32 s11, s11, s{S_T0}
    s_lshr_b32 s{S_T1}, s11, 13
    s_lshl_b32 s{S_T0}, s11, 19
    s_mul_i32 s10, s{S_B}, 184320
    s_lshl_b32 s11, s{S_H}, 8
    s_waitcnt lgkmcnt(0)
    s_add_u32 s{S_X}, s{S_X}, s10
    s_addc_u32 s{S_X+1}, s{S_X+1}, 0
    s_mov_b32 s{S_X+2}, 184320
    s_mov_b32 s{S_X+3}, 0x20000
    s_add_u32 s{S_WQ}, s{S_WQ}, s11
    s_addc_u32 s{S_WQ+1}, s{S_WQ+1}, 0
    s_sub_u32 s{S_WQ+2}, {576*8192}, s11
    s_mov_b32 s{S_WQ+3}, 0x20000
    s_add_u32 s{S_K}, s4, s{S_T0}
    s_addc_u32 s{S_K+1}, s5, s{S_T1}
    s_mov_b32 s{S_K+2}, {hex(HEAD_BYTES)}
    s_mov_b32 s{S_K+3}, 0x20000
    s_add_u32 s{S_V}, s6, s{S_T0}
    s_addc_u32 s{S_V+1}, s7, s{S_T1}
    s_mov_b32 s{S_V+2}, {hex(HEAD_BYTES)}
    s_mov_b32 s{S_V+3}, 0x20000
    s_mov_b32 s{S_WS}, s8
    s_mov_b32 s{S_WS+1}, s9
    s_mov_b32 s{S_WS+2}, 0x10000000
    s_mov_b32 s{S_WS+3}, 0x20000
    """)

def setup_dma_addrs(A):
    T = V_X; L_ = V_LANE
    A(f"""
    v_lshrrev_b32 v{T}, 4, v{L_}
    v_and_b32 v{T+1}, 15, v{L_}
    v_lshrrev_b32 v{T+2}, 3, v{L_}
    v_and_b32 v{T+3}, 7, v{L_}
    s_mul_i32 s{S_T0}, s{S_W}, {40*1152}
    s_and_b32 s{S_T1}, s{S_W}, 1
    s_lshl_b32 s{S_T1}, s{S_T1}, 2
    v_mul_u32_u24 v{T+4}, 1152, v{T+2}
    v_add_u32 v{T+4}, s{S_T0}, v{T+4}
    v_xor_b32 v{T+5}, v{T+3}, v{T}
    v_xor_b32 v{T+5}, s{S_T1}, v{T+5}
    v_lshlrev_b32 v{T+6}, 4, v{T+5}
    v_add_u32 v{V_XD0}, v{T+4}, v{T+6}
    v_xor_b32 v{T+6}, 64, v{T+6}
    v_add_u32 v{V_XD1}, v{T+4}, v{T+6}
    """)
    A(f"""
    v_or_b32 v{T+4}, s{S_T1}, v{T}
    v_lshlrev_b32 v{T+4}, 1, v{T+4}
    v_xor_b32 v{T+4}, v{T+4}, v{T+1}
    v_lshlrev_b32 v{T+4}, 4, v{T+4}
    s_lshl_b32 s{S_T0}, s{S_W}, 3
    v_add_u32 v{T+5}, s{S_T0}, v{T}
    v_lshlrev_b32 v{T+6}, 13, v{T+5}
    v_add_u32 v{V_WD}, v{T+4}, v{T+6}
    """)
    for e in range(5): A(f"s_mov_b32 s{S_XO+e}, {e*8192 if e < 4 else 4*9216}")
    for e in range(4): A(f"s_mov_b32 s{S_WO+e}, {(e>>1)*32*8192 + (e&1)*(32768-1024)}")
    for e, (vk, vv) in enumerate([(V_KD0, V_VD0), (V_KD1, V_VD1)]):
        A(f"""
        v_add_u32 v{T+2}, {4*e}, v{T+5}
        v_and_b32 v{T+3}, 15, v{T+2}
        v_xor_b32 v{T+3}, v{T+3}, v{T+1}
        v_lshlrev_b32 v{T+3}, 4, v{T+3}
        v_lshlrev_b32 v{T+4}, 8, v{T+2}
        v_add_u32 v{vk}, v{T+3}, v{T+4}
        v_and_b32 v{T+3}, 7, v{T+2}
        v_lshlrev_b32 v{T+3}, 1, v{T+3}
        v_xor_b32 v{T+3}, v{T+3}, v{T+1}
        v_lshlrev_b32 v{T+3}, 4, v{T+3}
        v_add_u32 v{vv}, v{T+3}, v{T+4}
        """)
        if e:
            A(f"v_subrev_u32 v{vk}, 1024, v{vk}")
            A(f"v_subrev_u32 v{vv}, 1024, v{vv}")

def xdma_ops(u):
    srd = sr(S_X, 4)
    out = []
    for e in range(5):
        m0 = None
        if e == 0: m0 = f"s_add_u32 m0, {sr(S_MX)}, {hex(XB[u])}"
        if e == 4: m0 = f"s_add_u32 m0, {sr(S_MX)}, {hex(XB[u] + 4096)}"
        v = V_XD0 if e % 2 == 0 else V_XD1
        off = f" offset:{e*1024}" if 0 < e < 4 else ""
        out.append((m0, f"buffer_load_dwordx4 {vr(v)}, {srd}, {sr(S_XO+e)} offen{off} lds"))
    return out
def xadv(): return [f"s_add_u32 {sr(S_XO+e)}, {sr(S_XO+e)}, 128" for e in range(5)]
def wdma_ops(u):
    srd = sr(S_WQ, 4)
    out = []
    for e in range(4):
        m0 = f"s_add_u32 m0, {sr(S_M0)}, {hex(WQB[u] + (e>>1)*8192)}" if e % 2 == 0 else None
        off = " offset:1024" if e & 1 else ""
        out.append((m0, f"buffer_load_dwordx4 {vr(V_WD)}, {srd}, {sr(S_WO+e)} offen{off} lds"))
    return out
def wadv(): return [f"s_add_u32 {sr(S_WO+e)}, {sr(S_WO+e)}, 0x80000" for e in range(4)]
def kvdma_ops(kind, tile_n, slot):
    out = []
    for grp in range(2):
        so = (S_KO0 if kind == 'K' else S_VO0) + grp
        m0, dd = dma_ops(kind, slot, grp)
        out.append(([f"s_mov_b32 s{so}, {hex(tile_n*16384 + grp*8192)}", m0], dd[0]))
        out.append(([], dd[1]))
    return out

def emit_plain(A, ops):
    for pre, d in ops:
        if pre:
            for x in (pre if isinstance(pre, list) else [pre]): A(x)
            A("s_nop 0")
        A(d)

def setup_read_addrs(A):
    T = V_X; L_ = V_LANE
    A(f"""
    v_lshrrev_b32 v{T}, 4, v{L_}
    v_and_b32 v{T+1}, 15, v{L_}
    """)
    A(f"""
    s_mul_i32 s{S_T0}, s{S_I}, {80*128}
    s_add_u32 s{S_T0}, s{S_T0}, {hex(XB[0])}
    v_lshrrev_b32 v{T+2}, 1, v{T+1}
    v_xor_b32 v{T+2}, v{T+2}, v{T}
    v_lshlrev_b32 v{T+2}, 4, v{T+2}
    v_lshlrev_b32 v{T+3}, 7, v{T+1}
    v_add_u32 v{T+3}, s{S_T0}, v{T+3}
    v_add_u32 v{V_XR}, v{T+2}, v{T+3}
    v_xor_b32 v{T+2}, 64, v{T+2}
    v_add_u32 v{V_XR+1}, v{T+2}, v{T+3}
    """)
    A(f"""
    v_lshrrev_b32 v{T+2}, 2, v{T+1}
    v_and_b32 v{T+3}, 1, v{T}
    v_lshlrev_b32 v{T+3}, 2, v{T+3}
    v_or_b32 v{T+3}, v{T+3}, v{T+2}
    v_lshlrev_b32 v{T+4}, 3, v{T}
    v_add_u32 v{T+4}, v{T+4}, v{T+2}
    v_lshlrev_b32 v{T+4}, 8, v{T+4}
    v_and_b32 v{T+5}, 3, v{L_}
    v_lshlrev_b32 v{T+5}, 3, v{T+5}
    v_add_u32 v{T+4}, v{T+4}, v{T+5}
    v_add_u32 v{T+4}, {hex(WQB[0])}, v{T+4}
    s_lshl_b32 s{S_T0}, s{S_J}, 2
    v_xor_b32 v{T+3}, s{S_T0}, v{T+3}
    """)
    for d in range(4):
        A(f"""
        v_xor_b32 v{T+5}, {d}, v{T+3}
        v_lshlrev_b32 v{T+5}, 5, v{T+5}
        v_add_u32 v{V_WR+d}, v{T+4}, v{T+5}
        """)
    A(f"""
    s_mul_i32 s{S_T0}, s{S_I}, 20480
    s_lshl_b32 s{S_T1}, s{S_J}, 11
    s_add_u32 s{S_T0}, s{S_T0}, s{S_T1}
    s_add_u32 s{S_T0}, s{S_T0}, {hex(QIMG)}
    v_lshrrev_b32 v{T+2}, 1, v{T}
    v_lshlrev_b32 v{T+2}, 8, v{T+2}
    v_lshlrev_b32 v{T+3}, 4, v{T+1}
    v_add_u32 v{T+2}, v{T+2}, v{T+3}
    v_and_b32 v{T+3}, 1, v{T}
    v_lshlrev_b32 v{T+3}, 3, v{T+3}
    v_add_u32 v{T+2}, v{T+2}, v{T+3}
    v_add_u32 v{V_QW}, s{S_T0}, v{T+2}
    """)
    A(f"s_lshl_b32 s{S_T0}, s{S_J}, 13")
    for s in range(4):
        A(f"""
        v_add_u32 v{T+2}, {4*s}, v{T}
        v_xor_b32 v{T+2}, v{T+2}, v{T+1}
        v_lshlrev_b32 v{T+2}, 4, v{T+2}
        v_lshlrev_b32 v{T+3}, 8, v{T+1}
        v_add_u32 v{T+2}, v{T+2}, v{T+3}
        v_add_u32 v{V_KR+s}, s{S_T0}, v{T+2}
        """)
    A(f"""
    v_lshrrev_b32 v{T+2}, 2, v{T+1}
    v_lshlrev_b32 v{T+3}, 2, v{T}
    v_add_u32 v{T+2}, v{T+2}, v{T+3}
    v_and_b32 v{T+3}, 7, v{T+2}
    v_lshlrev_b32 v{T+2}, 8, v{T+2}
    v_and_b32 v{T+4}, 3, v{L_}
    v_lshlrev_b32 v{T+4}, 3, v{T+4}
    v_add_u32 v{T+2}, v{T+2}, v{T+4}
    s_add_u32 s{S_T0}, s{S_T0}, {hex(LDS_V)}
    v_add_u32 v{T+2}, s{S_T0}, v{T+2}
    s_lshl_b32 s{S_T1}, s{S_J}, 2
    v_xor_b32 v{T+3}, s{S_T1}, v{T+3}
    """)
    for idx in range(8):
        A(f"""
        v_xor_b32 v{T+4}, {idx}, v{T+3}
        v_lshlrev_b32 v{T+4}, 5, v{T+4}
        v_add_u32 v{V_VR+idx}, v{T+2}, v{T+4}
        """)
    A(f"""
    v_and_b32 v{T+2}, 3, v{L_}
    v_cmp_eq_u32 vcc, 0, v{T+2}
    v_mov_b32 v{T+3}, 0x3f803f80
    s_mov_b32 s{S_SC}, {f32hex(SCALE)}
    s_mov_b32 s{S_SC+1}, {f32hex(SCALE)}
    v_cndmask_b32 v{V_ONE}, 0, v{T+3}, vcc
    v_cndmask_b32 v{V_ONE+1}, 0, v{T+3}, vcc
    v_cndmask_b32 v{V_ONE+2}, 0, v{T+3}, vcc
    v_cndmask_b32 v{V_ONE+3}, 0, v{T+3}, vcc
    """)

def zero_state(A, acc=True, nm=True):
    if acc:
        for r in range(V_S, V_S+80, 2): A(f"v_mov_b64 {vr(r,2)}, 0")
    if nm:
        for r in range(V_NM, V_NM+20, 2): A(f"v_mov_b64 {vr(r,2)}, 0")
    for r in range(V_OK, V_OK+80, 2): A(f"v_mov_b64 {vr(r,2)}, 0")
    A("v_accvgpr_write_b32 a0, 0")
    A("s_nop 1")
    for r in range(1, 100): A(f"v_accvgpr_mov_b32 a{r}, a0")

def xread(u, kap, p, t): return f"ds_read_b128 {ar(PB(p,t),4)}, {vr(V_XR+kap)} offset:{u*0x5000 + t*2048}"
def wread(u, kap, p, d, hf):
    return f"ds_read_b64_tr_b16 {vr(PA(p,d)+2*hf,2)}, {vr(V_WR+d)} offset:{(WQB[u]-WQB[0]) + kap*8192 + hf*1024}"
def p1_reads(u, kap, p):
    g = [[xread(u, kap, p, 0)], [wread(u, kap, p, 0, 0), wread(u, kap, p, 0, 1)]]
    g += [[xread(u, kap, p, t)] for t in range(1, 5)]
    g += [[wread(u, kap, p, d, 0), wread(u, kap, p, d, 1)] for d in range(1, 4)]
    return g
def p1_mfma(p, g):
    d = g // 5; t = g % 5
    a = vr(ACC(t, d), 4)
    return mfma(a, vr(PA(p, d), 4), ar(PB(p, t), 4), a)

def p1_half(A, p, reads, dmas, advs, extra=None):
    sc = [[] for _ in range(20)]; ve = [[] for _ in range(20)]
    for k, grp in enumerate(reads): ve[k] = list(grp)
    g = 10
    pend = []
    slots = list(range(20))
    dg = []
    n = len(dmas)
    gaps = [10, 12, 14, 16, 18][:n] if n <= 5 else None
    assert gaps is not None
    used = set()
    for (pre, d), gg in zip(dmas, gaps):
        pre = [] if pre is None else (pre if isinstance(pre, list) else [pre])
        assert len(pre) <= 2
        for k, x in enumerate(pre):
            sc[gg - len(pre) + k].append(x)
        ve[gg].append(d)
    k = 0
    for gg in range(0, 8):
        if k < len(advs) and not sc[gg]:
            sc[gg].append(advs[k]); k += 1
    assert k == len(advs)
    for gg, ops in (extra or {}).items():
        assert not any(o.startswith("buffer_") for o in ve[gg]), (gg, ve[gg])
        ve[gg] += ops
        assert len(ve[gg]) <= 2, (gg, ve[gg])
    mf = [p1_mfma(p, g) for g in range(20)]
    emit_gaps(A, mf, sc, ve)

def p1_chunk(A, u, first_dmas, first_advs, vm_mid, second_dmas, second_advs, last=False, extra1=None, extra2=None):
    p1_half(A, 0, p1_reads(u, 1, 1), first_dmas, first_advs, extra1)
    A(f"s_waitcnt vmcnt({vm_mid}) lgkmcnt(0)" if vm_mid is not None else "s_waitcnt lgkmcnt(0)")
    A("s_barrier")
    p1_half(A, 1, [] if last else p1_reads((u+1) % 3, 0, 0), second_dmas, second_advs, extra2)
    if not last: A("s_waitcnt lgkmcnt(0)")

def wof_dma_setup_and_issue(A):
    T = V_X; L_ = V_LANE
    A(f"""
    s_lshr_b32 s10, s2, 1
    s_and_b32 s11, s2, 1
    s_mul_i32 s{S_T0}, s10, {32*1152}
    s_mul_i32 s{S_T1}, s11, 576
    s_add_u32 s{S_T0}, s{S_T0}, s{S_T1}
    s_add_u32 s{S_WOR}, s{S_WOR}, s{S_T0}
    s_addc_u32 s{S_WOR+1}, s{S_WOR+1}, 0
    s_sub_u32 s{S_WOR+2}, {4096*1152}, s{S_T0}
    s_mov_b32 s{S_WOR+3}, 0x20000
    v_lshrrev_b32 v{T}, 5, v{L_}
    v_and_b32 v{T+1}, 31, v{L_}
    v_lshlrev_b32 v{T+2}, 1, v{T}
    v_xor_b32 v{T+1}, v{T+1}, v{T+2}
    v_lshlrev_b32 v{T+1}, 4, v{T+1}
    s_lshl_b32 s{S_T0}, s{S_W}, 3
    v_add_u32 v{T}, s{S_T0}, v{T}
    v_mul_u32_u24 v{T}, 1152, v{T}
    v_add_u32 v{T}, v{T}, v{T+1}
    v_lshrrev_b32 v{T+2}, 2, v{L_}
    s_lshl_b32 s{S_T0}, s{S_J}, 4
    v_add_u32 v{T+2}, s{S_T0}, v{T+2}
    v_mul_u32_u24 v{T+2}, 1152, v{T+2}
    v_and_b32 v{T+3}, 3, v{L_}
    v_lshlrev_b32 v{T+3}, 4, v{T+3}
    v_add_u32 v{T+2}, v{T+2}, v{T+3}
    v_add_u32 v{T+2}, 512, v{T+2}
    s_mul_i32 s{S_T0}, s{S_I}, {RAW1-RAW0}
    s_mul_i32 s{S_T1}, s{S_J}, 4352
    s_add_u32 s{S_T0}, s{S_T0}, s{S_T1}
    s_add_u32 m0, s{S_T0}, {hex(RAW0)}
    """)
    for e in range(4):
        A(f"s_movk_i32 s{S_T1}, {e*1216}")
        off = f" offset:{e*1088}" if e else ""
        A(f"buffer_load_dwordx4 v{T}, {sr(S_WOR,4)}, s{S_T1} offen{off} lds")
    A(f"""
    s_mul_i32 s{S_T0}, s{S_J}, {RAW1-RAW0}
    s_add_u32 m0, s{S_T0}, {hex(RAW0+RAWB)}
    s_nop 0
    buffer_load_dwordx4 v{T+2}, {sr(S_WOR,4)}, 0 offen lds
    """)

def wof_addr_setup(A):
    T = V_X; L_ = V_LANE
    A(f"""
    v_lshrrev_b32 v{T}, 5, v{L_}
    v_mul_u32_u24 v{T}, 4352, v{T}
    v_lshrrev_b32 v{T+1}, 3, v{L_}
    v_and_b32 v{T+1}, 3, v{T+1}
    v_mul_u32_u24 v{T+1}, 1088, v{T+1}
    v_add_u32 v{T}, v{T}, v{T+1}
    v_lshrrev_b32 v{T+1}, 2, v{L_}
    v_and_b32 v{T+2}, 1, v{T+1}
    v_lshlrev_b32 v{T+3}, 9, v{T+2}
    v_add_u32 v{T}, v{T}, v{T+3}
    v_xor_b32 v{T+2}, s{S_W}, v{T+2}
    v_lshlrev_b32 v{T+2}, 5, v{T+2}
    v_add_u32 v{T}, v{T}, v{T+2}
    v_and_b32 v{T+2}, 3, v{L_}
    v_lshlrev_b32 v{T+2}, 3, v{T+2}
    v_add_u32 v{T}, v{T}, v{T+2}
    v_add_u32 v{V_WA}, {hex(RAW0)}, v{T}
    v_lshlrev_b32 v{T+1}, 6, v{T+1}
    v_add_u32 v{T+1}, v{T+1}, v{T+2}
    s_lshl_b32 s{S_T0}, s{S_J}, 5
    s_add_u32 s{S_T0}, s{S_T0}, {hex(RAW0+RAWB)}
    v_add_u32 v{V_WB}, s{S_T0}, v{T+1}
    v_lshlrev_b32 v{V_L16}, 4, v{L_}
    s_lshr_b32 s10, s2, 1
    s_and_b32 s11, s2, 1
    s_mul_i32 s11, s11, 18
    s_add_u32 s11, s11, s{S_W}
    s_lshl_b32 s11, s11, 7
    s_add_u32 s11, s11, s10
    s_lshl_b32 s11, s11, 10
    s_add_u32 s{S_WFS}, s11, {hex(WOF)}
    s_add_u32 s{S_WFS+1}, s{S_WFS}, 0x80000
    s_add_u32 s{S_WFS+2}, s{S_WFS+1}, 0x80000
    s_add_u32 s{S_WFS+3}, s{S_WFS+2}, 0x80000
    s_add_u32 s{S_WFS+4}, s{S_WFS+3}, 0x80000
    s_cmp_lt_u32 s{S_W}, 2
    s_cselect_b32 s{S_WFS+4}, s{S_WFS+4}, 0x10000000
    """)

def wof_reads():
    ex = {}
    for e in range(5):
        dst = A_VF + 4*e
        if e < 4: ops = [f"ds_read_b64_tr_b16 {ar(dst+2*hf,2)}, v{V_WA} offset:{e*128 + hf*(RAW1-RAW0)}" for hf in range(2)]
        else: ops = [f"ds_read_b64_tr_b16 {ar(dst+2*hf,2)}, v{V_WB} offset:{hf*(RAW1-RAW0)}" for hf in range(2)]
        ex[9 + 2*e] = ops
    return ex
def wof_stores():
    return {9 + 2*e: [f"buffer_store_dwordx4 {ar(A_VF+4*e,4)}, v{V_L16}, {sr(S_WS,4)}, s{S_WFS+e} offen sc1"] for e in range(5)}

def phase_o_setup(A):
    A(f"""
    s_mul_i32 s10, s{S_SLOT}, 43
    s_lshr_b32 s10, s10, 8
    s_lshr_b32 s11, s{S_XCD}, 1
    s_mul_i32 s11, s11, 5
    s_add_u32 s11, s11, s10
    s_mul_i32 s10, s10, 6
    s_sub_u32 s10, s{S_SLOT}, s10
    s_and_b32 s{S_T0}, s{S_XCD}, 1
    s_mul_i32 s{S_T0}, s{S_T0}, 6
    s_add_u32 s10, s10, s{S_T0}
    s_lshl_b32 s{S_OO}, s11, 19
    s_mul_i32 s{S_OW}, s10, {3*131072}
    s_add_u32 s{S_OW}, s{S_OW}, {hex(WOF)}
    s_mul_i32 s{S_T0}, s11, {64*1152}
    s_mul_i32 s{S_T1}, s10, 96
    s_add_u32 s{S_T0}, s{S_T0}, s{S_T1}
    s_add_u32 s{S_OUT}, s{S_OUT}, s{S_T0}
    s_addc_u32 s{S_OUT+1}, s{S_OUT+1}, 0
    s_sub_u32 s{S_OUT+2}, {1280*1152}, s{S_T0}
    s_mov_b32 s{S_OUT+3}, 0x20000
    s_mov_b32 s{S_DBG+2}, 256
    s_mov_b32 s{S_DBG+3}, 0x20000
    s_cmp_lt_u32 s{S_SLOT}, 30
    s_cselect_b32 s{S_CONS}, 1, 0
    s_lshl_b32 s11, s11, 2
    """)
    def caddr(dst, b):
        A(f"""
        s_and_b32 s{S_T0}, s{b}, 1
        s_lshl_b32 s{S_T0}, s{S_T0}, 7
        s_lshr_b32 s{S_T1}, s{b}, 1
        s_lshl_b32 s{S_T1}, s{S_T1}, 2
        s_add_u32 s{S_T0}, s{S_T0}, s{S_T1}
        s_add_u32 s{dst}, s{S_T0}, 16
        """)
    A(f"s_mul_i32 s10, s11, 103\ns_lshr_b32 s10, s10, 10")
    caddr(S_PA0, 10)
    A(f"s_add_u32 s11, s11, 3\ns_mul_i32 s10, s11, 103\ns_lshr_b32 s10, s10, 10")
    caddr(S_PA1, 10)
    caddr(S_CO, S_B)
    A(f"""
    s_mul_i32 s{S_T0}, s{S_B}, 10
    s_mul_i32 s{S_T1}, s{S_I}, 5
    s_add_u32 s{S_T0}, s{S_T0}, s{S_T1}
    s_lshl_b32 s{S_T0}, s{S_T0}, 5
    s_add_u32 s{S_T0}, s{S_T0}, s{S_H}
    s_lshl_b32 s{S_T0}, s{S_T0}, 1
    s_add_u32 s{S_T0}, s{S_T0}, s{S_J}
    s_lshl_b32 s{S_OB}, s{S_T0}, 11
    """)

def p1(A):
    A("s_waitcnt vmcnt(23)")
    A("s_barrier")
    for grp in p1_reads(0, 0, 0):
        for x in grp: A(x)
    A(f"s_mov_b32 s{S_CNT}, 2")
    A("s_waitcnt lgkmcnt(0)")
    A(".p2align 5")
    A.label("L_p1")
    i0 = len(A.lines)
    for u in range(3):
        p1_chunk(A, u, wdma_ops((u+2) % 3), xadv(), 9, xdma_ops(u), wadv())
    A(f"s_sub_u32 s{S_CNT}, s{S_CNT}, 1")
    A(f"s_cmp_lg_u32 s{S_CNT}, 0")
    A("s_cbranch_scc1 L_p1")
    i1 = len(A.lines)
    for p in check_hazards(A.lines[i0:i1]*2, "p1loop"): print("HAZARD", p)
    p1_chunk(A, 0, wdma_ops(2), [], 9, kvdma_ops('K', 1, 1), [], extra1=wof_reads(), extra2=wof_stores())
    p1_chunk(A, 1, kvdma_ops('V', 0, 0), [], 13, kvdma_ops('K', 2, 2), [])
    p1_chunk(A, 2, kvdma_ops('K', 3, 3), [], None, kvdma_ops('V', 1, 1), [], last=True)

def q_exchange(A):
    A("s_nop 7")
    for d in range(4):
        for t in range(5):
            a = ACC(t, d)
            A(f"v_pk_mul_f32 {vr(a,2)}, {vr(a,2)}, {sr(S_SC,2)}")
            A(f"v_pk_mul_f32 {vr(a+2,2)}, {vr(a+2,2)}, {sr(S_SC,2)}")
            A(f"v_cvt_pk_bf16_f32 {vr(a)}, {vr(a)}, {vr(a+1)}")
            A(f"v_cvt_pk_bf16_f32 {vr(a+1)}, {vr(a+2)}, {vr(a+3)}")
            A(f"ds_write_b64 {vr(V_QW)}, {vr(a,2)} offset:{t*4096 + (d>>1)*1024 + (d&1)*512}")
    A(f"""
    s_mul_i32 s{S_T0}, s{S_I}, 20480
    s_add_u32 s{S_T0}, s{S_T0}, {hex(QIMG)}
    v_lshlrev_b32 v{V_T}, 4, v{V_LANE}
    v_add_u32 v{V_T}, s{S_T0}, v{V_T}
    s_waitcnt vmcnt(16) lgkmcnt(0)
    s_barrier
    """)
    for t in range(5):
        for s in range(4):
            A(f"ds_read_b128 {ar(QF(t,s),4)}, v{V_T} offset:{(t*4+s)*1024}")
    A(f"""
    s_cmp_lg_u32 s{S_W}, 0
    s_cbranch_scc1 L_no_arr_w
    s_mov_b64 exec, 1
    v_mov_b32 v{V_X}, 1
    buffer_atomic_add v{V_X}, off, {sr(S_DBG,4)}, 0
    s_mov_b64 exec, -1
    """)
    A.label("L_no_arr_w")

def qk0(A):
    for a in range(2):
        for s in range(4): A(kread(0, a, s))
    A("s_waitcnt lgkmcnt(0)")
    sc = [[] for _ in range(40)]; ve = [[] for _ in range(40)]
    k = 0
    for g in range(24, 40):
        t, r = k // 4, k % 4
        ve[g].append(exp_op(0, t, 0, r)); k += 1
    emit_gaps(A, [qk_mfma(0, g) for g in range(40)], sc, ve)
    for a in range(2):
        for s in range(4): A(kread(1, a, s))
    for r in range(4): A(exp_op(0, 4, 0, r))
    for t in range(5):
        A(cvt_op(0, t, 0, 0)); A(cvt_op(0, t, 0, 1))
    A("s_waitcnt lgkmcnt(0)\ns_barrier")
    emit_plain(A, kvdma_ops('K', 4, 0)); emit_plain(A, kvdma_ops('V', 2, 2))
    A(f"""
    s_mov_b32 s{S_KO0}, {hex(5*16384)}
    s_mov_b32 s{S_KO1}, {hex(5*16384+8192)}
    s_mov_b32 s{S_VO0}, {hex(3*16384)}
    s_mov_b32 s{S_VO1}, {hex(3*16384+8192)}
    s_mov_b32 s{S_CNT}, 8
    """)

def fallback(A):
    T = V_X; M = V_T
    A.label("L_fallback")
    A("s_waitcnt vmcnt(0) lgkmcnt(0)\ns_barrier")
    for t in range(5):
        A(f"v_mov_b32 v{V_X+t}, 0xff800000")
    for r in range(V_NM, V_NM+20, 2): A(f"v_mov_b64 {vr(r,2)}, 0")
    A(f"s_mov_b32 s{S_K+2}, {hex(HEAD_BYTES)}\ns_mov_b32 s{S_V+2}, {hex(HEAD_BYTES)}")
    A(f"s_mov_b32 s{S_KO0}, 0\ns_mov_b32 s{S_KO1}, 0x2000")
    A.label("L_fb_loop")
    for grp in range(2):
        m0, dd = dma_ops('K', 0, grp)
        A(m0); A("s_nop 0"); A(dd[0]); A(dd[1])
    A("s_waitcnt vmcnt(0)\ns_barrier")
    for a in range(2):
        for s in range(4): A(kread(0, a, s))
    A("s_waitcnt lgkmcnt(0)\ns_barrier")
    for g in range(40): A(qk_mfma(0, g))
    A("s_nop 7")
    for t in range(5):
        s = [S(0, t, a, r) for a in range(2) for r in range(4)]
        for k in range(0, 8, 2):
            A(f"v_max3_f32 v{V_X+t}, v{s[k]}, v{s[k+1]}, v{V_X+t}")
    A(f"""
    s_add_u32 s{S_KO0}, s{S_KO0}, 0x4000
    s_add_u32 s{S_KO1}, s{S_KO1}, 0x4000
    s_cmp_lt_u32 s{S_KO0}, {hex(HEAD_BYTES)}
    s_cbranch_scc1 L_fb_loop
    """)
    for t in range(5):
        x = V_X + t; y = V_X + 5
        A(f"""
        v_mov_b32 v{y}, v{x}
        s_nop 1
        v_permlane32_swap_b32 v{x}, v{y}
        v_max_f32 v{x}, v{x}, v{y}
        v_mov_b32 v{y}, v{x}
        s_nop 1
        v_permlane16_swap_b32 v{x}, v{y}
        v_max_f32 v{x}, v{x}, v{y}
        """)
    A(f"""
    v_lshlrev_b32 v{V_T}, 2, v{V_LANE}
    s_mul_i32 s{S_T0}, s{S_W}, 1280
    s_add_u32 s{S_T0}, s{S_T0}, {hex(LDS_SP)}
    v_add_u32 v{V_T+1}, s{S_T0}, v{V_T}
    s_xor_b32 s{S_T1}, s{S_W}, 1
    s_mul_i32 s{S_T1}, s{S_T1}, 1280
    s_add_u32 s{S_T1}, s{S_T1}, {hex(LDS_SP)}
    v_add_u32 v{V_T+2}, s{S_T1}, v{V_T}
    """)
    for t in range(5): A(f"ds_write_b32 v{V_T+1}, v{V_X+t} offset:{t*256}")
    A("s_waitcnt lgkmcnt(0)\ns_barrier")
    for t in range(5): A(f"ds_read_b32 v{V_S+t}, v{V_T+2} offset:{t*256}")
    A("s_waitcnt lgkmcnt(0)")
    for t in range(5):
        A(f"v_max_f32 v{V_X+t}, v{V_X+t}, v{V_S+t}")
        for r in range(4): A(f"v_sub_f32 v{NM(t)+r}, 0, v{V_X+t}")
    zero_state(A, acc=False, nm=False)
    emit_plain(A, kvdma_ops('K', 0, 0)); emit_plain(A, kvdma_ops('K', 1, 1)); emit_plain(A, kvdma_ops('V', 0, 0))
    emit_plain(A, kvdma_ops('K', 2, 2)); emit_plain(A, kvdma_ops('K', 3, 3)); emit_plain(A, kvdma_ops('V', 1, 1))
    A(f"s_mov_b32 s{S_FB}, 1")
    A("s_waitcnt vmcnt(0)\ns_barrier\ns_branch L_qk0")

NPRE = 6
P1K = 17
NAG = 21
RING = 10
SPIN_MAX = 1 << 17

class VMQ:
    def __init__(self, A, limit=60):
        self.A = A; self.n = 0; self.last = {}; self.done = 0; self.limit = limit
    def issue(self, tag, text):
        if self.n - self.done >= self.limit:
            keep = self.limit - 4
            self.A(f"s_waitcnt vmcnt({keep})"); self.done = self.n - keep
        self.A(text); self.n += 1; self.last[tag] = self.n
    def wait(self, *tags, extra=""):
        tgt = max(self.last[t] for t in tags)
        if tgt <= self.done:
            if extra: self.A(f"s_waitcnt {extra}")
            return
        N = self.n - tgt
        assert 0 <= N <= 63
        self.A(f"s_waitcnt vmcnt({N}) {extra}".strip()); self.done = tgt

V_OA = 1
V_OO = 5
V_PA = 6
V_PV = 7
V_ACC = 32
V_RING = 80
def WF(i, nt): return (i % NAG)*12 + nt*4
def OB(i, tl): return V_RING + (i % RING)*16 + tl*4
def ACCO(tl, nt): return V_ACC + (tl*3 + nt)*4

class SOff:
    def __init__(self, A, reg): self.A = A; self.reg = reg; self.g = 0
    def at(self, i):
        g = i >> 2
        if g != self.g:
            self.A(f"s_add_u32 s{self.reg}, s{self.reg}, {(g - self.g)*4096}"); self.g = g
        return f"s{self.reg}", (f" offset:{(i & 3)*1024}" if i & 3 else "")

def epilogue(A, stamps):
    T = V_X
    XL = LDS_SP
    XF = LDS_SP + 5120
    R = V_S
    A("s_nop 7")
    for t in range(5): A(f"v_accvgpr_read_b32 v{V_KF+t}, a{L(t)}")
    A(f"""
    s_mov_b32 s{S_T0}, {f32hex(T_HI)}
    s_mov_b32 s{S_T1}, {f32hex(T_LO)}
    v_max3_f32 v{T}, v{V_KF}, v{V_KF+1}, v{V_KF+2}
    v_max3_f32 v{T}, v{T}, v{V_KF+3}, v{V_KF+4}
    v_min3_f32 v{T+1}, v{V_KF}, v{V_KF+1}, v{V_KF+2}
    v_min3_f32 v{T+1}, v{T+1}, v{V_KF+3}, v{V_KF+4}
    v_add_f32 v{T+2}, v{V_KF}, v{V_KF+1}
    v_add_f32 v{T+3}, v{V_KF+2}, v{V_KF+3}
    v_add_f32 v{T+2}, v{T+2}, v{V_KF+4}
    v_add_f32 v{T+2}, v{T+2}, v{T+3}
    v_cmp_nge_f32 vcc, s{S_T0}, v{T}
    v_cmp_nle_f32 s[{S_MSK}:{S_MSK+1}], s{S_T1}, v{T+1}
    v_cmp_u_f32 s[{S_MSK2}:{S_MSK2+1}], v{T+2}, v{T+2}
    s_or_b64 vcc, vcc, s[{S_MSK}:{S_MSK+1}]
    s_or_b64 vcc, vcc, s[{S_MSK2}:{S_MSK2+1}]
    s_cmp_lg_u64 vcc, 0
    s_cselect_b32 s{S_T0}, 1, 0
    v_mov_b32 v{T+3}, s{S_T0}
    """)
    A(f"""
    v_lshlrev_b32 v{V_T}, 2, v{V_LANE}
    s_mul_i32 s{S_T0}, s{S_W}, 1280
    s_add_u32 s{S_T0}, s{S_T0}, {hex(XL)}
    v_add_u32 v{V_T+1}, s{S_T0}, v{V_T}
    s_xor_b32 s{S_T1}, s{S_W}, 1
    s_mul_i32 s{S_T1}, s{S_T1}, 1280
    s_add_u32 s{S_T1}, s{S_T1}, {hex(XL)}
    v_add_u32 v{V_T+2}, s{S_T1}, v{V_T}
    s_lshl_b32 s{S_T0}, s{S_W}, 2
    s_add_u32 s{S_T0}, s{S_T0}, {hex(XF)}
    v_mov_b32 v{T+4}, s{S_T0}
    v_mov_b32 v{T+5}, {hex(XF)}
    v_lshlrev_b32 v{V_T}, 4, v{V_LANE}
    s_mul_i32 s{S_T0}, s{S_W}, 20480
    v_add_u32 v{T+6}, s{S_T0}, v{V_T}
    s_xor_b32 s{S_T1}, s{S_W}, 1
    s_mul_i32 s{S_T1}, s{S_T1}, 20480
    v_add_u32 v{T+7}, s{S_T1}, v{V_T}
    s_waitcnt vmcnt(0) lgkmcnt(0)
    s_barrier
    """)
    for t in range(5): A(f"ds_write_b32 v{V_T+1}, v{V_KF+t} offset:{t*256}")
    A(f"ds_write_b32 v{T+4}, v{T+3}")
    for t in range(5):
        for q in range(4):
            A(f"ds_write_b128 v{T+6}, {O(t, 4+q)} offset:{(t*4+q)*1024}")
    A("s_waitcnt lgkmcnt(0)\ns_barrier")
    A(f"ds_read_b128 {vr(V_KF+8,4)}, v{T+5}")
    for t in range(5): A(f"ds_read_b32 v{V_KF+16+2*t}, v{V_T+2} offset:{t*256}")
    for t in range(5):
        for q in range(4):
            A(f"ds_read_b128 {vr(R+(t*4+q)*4,4)}, v{T+7} offset:{(t*4+q)*1024}")
    A(f"""
    s_waitcnt lgkmcnt(14)
    v_or3_b32 v{T}, v{V_KF+8}, v{V_KF+9}, v{V_KF+10}
    v_or_b32 v{T}, v{T}, v{V_KF+11}
    s_nop 0
    v_readfirstlane_b32 s{S_T1}, v{T}
    s_nop 0
    s_andn2_b32 s{S_T1}, s{S_T1}, s{S_FB}
    s_cmp_lg_u32 s{S_T1}, 0
    s_cbranch_scc1 L_fallback
    """)
    for t in range(5):
        A(f"v_add_f32 v{V_KF+16+2*t}, v{V_KF+16+2*t}, v{V_KF+t}")
    for t in range(5):
        A(f"v_rcp_f32 v{V_KF+16+2*t}, v{V_KF+16+2*t}")
    q = VMQ(A)
    for t in range(5):
        A(f"s_waitcnt lgkmcnt({min(14, 16-4*t)})" if t < 4 else "s_waitcnt lgkmcnt(0)")
        inv = V_KF + 16 + 2*t
        for mm in range(2):
            for e in range(2):
                qq = 2*mm + e
                o = V_OK + t*16 + qq*4; r = R + (t*4+qq)*4
                A(f"v_pk_add_f32 {vr(o,2)}, {vr(o,2)}, {vr(r,2)}")
                A(f"v_pk_add_f32 {vr(o+2,2)}, {vr(o+2,2)}, {vr(r+2,2)}")
                A(f"v_pk_mul_f32 {vr(o,2)}, {vr(o,2)}, {vr(inv,2)} op_sel_hi:[1,0]")
                A(f"v_pk_mul_f32 {vr(o+2,2)}, {vr(o+2,2)}, {vr(inv,2)} op_sel_hi:[1,0]")
            o = V_OK + t*16 + mm*8
            A(f"v_cvt_pk_bf16_f32 v{o}, v{o}, v{o+1}")
            A(f"v_cvt_pk_bf16_f32 v{o+1}, v{o+2}, v{o+3}")
            A(f"v_cvt_pk_bf16_f32 v{o+2}, v{o+4}, v{o+5}")
            A(f"v_cvt_pk_bf16_f32 v{o+3}, v{o+6}, v{o+7}")
            A(f"s_add_u32 s{S_T1}, s{S_OB}, {t*32*4*1024 + mm*1024}")
            q.issue('st', f"buffer_store_dwordx4 {vr(o,4)}, v{V_T}, {sr(S_WS,4)}, s{S_T1} offen sc1")
    if stamps: stamp(A, 5)
    A(f"""
    s_cmp_eq_u32 s{S_CONS}, 0
    s_cbranch_scc1 L_nocons
    v_readfirstlane_b32 s{S_T0}, v{V_POLL}
    s_lshl_b32 s{S_T1}, s{S_W}, 15
    v_add_u32 v{V_OA}, s{S_T1}, v{V_T}
    v_add_u32 v{V_OA+1}, 0x20000, v{V_OA}
    v_add_u32 v{V_OA+2}, 0x40000, v{V_OA}
    v_add_u32 v{V_OA+3}, 0x60000, v{V_OA}
    s_cmp_lg_u32 s{S_T0}, 256
    s_cbranch_scc1 L_wspin
    """)
    A.label("L_wok")
    A(f"s_mov_b32 s{S_OW2}, s{S_OW}")
    sw = SOff(A, S_OW)
    def wload(i, so):
        reg, off = so.at(i)
        for nt in range(3):
            q.issue(('w', i), f"buffer_load_dwordx4 {ar(WF(i,nt),4)}, v{V_OA+nt}, {sr(S_WS,4)}, {reg} offen{off} sc1")
    for i in range(NPRE): wload(i, sw)
    q.wait('st')
    A("s_barrier")
    A(f"""
    s_cmp_lg_u32 s{S_W}, 0
    s_cbranch_scc1 L_no_arr_o
    s_mov_b64 exec, 1
    v_mov_b32 v{V_PV}, 1
    buffer_atomic_add v{V_PV}, off, {sr(S_DBG,4)}, s{S_CO}
    s_mov_b64 exec, -1
    """)
    A.label("L_no_arr_o")
    if stamps: stamp(A, 6)
    A(f"""
    v_mov_b32 v{V_PA}, s{S_PA0}
    v_and_b32 v{V_OO}, 15, v{V_LANE}
    v_writelane_b32 v{V_PA}, s{S_PA1}, 1
    s_lshl_b32 s{S_T0}, s{S_W}, 4
    v_add_u32 v{V_OO}, s{S_T0}, v{V_OO}
    v_mul_u32_u24 v{V_OO}, 1152, v{V_OO}
    v_lshrrev_b32 v{V_PV+1}, 4, v{V_LANE}
    v_lshlrev_b32 v{V_PV+1}, 3, v{V_PV+1}
    v_add_u32 v{V_OO}, v{V_OO}, v{V_PV+1}
    """)
    for i in range(NPRE, P1K): wload(i, sw)
    A(f"s_cmp_lg_u32 s{S_W}, 0\ns_cbranch_scc1 L_poll_skip1")
    A(f"buffer_load_dword v{V_PV}, v{V_PA}, {sr(S_DBG,4)}, 0 offen sc1")
    A.label("L_poll_skip1")
    n0 = q.n
    for i in range(P1K, NAG): wload(i, sw)
    nB = q.n - n0
    A(f"""
    s_cmp_lg_u32 s{S_W}, 0
    s_cbranch_scc1 L_poll_done
    s_mov_b32 s{S_T1}, {SPIN_MAX}
    s_waitcnt vmcnt({nB})
    """)
    A.label("L_poll_chk")
    A(f"""
    v_cmp_eq_u32 vcc, 32, v{V_PV}
    s_nop 1
    s_cmp_eq_u64 vcc, -1
    s_cbranch_scc1 L_poll_done
    s_sub_u32 s{S_T1}, s{S_T1}, 1
    s_cmp_eq_u32 s{S_T1}, 0
    s_cbranch_scc1 L_poll_done
    s_sleep 2
    buffer_load_dword v{V_PV}, v{V_PA}, {sr(S_DBG,4)}, 0 offen sc1
    s_waitcnt vmcnt(0)
    s_branch L_poll_chk
    """)
    A.label("L_poll_done")
    A("s_barrier")
    if stamps: stamp(A, 7)
    so = SOff(A, S_OO)
    def oload(i):
        reg, off = so.at(i)
        for tl in range(4):
            q.issue(('o', i), f"buffer_load_dwordx4 {vr(OB(i,tl),4)}, v{V_OA+tl}, {sr(S_WS,4)}, {reg} offen{off} sc1")
    for i in range(RING): oload(i)
    sw2 = SOff(A, S_OW2)
    for i in range(32):
        q.wait(('o', i), ('w', i))
        for nt in range(3):
            for tl in range(4):
                a = vr(ACCO(tl, nt), 4)
                A(mfma(a, ar(WF(i, nt), 4), vr(OB(i, tl), 4), a if i else "0"))
        if i + RING < 32: oload(i + RING)
        if i + NAG < 32: wload(i + NAG, sw2)
    if stamps: stamp(A, 8)
    A(f"""
    s_mul_i32 s{S_T0}, s{S_W}, 12288
    v_add_u32 v{V_PV}, s{S_T0}, v{V_T}
    s_mul_i32 s{S_T0}, s{S_W}, 3072
    v_add_u32 v{V_PV+1}, s{S_T0}, v{V_T}
    s_nop 4
    """)
    for tl in range(4):
        for nt in range(3):
            A(f"ds_write_b128 v{V_PV}, {vr(ACCO(tl,nt),4)} offset:{(tl*3+nt)*1024}")
    A("s_waitcnt lgkmcnt(0)\ns_barrier")
    RR = V_RING
    for nt in range(3):
        for w in range(4):
            A(f"ds_read_b128 {vr(RR+(nt*4+w)*4,4)}, v{V_PV+1} offset:{w*12288 + nt*1024}")
    for nt in range(3):
        A(f"s_waitcnt lgkmcnt({8 - 4*nt})")
        a = RR + nt*16
        A(f"v_pk_add_f32 {vr(a,2)}, {vr(a,2)}, {vr(a+4,2)}")
        A(f"v_pk_add_f32 {vr(a+2,2)}, {vr(a+2,2)}, {vr(a+6,2)}")
        A(f"v_pk_add_f32 {vr(a+8,2)}, {vr(a+8,2)}, {vr(a+12,2)}")
        A(f"v_pk_add_f32 {vr(a+10,2)}, {vr(a+10,2)}, {vr(a+14,2)}")
        A(f"v_pk_add_f32 {vr(a,2)}, {vr(a,2)}, {vr(a+8,2)}")
        A(f"v_pk_add_f32 {vr(a+2,2)}, {vr(a+2,2)}, {vr(a+10,2)}")
        A(f"v_cvt_pk_bf16_f32 v{a}, v{a}, v{a+1}")
        A(f"v_cvt_pk_bf16_f32 v{a+1}, v{a+2}, v{a+3}")
        A(f"buffer_store_dwordx2 {vr(a,2)}, v{V_OO}, {sr(S_OUT,4)}, 0 offen offset:{nt*32}")
    if stamps: write_stamps(A)
    A("s_endpgm")
    A.label("L_nocons")
    A(f"""
    s_waitcnt vmcnt(0)
    s_barrier
    s_cmp_lg_u32 s{S_W}, 0
    s_cbranch_scc1 L_a_end
    s_mov_b64 exec, 1
    v_mov_b32 v{V_PV}, 1
    buffer_atomic_add v{V_PV}, off, {sr(S_DBG,4)}, s{S_CO}
    s_waitcnt vmcnt(0)
    s_endpgm
    """)
    A.label("L_wspin")
    A(f"s_mov_b32 s{S_T1}, {SPIN_MAX}")
    A.label("L_wspin_loop")
    A(f"""
    s_sleep 4
    buffer_load_dword v{V_POLL}, off, {sr(S_DBG,4)}, 0 sc1
    s_waitcnt vmcnt(0)
    v_readfirstlane_b32 s{S_T0}, v{V_POLL}
    s_sub_u32 s{S_T1}, s{S_T1}, 1
    s_cmp_eq_u32 s{S_T1}, 0
    s_cbranch_scc1 L_wok
    s_cmp_lg_u32 s{S_T0}, 256
    s_cbranch_scc1 L_wspin_loop
    s_branch L_wok
    """)

RT_MODE = True
def stamp(A, k):
    A(f"{'s_memrealtime' if RT_MODE else 's_memtime'} s[{S_ST+2*k}:{S_ST+2*k+1}]")

STAMP_BASE = 0x4000000
def write_stamps(A):
    A("s_waitcnt vmcnt(0)")
    stamp(A, 9)
    A("s_waitcnt lgkmcnt(0)")
    for k in range(10): A(f"v_mov_b32 v{32+k}, s{S_ST+2*k}")
    A(f"""
    v_mov_b32 v42, s2
    v_mov_b32 v43, s{S_FB}
    s_lshl_b32 s{S_T0}, s2, 2
    s_add_u32 s{S_T0}, s{S_T0}, s{S_W}
    s_lshl_b32 s{S_T0}, s{S_T0}, 6
    s_add_u32 s{S_T0}, s{S_T0}, {hex(STAMP_BASE)}
    v_mov_b32 v44, s{S_T0}
    s_mov_b64 exec, 1
    buffer_store_dwordx4 v[32:35], v44, {sr(S_WS,4)}, 0 offen
    buffer_store_dwordx4 v[36:39], v44, {sr(S_WS,4)}, 0 offen offset:16
    buffer_store_dwordx4 v[40:43], v44, {sr(S_WS,4)}, 0 offen offset:32
    s_waitcnt vmcnt(0)
    """)

KN = "standalone__gqa_block_cached__near_ridge_kernel"
def kernel(A, stamps=False):
    A(f""".text
    .globl {KN}
    .p2align 8
    .type {KN},@function""")
    A.label(KN)
    setup_ids(A, "L_a_end")
    if stamps: stamp(A, 0)
    setup_dma_addrs(A)
    def adv(ops):
        for x in ops: A(x)
    emit_plain(A, xdma_ops(0)); adv(xadv())
    emit_plain(A, wdma_ops(0)); adv(wadv())
    emit_plain(A, kvdma_ops('K', 0, 0))
    emit_plain(A, xdma_ops(1)); adv(xadv())
    emit_plain(A, wdma_ops(1)); adv(wadv())
    emit_plain(A, xdma_ops(2))
    wof_dma_setup_and_issue(A)
    A(f"s_mov_b32 s{S_FB}, 0")
    setup_read_addrs(A)
    wof_addr_setup(A)
    phase_o_setup(A)
    zero_state(A)
    if stamps: stamp(A, 1)
    p1(A)
    if stamps: stamp(A, 2)
    q_exchange(A)
    A.label("L_qk0")
    qk0(A)
    if stamps: stamp(A, 3)
    A(".p2align 6")
    A.label("L_loop")
    i0 = len(A.lines)
    for u in range(4):
        step(A, (1 + u) & 3, last_in_loop=(u == 3), loop_label="L_loop")
    i1 = len(A.lines)
    for p in check_hazards(A.lines[i0:i1]*2, "loop"): print("HAZARD", p)
    if stamps: stamp(A, 4)
    epilogue(A, stamps)
    A.label("L_a_end")
    A("s_endpgm")
    fallback(A)

KC = "gqa_probe_kernel"
def kernel_c(A, offa, offb, mult=16):
    A(f""".text
    .globl {KC}
    .p2align 8
    .type {KC},@function""")
    A.label(KC)
    A(f"""
    s_load_dwordx2 s[8:9], s[0:1], 56
    s_cmp_ge_u32 s2, 1
    s_cbranch_scc1 L_c_end
    s_memrealtime s[20:21]
    s_waitcnt lgkmcnt(0)
    s_add_u32 s10, s8, {hex(offa)}
    s_addc_u32 s11, s9, 0
    s_add_u32 s12, s8, {hex(offb)}
    s_addc_u32 s13, s9, 0
    s_load_dword s14, s[10:11], 0
    s_load_dword s15, s[12:13], 0
    s_waitcnt lgkmcnt(0)
    s_sub_u32 s14, s15, s14
    s_min_u32 s14, s14, 20000
    s_mul_i32 s14, s14, {mult}
    """)
    A.label("L_c_loop")
    A(f"""
    s_memrealtime s[22:23]
    s_waitcnt lgkmcnt(0)
    s_sub_u32 s16, s22, s20
    s_cmp_lt_u32 s16, s14
    s_cbranch_scc1 L_c_loop
    """)
    A.label("L_c_end")
    A("s_endpgm")

def descriptor(name, vgpr, accum, sgpr=102):
    return f""".amdhsa_kernel {name}
    .amdhsa_next_free_vgpr {vgpr}
    .amdhsa_next_free_sgpr {sgpr}
    .amdhsa_accum_offset {accum}
    .amdhsa_group_segment_fixed_size 0
    .amdhsa_kernarg_size 64
    .amdhsa_user_sgpr_count 2
    .amdhsa_user_sgpr_kernarg_segment_ptr 1
    .amdhsa_system_sgpr_workgroup_id_x 1
    .end_amdhsa_kernel"""

HEADER = """; Kernarg layout for this problem (64 bytes, ptrs only, base s[0:1]):
"""

def gen(stamps=False, probe=None):
    A = Asm()
    kernel(A, stamps)
    if probe: kernel_c(A, *probe)
    A('.section .rodata,"a"\n.p2align 6')
    if probe:
        A(descriptor(KC, 32, 32)); A(".p2align 6")
    A(descriptor(KN, 512, 256))
    for p in check_hazards(A.lines, "all"): print("HAZARD", p)
    hdr = HEADER
    if probe:
        hdr += f"; @launch kernel={KN} grid=(256,1,1) block=(256,1,1) lds={LDS_A}\n"
        hdr += f"; @launch kernel={KC} grid=(1,1,1) block=(64,1,1) lds=0\n"
    else:
        hdr += f"; @launch grid=(256,1,1) block=(256,1,1) lds={LDS_A}\n"
    return hdr + '.amdgcn_target "amdgcn-amd-amdhsa--gfx950"\n' + A.text()

if __name__ == "__main__":
    import sys
    from hiprt import add_meta
    mode = sys.argv[1] if len(sys.argv) > 1 else ""
    if mode == "probe":
        a = lambda k, wg=0: STAMP_BASE + wg*256 + 4*k
        P = {"p1": (a(0), a(2)), "pre": (a(2), a(3)), "loop": (a(3), a(4)), "epi": (a(4), a(5)), "arr": (a(5), a(6)),
             "sync": (a(6), a(7)), "oloop": (a(7), a(8)), "fin": (a(8), a(9))}
        for n, pr in P.items():
            open(f"../cdna_kernels/probe_{n}.s", "w").write(gen(1, pr))
        print("probes written"); sys.exit(0)
    if mode == "stamps":
        open("fused_st.s", "w").write(add_meta(gen(1), [(KN, 512, 256)]))
    elif mode == "cyc":
        RT_MODE = False
        open("fused_cyc.s", "w").write(add_meta(gen(1), [(KN, 512, 256)]))
    else:
        open("fused.s", "w").write(gen(0))
    print("written")
```

```python
from asmlib import *
import struct, math

KA = "standalone__gqa_block_cached__near_ridge_kernel"
KB = "gqa_oproj_kernel"

V_KD0, V_KD1, V_VD0, V_VD1 = 1, 2, 3, 4
V_KR = 5
V_VR = 9
V_LANE = 17
V_XD0, V_XD1 = 18, 19
V_WD = 20
V_XR = 21
V_WR = 23
V_QW = 27
V_T = 28
V_S = 32
V_NM = 112
V_OK = 132
V_KF = 212
V_ONE = 244
V_X = 248
A_OS = 0
A_L = 80
A_VF = 100
A_Q = 132

def S(sig, t, a, r=0): return V_S + sig*40 + t*8 + a*4 + r
def NM(t): return V_NM + 4*t
def QF(t, s): return A_Q + (t*4 + s)*4
def KF(a, s): return V_KF + (a*4 + s)*4
def VF(db): return A_VF + db*4
def O(t, idx):
    return vr(V_OK + t*16 + idx*4, 4) if idx < 4 else ar(A_OS + t*16 + (idx-4)*4, 4)
def L(t): return A_L + 4*t
def ACC(t, d): return V_S + (t*4 + d)*4
def PA(p, d): return V_KF + p*16 + d*4
def PB(p, t): return A_Q + p*20 + t*4

S_K = 12; S_V = 16; S_WS = 20
S_W, S_I, S_J, S_M0 = 24, 25, 26, 27
S_KO0, S_KO1, S_VO0, S_VO1 = 28, 29, 30, 31
S_CNT = 32
S_B, S_H = 33, 34
S_T0, S_T1 = 35, 36
S_X = 40
S_WQ = 44
S_XO = 48
S_WO = 53
S_MX = 57
S_FB = 58
S_SC = 60
S_ST = 64
S_SLOT, S_XCD = 37, 38
S_CO = 39
S_MSK = 62
S_DBG = 84
S_OUT = 88
S_WOR = 92
S_MSK2 = 94
S_WFS = 96
S_OO, S_OW, S_OW2, S_PA0, S_PA1, S_CONS = 4, 5, 6, 7, 8, 9
S_OB = 59
V_POLL = 31
V_WA = 28
V_WB = 29
V_L16 = 30
WOF = 0x1000000
CNTB = 0x2000000
RAW0, RAW1 = 0x4000, 0x10000
RAWB = 0x2400

LDS_K = 0; LDS_V = 0x10000; LDS_SP = 0x20000
HEAD_BYTES = 2048*128*2
WQB = [0x8000, 0xC000, 0x14000]
XB = [0x18000, 0x1D000, 0x22000]
QIMG = 0x1E000
LDS_A = 163840

def f32hex(x): return hex(struct.unpack("<I", struct.pack("<f", x))[0])
SCALE = math.log2(math.e) / math.sqrt(128.0)
T_HI = 2.0**64
T_LO = 2.0**-40

def mfma(d, a, b, c): return f"v_mfma_f32_16x16x32_bf16 {d}, {a}, {b}, {c}"

def qk_mfma(sig, g):
    a = g // 20; s = (g % 20) // 5; t = g % 5
    d = vr(S(sig, t, a), 4)
    c = d if s else vr(NM(t), 4)
    return mfma(d, vr(KF(a, s), 4), ar(QF(t, s), 4), c)
def pv_mfma(sigp, idx):
    db = idx // 5; t = idx % 5
    p = vr(S(sigp, t, 0), 4)
    if db < 8: return mfma(O(t, db), ar(VF(db), 4), p, O(t, db))
    return mfma(ar(L(t), 4), vr(V_ONE, 4), p, ar(L(t), 4))

def exp_op(sig, t, a, r): return f"v_exp_f32 {vr(S(sig,t,a,r))}, {vr(S(sig,t,a,r))}"
def cvt_op(sig, t, a, h):
    return f"v_cvt_pk_bf16_f32 {vr(S(sig,t,0,2*a+h))}, {vr(S(sig,t,a,2*h))}, {vr(S(sig,t,a,2*h+1))}"
def kread(slot, a, s): return f"ds_read_b128 {vr(KF(a,s),4)}, {vr(V_KR+s)} offset:{slot*16384 + a*4096}"
def vread(slot, db, hf): return f"ds_read_b64_tr_b16 {ar(VF(db)+2*hf,2)}, {vr(V_VR+db)} offset:{slot*16384 + hf*4096}"

import os
KV_AUX = " nt"
X_AUX = os.environ.get("X_AUX", "")
WQ_AUX = os.environ.get("WQ_AUX", "")
WO_AUX = os.environ.get("WO_AUX", "")
def dma_ops(kind, slot, grp):
    base = (LDS_K if kind == 'K' else LDS_V) + slot*16384 + grp*8192
    srd = sr(S_K if kind == 'K' else S_V, 4)
    so = sr((S_KO0 if kind == 'K' else S_VO0) + grp)
    v0, v1 = (V_KD0, V_KD1) if kind == 'K' else (V_VD0, V_VD1)
    return (f"s_add_u32 m0, {sr(S_M0)}, {hex(base)}",
            [f"buffer_load_dwordx4 {vr(v0)}, {srd}, {so} offen{KV_AUX} lds",
             f"buffer_load_dwordx4 {vr(v1)}, {srd}, {so} offen offset:1024{KV_AUX} lds"])

def emit_gaps(A, mf, sc, ve):
    for g in range(len(mf)):
        A(mf[g])
        assert len(sc[g]) <= 1, (g, sc[g])
        for x in sc[g]: A(x)
        for x in ve[g]: A(x)

def step(A, n4, last_in_loop=False, loop_label=None):
    sig = n4 & 1; sp = 1 - sig
    NG = 85
    sc = [[] for _ in range(NG)]
    ve = [[] for _ in range(NG)]
    for t in range(5):
        for r in range(4): ve[8*t + 2*r].append(exp_op(sp, t, 1, r))
    vslot = (n4 - 1) & 3
    vr_ops = [vread(vslot, db, hf) for db in range(8) for hf in range(2)]
    k = 0
    for g in range(1, 40, 2):
        if g % 4 == 1:
            if k < 16:
                ve[g].append(vr_ops[k]); k += 1
                if k < 16: ve[g].append(vr_ops[k]); k += 1
        else:
            if k < 16: ve[g].append(vr_ops[k]); k += 1
            t = g // 8; h = (g % 8) // 4
            ve[g].append(cvt_op(sp, t, 1, h))
    assert k == 16
    for t in range(5):
        for r in range(4): ve[40 + 8*t + 2*r].append(exp_op(sig, t, 0, r))
    kslot = (n4 + 1) & 3
    kr_ops = [kread(kslot, a, s) for a in range(2) for s in range(4)]
    k = 0
    for g in range(43, 80, 4):
        if k < 8: ve[g].append(kr_ops[k]); k += 1
        t = (g - 40) // 8; h = ((g - 40) % 8) // 4
        ve[g].append(cvt_op(sig, t, 0, h))
    dk = n4 & 3; dv = (n4 + 2) & 3
    groups = [dma_ops('K', dk, 0), dma_ops('K', dk, 1), dma_ops('V', dv, 0), dma_ops('V', dv, 1)]
    dgaps = [25, 29, 33, 37, 41, 45, 49, 53]
    for q in range(4):
        m0, dd = groups[q]
        g0, g1 = dgaps[2*q], dgaps[2*q+1]
        assert not ve[g0] and not ve[g1], (g0, g1, ve[g0], ve[g1])
        sc[g0-1].append(m0)
        ve[g0].append(dd[0]); ve[g1].append(dd[1])
    sc[2].append(f"s_cmp_lt_u32 {sr(S_KO0)}, {hex(HEAD_BYTES)}")
    sc[3].append(f"s_cselect_b32 {sr(S_K+2)}, {hex(HEAD_BYTES)}, 0")
    sc[4].append(f"s_cmp_lt_u32 {sr(S_VO0)}, {hex(HEAD_BYTES)}")
    sc[5].append(f"s_cselect_b32 {sr(S_V+2)}, {hex(HEAD_BYTES)}, 0")
    sc[56].append(f"s_add_u32 {sr(S_KO0)}, {sr(S_KO0)}, 0x4000")
    sc[57].append(f"s_add_u32 {sr(S_KO1)}, {sr(S_KO1)}, 0x4000")
    sc[58].append(f"s_add_u32 {sr(S_VO0)}, {sr(S_VO0)}, 0x4000")
    sc[59].append(f"s_add_u32 {sr(S_VO1)}, {sr(S_VO1)}, 0x4000")
    sc[39].append("s_waitcnt lgkmcnt(0)")
    if last_in_loop:
        sc[82].append(f"s_sub_u32 {sr(S_CNT)}, {sr(S_CNT)}, 1")
    A("s_waitcnt vmcnt(16) lgkmcnt(0)")
    A("s_barrier")
    mf = [qk_mfma(sig, g) if g < 40 else pv_mfma(sp, g - 40) for g in range(NG)]
    emit_gaps(A, mf, sc, ve)
    if last_in_loop:
        A(f"s_cmp_gt_u32 {sr(S_CNT)}, 1")
        A(f"s_cbranch_scc1 {loop_label}")
        A(f"s_cmp_eq_u32 {sr(S_CNT)}, 0")
        A("s_cbranch_scc1 L_loop_exit")
        A(f"buffer_load_dword v{V_POLL}, off, {sr(S_DBG,4)}, 0 sc1")
        A(f"s_branch {loop_label}")
        A.label("L_loop_exit")

def setup_ids(A, endlabel):
    A(f"""
    s_load_dwordx4 s[4:7], s[0:1], 8
    s_load_dwordx2 s[8:9], s[0:1], 56
    s_load_dwordx2 s[{S_X}:{S_X+1}], s[0:1], 0
    s_load_dwordx2 s[{S_WQ}:{S_WQ+1}], s[0:1], 24
    s_load_dwordx2 s[{S_WOR}:{S_WOR+1}], s[0:1], 32
    s_load_dwordx2 s[{S_OUT}:{S_OUT+1}], s[0:1], 40
    s_load_dwordx2 s[{S_DBG}:{S_DBG+1}], s[0:1], 48
    s_cmp_ge_u32 s2, 256
    s_cbranch_scc1 {endlabel}
    v_lshrrev_b32 v{V_T}, 6, v0
    v_and_b32 v{V_LANE}, 63, v0
    v_readfirstlane_b32 s{S_W}, v{V_T}
    s_and_b32 s3, s2, 7
    s_lshr_b32 s10, s2, 3
    s_mov_b32 s{S_XCD}, s3
    s_mov_b32 s{S_SLOT}, s10
    s_and_b32 s11, s3, 1
    s_lshl_b32 s11, s11, 2
    s_lshr_b32 s{S_T0}, s10, 3
    s_add_u32 s{S_B}, s11, s{S_T0}
    s_lshr_b32 s11, s3, 1
    s_lshl_b32 s11, s11, 3
    s_and_b32 s{S_T0}, s10, 7
    s_add_u32 s{S_H}, s11, s{S_T0}
    s_lshr_b32 s{S_I}, s{S_W}, 1
    s_and_b32 s{S_J}, s{S_W}, 1
    s_lshl_b32 s{S_M0}, s{S_W}, 11
    s_mul_i32 s{S_MX}, s{S_W}, 5120
    s_lshl_b32 s11, s{S_B}, 4
    s_lshr_b32 s{S_T0}, s{S_H}, 1
    s_add_u32 s11, s11, s{S_T0}
    s_lshr_b32 s{S_T1}, s11, 13
    s_lshl_b32 s{S_T0}, s11, 19
    s_mul_i32 s10, s{S_B}, 184320
    s_lshl_b32 s11, s{S_H}, 8
    s_waitcnt lgkmcnt(0)
    s_add_u32 s{S_X}, s{S_X}, s10
    s_addc_u32 s{S_X+1}, s{S_X+1}, 0
    s_mov_b32 s{S_X+2}, 184320
    s_mov_b32 s{S_X+3}, 0x20000
    s_add_u32 s{S_WQ}, s{S_WQ}, s11
    s_addc_u32 s{S_WQ+1}, s{S_WQ+1}, 0
    s_sub_u32 s{S_WQ+2}, {576*8192}, s11
    s_mov_b32 s{S_WQ+3}, 0x20000
    s_add_u32 s{S_K}, s4, s{S_T0}
    s_addc_u32 s{S_K+1}, s5, s{S_T1}
    s_mov_b32 s{S_K+2}, {hex(HEAD_BYTES)}
    s_mov_b32 s{S_K+3}, 0x20000
    s_add_u32 s{S_V}, s6, s{S_T0}
    s_addc_u32 s{S_V+1}, s7, s{S_T1}
    s_mov_b32 s{S_V+2}, {hex(HEAD_BYTES)}
    s_mov_b32 s{S_V+3}, 0x20000
    s_mov_b32 s{S_WS}, s8
    s_mov_b32 s{S_WS+1}, s9
    s_mov_b32 s{S_WS+2}, 0x10000000
    s_mov_b32 s{S_WS+3}, 0x20000
    """)

def setup_dma_addrs(A):
    T = V_X; L_ = V_LANE
    A(f"""
    v_lshrrev_b32 v{T}, 4, v{L_}
    v_and_b32 v{T+1}, 15, v{L_}
    v_lshrrev_b32 v{T+2}, 3, v{L_}
    v_and_b32 v{T+3}, 7, v{L_}
    s_mul_i32 s{S_T0}, s{S_W}, {40*1152}
    s_and_b32 s{S_T1}, s{S_W}, 1
    s_lshl_b32 s{S_T1}, s{S_T1}, 2
    v_mul_u32_u24 v{T+4}, 1152, v{T+2}
    v_add_u32 v{T+4}, s{S_T0}, v{T+4}
    v_xor_b32 v{T+5}, v{T+3}, v{T}
    v_xor_b32 v{T+5}, s{S_T1}, v{T+5}
    v_lshlrev_b32 v{T+6}, 4, v{T+5}
    v_add_u32 v{V_XD0}, v{T+4}, v{T+6}
    v_xor_b32 v{T+6}, 64, v{T+6}
    v_add_u32 v{V_XD1}, v{T+4}, v{T+6}
    """)
    A(f"""
    v_or_b32 v{T+4}, s{S_T1}, v{T}
    v_lshlrev_b32 v{T+4}, 1, v{T+4}
    v_xor_b32 v{T+4}, v{T+4}, v{T+1}
    v_lshlrev_b32 v{T+4}, 4, v{T+4}
    s_lshl_b32 s{S_T0}, s{S_W}, 3
    v_add_u32 v{T+5}, s{S_T0}, v{T}
    v_lshlrev_b32 v{T+6}, 13, v{T+5}
    v_add_u32 v{V_WD}, v{T+4}, v{T+6}
    """)
    for e in range(5): A(f"s_mov_b32 s{S_XO+e}, {e*8192 if e < 4 else 4*9216}")
    for e in range(4): A(f"s_mov_b32 s{S_WO+e}, {(e>>1)*32*8192 + (e&1)*(32768-1024)}")
    for e, (vk, vv) in enumerate([(V_KD0, V_VD0), (V_KD1, V_VD1)]):
        A(f"""
        v_add_u32 v{T+2}, {4*e}, v{T+5}
        v_and_b32 v{T+3}, 15, v{T+2}
        v_xor_b32 v{T+3}, v{T+3}, v{T+1}
        v_lshlrev_b32 v{T+3}, 4, v{T+3}
        v_lshlrev_b32 v{T+4}, 8, v{T+2}
        v_add_u32 v{vk}, v{T+3}, v{T+4}
        v_and_b32 v{T+3}, 7, v{T+2}
        v_lshlrev_b32 v{T+3}, 1, v{T+3}
        v_xor_b32 v{T+3}, v{T+3}, v{T+1}
        v_lshlrev_b32 v{T+3}, 4, v{T+3}
        v_add_u32 v{vv}, v{T+3}, v{T+4}
        """)
        if e:
            A(f"v_subrev_u32 v{vk}, 1024, v{vk}")
            A(f"v_subrev_u32 v{vv}, 1024, v{vv}")

def xdma_ops(u):
    srd = sr(S_X, 4)
    out = []
    for e in range(5):
        m0 = None
        if e == 0: m0 = f"s_add_u32 m0, {sr(S_MX)}, {hex(XB[u])}"
        if e == 4: m0 = f"s_add_u32 m0, {sr(S_MX)}, {hex(XB[u] + 4096)}"
        v = V_XD0 if e % 2 == 0 else V_XD1
        off = f" offset:{e*1024}" if 0 < e < 4 else ""
        out.append((m0, f"buffer_load_dwordx4 {vr(v)}, {srd}, {sr(S_XO+e)} offen{off}{X_AUX} lds"))
    return out
def xadv(): return [f"s_add_u32 {sr(S_XO+e)}, {sr(S_XO+e)}, 128" for e in range(5)]
def wdma_ops(u):
    srd = sr(S_WQ, 4)
    out = []
    for e in range(4):
        m0 = f"s_add_u32 m0, {sr(S_M0)}, {hex(WQB[u] + (e>>1)*8192)}" if e % 2 == 0 else None
        off = " offset:1024" if e & 1 else ""
        out.append((m0, f"buffer_load_dwordx4 {vr(V_WD)}, {srd}, {sr(S_WO+e)} offen{off}{WQ_AUX} lds"))
    return out
def wadv(): return [f"s_add_u32 {sr(S_WO+e)}, {sr(S_WO+e)}, 0x80000" for e in range(4)]
def kvdma_ops(kind, tile_n, slot):
    out = []
    for grp in range(2):
        so = (S_KO0 if kind == 'K' else S_VO0) + grp
        m0, dd = dma_ops(kind, slot, grp)
        out.append(([f"s_mov_b32 s{so}, {hex(tile_n*16384 + grp*8192)}", m0], dd[0]))
        out.append(([], dd[1]))
    return out

def emit_plain(A, ops):
    for pre, d in ops:
        if pre:
            for x in (pre if isinstance(pre, list) else [pre]): A(x)
            A("s_nop 0")
        A(d)

def setup_read_addrs(A):
    T = V_X; L_ = V_LANE
    A(f"""
    v_lshrrev_b32 v{T}, 4, v{L_}
    v_and_b32 v{T+1}, 15, v{L_}
    """)
    A(f"""
    s_mul_i32 s{S_T0}, s{S_I}, {80*128}
    s_add_u32 s{S_T0}, s{S_T0}, {hex(XB[0])}
    v_lshrrev_b32 v{T+2}, 1, v{T+1}
    v_xor_b32 v{T+2}, v{T+2}, v{T}
    v_lshlrev_b32 v{T+2}, 4, v{T+2}
    v_lshlrev_b32 v{T+3}, 7, v{T+1}
    v_add_u32 v{T+3}, s{S_T0}, v{T+3}
    v_add_u32 v{V_XR}, v{T+2}, v{T+3}
    v_xor_b32 v{T+2}, 64, v{T+2}
    v_add_u32 v{V_XR+1}, v{T+2}, v{T+3}
    """)
    A(f"""
    v_lshrrev_b32 v{T+2}, 2, v{T+1}
    v_and_b32 v{T+3}, 1, v{T}
    v_lshlrev_b32 v{T+3}, 2, v{T+3}
    v_or_b32 v{T+3}, v{T+3}, v{T+2}
    v_lshlrev_b32 v{T+4}, 3, v{T}
    v_add_u32 v{T+4}, v{T+4}, v{T+2}
    v_lshlrev_b32 v{T+4}, 8, v{T+4}
    v_and_b32 v{T+5}, 3, v{L_}
    v_lshlrev_b32 v{T+5}, 3, v{T+5}
    v_add_u32 v{T+4}, v{T+4}, v{T+5}
    v_add_u32 v{T+4}, {hex(WQB[0])}, v{T+4}
    s_lshl_b32 s{S_T0}, s{S_J}, 2
    v_xor_b32 v{T+3}, s{S_T0}, v{T+3}
    """)
    for d in range(4):
        A(f"""
        v_xor_b32 v{T+5}, {d}, v{T+3}
        v_lshlrev_b32 v{T+5}, 5, v{T+5}
        v_add_u32 v{V_WR+d}, v{T+4}, v{T+5}
        """)
    A(f"""
    s_mul_i32 s{S_T0}, s{S_I}, 20480
    s_lshl_b32 s{S_T1}, s{S_J}, 11
    s_add_u32 s{S_T0}, s{S_T0}, s{S_T1}
    s_add_u32 s{S_T0}, s{S_T0}, {hex(QIMG)}
    v_lshrrev_b32 v{T+2}, 1, v{T}
    v_lshlrev_b32 v{T+2}, 8, v{T+2}
    v_lshlrev_b32 v{T+3}, 4, v{T+1}
    v_add_u32 v{T+2}, v{T+2}, v{T+3}
    v_and_b32 v{T+3}, 1, v{T}
    v_lshlrev_b32 v{T+3}, 3, v{T+3}
    v_add_u32 v{T+2}, v{T+2}, v{T+3}
    v_add_u32 v{V_QW}, s{S_T0}, v{T+2}
    """)
    A(f"s_lshl_b32 s{S_T0}, s{S_J}, 13")
    for s in range(4):
        A(f"""
        v_add_u32 v{T+2}, {4*s}, v{T}
        v_xor_b32 v{T+2}, v{T+2}, v{T+1}
        v_lshlrev_b32 v{T+2}, 4, v{T+2}
        v_lshlrev_b32 v{T+3}, 8, v{T+1}
        v_add_u32 v{T+2}, v{T+2}, v{T+3}
        v_add_u32 v{V_KR+s}, s{S_T0}, v{T+2}
        """)
    A(f"""
    v_lshrrev_b32 v{T+2}, 2, v{T+1}
    v_lshlrev_b32 v{T+3}, 2, v{T}
    v_add_u32 v{T+2}, v{T+2}, v{T+3}
    v_and_b32 v{T+3}, 7, v{T+2}
    v_lshlrev_b32 v{T+2}, 8, v{T+2}
    v_and_b32 v{T+4}, 3, v{L_}
    v_lshlrev_b32 v{T+4}, 3, v{T+4}
    v_add_u32 v{T+2}, v{T+2}, v{T+4}
    s_add_u32 s{S_T0}, s{S_T0}, {hex(LDS_V)}
    v_add_u32 v{T+2}, s{S_T0}, v{T+2}
    s_lshl_b32 s{S_T1}, s{S_J}, 2
    v_xor_b32 v{T+3}, s{S_T1}, v{T+3}
    """)
    for idx in range(8):
        A(f"""
        v_xor_b32 v{T+4}, {idx}, v{T+3}
        v_lshlrev_b32 v{T+4}, 5, v{T+4}
        v_add_u32 v{V_VR+idx}, v{T+2}, v{T+4}
        """)
    A(f"""
    v_and_b32 v{T+2}, 3, v{L_}
    v_cmp_eq_u32 vcc, 0, v{T+2}
    v_mov_b32 v{T+3}, 0x3f803f80
    s_mov_b32 s{S_SC}, {f32hex(SCALE)}
    s_mov_b32 s{S_SC+1}, {f32hex(SCALE)}
    v_cndmask_b32 v{V_ONE}, 0, v{T+3}, vcc
    v_cndmask_b32 v{V_ONE+1}, 0, v{T+3}, vcc
    v_cndmask_b32 v{V_ONE+2}, 0, v{T+3}, vcc
    v_cndmask_b32 v{V_ONE+3}, 0, v{T+3}, vcc
    """)

def zero_state(A, acc=True, nm=True):
    if acc:
        for r in range(V_S, V_S+80, 2): A(f"v_mov_b64 {vr(r,2)}, 0")
    if nm:
        for r in range(V_NM, V_NM+20, 2): A(f"v_mov_b64 {vr(r,2)}, 0")
    for r in range(V_OK, V_OK+80, 2): A(f"v_mov_b64 {vr(r,2)}, 0")
    A("v_accvgpr_write_b32 a0, 0")
    A("s_nop 1")
    for r in range(1, 100): A(f"v_accvgpr_mov_b32 a{r}, a0")

def xread(u, kap, p, t): return f"ds_read_b128 {ar(PB(p,t),4)}, {vr(V_XR+kap)} offset:{u*0x5000 + t*2048}"
def wread(u, kap, p, d, hf):
    return f"ds_read_b64_tr_b16 {vr(PA(p,d)+2*hf,2)}, {vr(V_WR+d)} offset:{(WQB[u]-WQB[0]) + kap*8192 + hf*1024}"
def p1_reads(u, kap, p):
    g = [[xread(u, kap, p, 0)], [wread(u, kap, p, 0, 0), wread(u, kap, p, 0, 1)]]
    g += [[xread(u, kap, p, t)] for t in range(1, 5)]
    g += [[wread(u, kap, p, d, 0), wread(u, kap, p, d, 1)] for d in range(1, 4)]
    return g
def p1_mfma(p, g):
    d = g // 5; t = g % 5
    a = vr(ACC(t, d), 4)
    return mfma(a, vr(PA(p, d), 4), ar(PB(p, t), 4), a)

def p1_half(A, p, reads, dmas, advs, extra=None):
    sc = [[] for _ in range(20)]; ve = [[] for _ in range(20)]
    for k, grp in enumerate(reads): ve[k] = list(grp)
    g = 10
    pend = []
    slots = list(range(20))
    dg = []
    n = len(dmas)
    gaps = [10, 12, 14, 16, 18][:n] if n <= 5 else None
    assert gaps is not None
    used = set()
    for (pre, d), gg in zip(dmas, gaps):
        pre = [] if pre is None else (pre if isinstance(pre, list) else [pre])
        assert len(pre) <= 2
        for k, x in enumerate(pre):
            sc[gg - len(pre) + k].append(x)
        ve[gg].append(d)
    k = 0
    for gg in range(0, 8):
        if k < len(advs) and not sc[gg]:
            sc[gg].append(advs[k]); k += 1
    assert k == len(advs)
    for gg, ops in (extra or {}).items():
        assert not any(o.startswith("buffer_") for o in ve[gg]), (gg, ve[gg])
        ve[gg] += ops
        assert len(ve[gg]) <= 2, (gg, ve[gg])
    mf = [p1_mfma(p, g) for g in range(20)]
    emit_gaps(A, mf, sc, ve)

def p1_chunk(A, u, first_dmas, first_advs, vm_mid, second_dmas, second_advs, last=False, extra1=None, extra2=None):
    p1_half(A, 0, p1_reads(u, 1, 1), first_dmas, first_advs, extra1)
    A(f"s_waitcnt vmcnt({vm_mid}) lgkmcnt(0)" if vm_mid is not None else "s_waitcnt lgkmcnt(0)")
    A("s_barrier")
    p1_half(A, 1, [] if last else p1_reads((u+1) % 3, 0, 0), second_dmas, second_advs, extra2)
    if not last: A("s_waitcnt lgkmcnt(0)")

def wof_dma_setup_and_issue(A):
    T = V_X; L_ = V_LANE
    A(f"""
    s_lshr_b32 s10, s2, 1
    s_and_b32 s11, s2, 1
    s_mul_i32 s{S_T0}, s10, {32*1152}
    s_mul_i32 s{S_T1}, s11, 576
    s_add_u32 s{S_T0}, s{S_T0}, s{S_T1}
    s_add_u32 s{S_WOR}, s{S_WOR}, s{S_T0}
    s_addc_u32 s{S_WOR+1}, s{S_WOR+1}, 0
    s_sub_u32 s{S_WOR+2}, {4096*1152}, s{S_T0}
    s_mov_b32 s{S_WOR+3}, 0x20000
    v_lshrrev_b32 v{T}, 5, v{L_}
    v_and_b32 v{T+1}, 31, v{L_}
    v_lshlrev_b32 v{T+2}, 1, v{T}
    v_xor_b32 v{T+1}, v{T+1}, v{T+2}
    v_lshlrev_b32 v{T+1}, 4, v{T+1}
    s_lshl_b32 s{S_T0}, s{S_W}, 3
    v_add_u32 v{T}, s{S_T0}, v{T}
    v_mul_u32_u24 v{T}, 1152, v{T}
    v_add_u32 v{T}, v{T}, v{T+1}
    v_lshrrev_b32 v{T+2}, 2, v{L_}
    s_lshl_b32 s{S_T0}, s{S_J}, 4
    v_add_u32 v{T+2}, s{S_T0}, v{T+2}
    v_mul_u32_u24 v{T+2}, 1152, v{T+2}
    v_and_b32 v{T+3}, 3, v{L_}
    v_lshlrev_b32 v{T+3}, 4, v{T+3}
    v_add_u32 v{T+2}, v{T+2}, v{T+3}
    v_add_u32 v{T+2}, 512, v{T+2}
    s_mul_i32 s{S_T0}, s{S_I}, {RAW1-RAW0}
    s_mul_i32 s{S_T1}, s{S_J}, 4352
    s_add_u32 s{S_T0}, s{S_T0}, s{S_T1}
    s_add_u32 m0, s{S_T0}, {hex(RAW0)}
    """)
    for e in range(4):
        A(f"s_movk_i32 s{S_T1}, {e*1216}")
        off = f" offset:{e*1088}" if e else ""
        A(f"buffer_load_dwordx4 v{T}, {sr(S_WOR,4)}, s{S_T1} offen{off}{WO_AUX} lds")
    A(f"""
    s_mul_i32 s{S_T0}, s{S_J}, {RAW1-RAW0}
    s_add_u32 m0, s{S_T0}, {hex(RAW0+RAWB)}
    s_nop 0
    buffer_load_dwordx4 v{T+2}, {sr(S_WOR,4)}, 0 offen{WO_AUX} lds
    """)

def wof_addr_setup(A):
    T = V_X; L_ = V_LANE
    A(f"""
    v_lshrrev_b32 v{T}, 5, v{L_}
    v_mul_u32_u24 v{T}, 4352, v{T}
    v_lshrrev_b32 v{T+1}, 3, v{L_}
    v_and_b32 v{T+1}, 3, v{T+1}
    v_mul_u32_u24 v{T+1}, 1088, v{T+1}
    v_add_u32 v{T}, v{T}, v{T+1}
    v_lshrrev_b32 v{T+1}, 2, v{L_}
    v_and_b32 v{T+2}, 1, v{T+1}
    v_lshlrev_b32 v{T+3}, 9, v{T+2}
    v_add_u32 v{T}, v{T}, v{T+3}
    v_xor_b32 v{T+2}, s{S_W}, v{T+2}
    v_lshlrev_b32 v{T+2}, 5, v{T+2}
    v_add_u32 v{T}, v{T}, v{T+2}
    v_and_b32 v{T+2}, 3, v{L_}
    v_lshlrev_b32 v{T+2}, 3, v{T+2}
    v_add_u32 v{T}, v{T}, v{T+2}
    v_add_u32 v{V_WA}, {hex(RAW0)}, v{T}
    v_lshlrev_b32 v{T+1}, 6, v{T+1}
    v_add_u32 v{T+1}, v{T+1}, v{T+2}
    s_lshl_b32 s{S_T0}, s{S_J}, 5
    s_add_u32 s{S_T0}, s{S_T0}, {hex(RAW0+RAWB)}
    v_add_u32 v{V_WB}, s{S_T0}, v{T+1}
    v_lshlrev_b32 v{V_L16}, 4, v{L_}
    s_lshr_b32 s10, s2, 1
    s_and_b32 s11, s2, 1
    s_mul_i32 s11, s11, 18
    s_add_u32 s11, s11, s{S_W}
    s_lshl_b32 s11, s11, 7
    s_add_u32 s11, s11, s10
    s_lshl_b32 s11, s11, 10
    s_add_u32 s{S_WFS}, s11, {hex(WOF)}
    s_add_u32 s{S_WFS+1}, s{S_WFS}, 0x80000
    s_add_u32 s{S_WFS+2}, s{S_WFS+1}, 0x80000
    s_add_u32 s{S_WFS+3}, s{S_WFS+2}, 0x80000
    s_add_u32 s{S_WFS+4}, s{S_WFS+3}, 0x80000
    s_cmp_lt_u32 s{S_W}, 2
    s_cselect_b32 s{S_WFS+4}, s{S_WFS+4}, 0x10000000
    """)

def wof_reads():
    ex = {}
    for e in range(5):
        dst = A_VF + 4*e
        if e < 4: ops = [f"ds_read_b64_tr_b16 {ar(dst+2*hf,2)}, v{V_WA} offset:{e*128 + hf*(RAW1-RAW0)}" for hf in range(2)]
        else: ops = [f"ds_read_b64_tr_b16 {ar(dst+2*hf,2)}, v{V_WB} offset:{hf*(RAW1-RAW0)}" for hf in range(2)]
        ex[9 + 2*e] = ops
    return ex
def wof_stores():
    return {9 + 2*e: [f"buffer_store_dwordx4 {ar(A_VF+4*e,4)}, v{V_L16}, {sr(S_WS,4)}, s{S_WFS+e} offen sc1"] for e in range(5)}

def phase_o_setup(A):
    A(f"""
    s_mul_i32 s10, s{S_SLOT}, 43
    s_lshr_b32 s10, s10, 8
    s_lshr_b32 s11, s{S_XCD}, 1
    s_mul_i32 s11, s11, 5
    s_add_u32 s11, s11, s10
    s_mul_i32 s10, s10, 6
    s_sub_u32 s10, s{S_SLOT}, s10
    s_and_b32 s{S_T0}, s{S_XCD}, 1
    s_mul_i32 s{S_T0}, s{S_T0}, 6
    s_add_u32 s10, s10, s{S_T0}
    s_lshl_b32 s{S_OO}, s11, 19
    s_mul_i32 s{S_OW}, s10, {3*131072}
    s_add_u32 s{S_OW}, s{S_OW}, {hex(WOF)}
    s_mul_i32 s{S_T0}, s11, {64*1152}
    s_mul_i32 s{S_T1}, s10, 96
    s_add_u32 s{S_T0}, s{S_T0}, s{S_T1}
    s_add_u32 s{S_OUT}, s{S_OUT}, s{S_T0}
    s_addc_u32 s{S_OUT+1}, s{S_OUT+1}, 0
    s_sub_u32 s{S_OUT+2}, {1280*1152}, s{S_T0}
    s_mov_b32 s{S_OUT+3}, 0x20000
    s_mov_b32 s{S_DBG+2}, 256
    s_mov_b32 s{S_DBG+3}, 0x20000
    s_cmp_lt_u32 s{S_SLOT}, 30
    s_cselect_b32 s{S_CONS}, 1, 0
    s_lshl_b32 s11, s11, 2
    """)
    def caddr(dst, b):
        A(f"""
        s_lshl_b32 s{S_T0}, s{b}, 5
        s_add_u32 s{S_T0}, s{S_T0}, s{S_SLOT}
        s_lshl_b32 s{S_T0}, s{S_T0}, 7
        s_add_u32 s{dst}, s{S_T0}, {hex(CNTB)}
        """)
    A(f"s_mul_i32 s10, s11, 103\ns_lshr_b32 s10, s10, 10")
    caddr(S_PA0, 10)
    A(f"s_add_u32 s11, s11, 3\ns_mul_i32 s10, s11, 103\ns_lshr_b32 s10, s10, 10")
    caddr(S_PA1, 10)
    A(f"s_lshl_b32 s{S_CO}, s{S_B}, 12\ns_add_u32 s{S_CO}, s{S_CO}, {hex(CNTB)}")
    A(f"""
    s_lshl_b32 s10, s2, 7
    s_add_u32 s10, s10, {hex(CNTB)}
    v_and_b32 v{V_X}, 31, v{V_LANE}
    v_lshlrev_b32 v{V_X}, 2, v{V_X}
    v_mov_b32 v{V_X+1}, 0
    buffer_store_dword v{V_X+1}, v{V_X}, {sr(S_WS,4)}, s10 offen sc1
    """)
    A(f"""
    s_mul_i32 s{S_T0}, s{S_B}, 10
    s_mul_i32 s{S_T1}, s{S_I}, 5
    s_add_u32 s{S_T0}, s{S_T0}, s{S_T1}
    s_lshl_b32 s{S_T0}, s{S_T0}, 5
    s_add_u32 s{S_T0}, s{S_T0}, s{S_H}
    s_lshl_b32 s{S_T0}, s{S_T0}, 1
    s_add_u32 s{S_T0}, s{S_T0}, s{S_J}
    s_lshl_b32 s{S_OB}, s{S_T0}, 11
    """)

def p1(A):
    A("s_waitcnt vmcnt(24)")
    A("s_barrier")
    stamp(A, 'first')
    for grp in p1_reads(0, 0, 0):
        for x in grp: A(x)
    A(f"s_mov_b32 s{S_CNT}, 2")
    A("s_waitcnt lgkmcnt(0)")
    A(".p2align 5")
    A.label("L_p1")
    i0 = len(A.lines)
    for u in range(3):
        p1_chunk(A, u, wdma_ops((u+2) % 3), xadv(), 9, xdma_ops(u), wadv())
    A(f"s_sub_u32 s{S_CNT}, s{S_CNT}, 1")
    A(f"s_cmp_lg_u32 s{S_CNT}, 0")
    A("s_cbranch_scc1 L_p1")
    i1 = len(A.lines)
    for p in check_hazards(A.lines[i0:i1]*2, "p1loop"): print("HAZARD", p)
    stamp(A, 'c6')
    p1_chunk(A, 0, wdma_ops(2), [], 9, kvdma_ops('K', 1, 1), [], extra1=wof_reads(), extra2=wof_stores())
    stamp(A, 'c7')
    p1_chunk(A, 1, kvdma_ops('V', 0, 0), [], 13, kvdma_ops('K', 2, 2), [])
    p1_chunk(A, 2, kvdma_ops('K', 3, 3), [], None, kvdma_ops('V', 1, 1), [], last=True)

def q_exchange(A):
    A("s_nop 7")
    for d in range(4):
        for t in range(5):
            a = ACC(t, d)
            A(f"v_pk_mul_f32 {vr(a,2)}, {vr(a,2)}, {sr(S_SC,2)}")
            A(f"v_pk_mul_f32 {vr(a+2,2)}, {vr(a+2,2)}, {sr(S_SC,2)}")
            A(f"v_cvt_pk_bf16_f32 {vr(a)}, {vr(a)}, {vr(a+1)}")
            A(f"v_cvt_pk_bf16_f32 {vr(a+1)}, {vr(a+2)}, {vr(a+3)}")
            A(f"ds_write_b64 {vr(V_QW)}, {vr(a,2)} offset:{t*4096 + (d>>1)*1024 + (d&1)*512}")
    A(f"""
    s_mul_i32 s{S_T0}, s{S_I}, 20480
    s_add_u32 s{S_T0}, s{S_T0}, {hex(QIMG)}
    v_lshlrev_b32 v{V_T}, 4, v{V_LANE}
    v_add_u32 v{V_T}, s{S_T0}, v{V_T}
    s_waitcnt vmcnt(16) lgkmcnt(0)
    s_barrier
    """)
    for t in range(5):
        for s in range(4):
            A(f"ds_read_b128 {ar(QF(t,s),4)}, v{V_T} offset:{(t*4+s)*1024}")
    A(f"""
    s_cmp_lg_u32 s{S_W}, 0
    s_cbranch_scc1 L_no_arr_w
    s_mov_b64 exec, 1
    v_mov_b32 v{V_X}, 1
    buffer_atomic_add v{V_X}, off, {sr(S_DBG,4)}, 0
    s_mov_b64 exec, -1
    """)
    A.label("L_no_arr_w")

def qk0(A):
    for a in range(2):
        for s in range(4): A(kread(0, a, s))
    A("s_waitcnt lgkmcnt(0)")
    sc = [[] for _ in range(40)]; ve = [[] for _ in range(40)]
    k = 0
    for g in range(24, 40):
        t, r = k // 4, k % 4
        ve[g].append(exp_op(0, t, 0, r)); k += 1
    emit_gaps(A, [qk_mfma(0, g) for g in range(40)], sc, ve)
    for a in range(2):
        for s in range(4): A(kread(1, a, s))
    for r in range(4): A(exp_op(0, 4, 0, r))
    for t in range(5):
        A(cvt_op(0, t, 0, 0)); A(cvt_op(0, t, 0, 1))
    A("s_waitcnt lgkmcnt(0)\ns_barrier")
    emit_plain(A, kvdma_ops('K', 4, 0)); emit_plain(A, kvdma_ops('V', 2, 2))
    A(f"""
    s_mov_b32 s{S_KO0}, {hex(5*16384)}
    s_mov_b32 s{S_KO1}, {hex(5*16384+8192)}
    s_mov_b32 s{S_VO0}, {hex(3*16384)}
    s_mov_b32 s{S_VO1}, {hex(3*16384+8192)}
    s_mov_b32 s{S_CNT}, 8
    """)

def fallback(A):
    T = V_X; M = V_T
    A.label("L_fallback")
    A("s_waitcnt vmcnt(0) lgkmcnt(0)\ns_barrier")
    for t in range(5):
        A(f"v_mov_b32 v{V_X+t}, 0xff800000")
    for r in range(V_NM, V_NM+20, 2): A(f"v_mov_b64 {vr(r,2)}, 0")
    A(f"s_mov_b32 s{S_K+2}, {hex(HEAD_BYTES)}\ns_mov_b32 s{S_V+2}, {hex(HEAD_BYTES)}")
    A(f"s_mov_b32 s{S_KO0}, 0\ns_mov_b32 s{S_KO1}, 0x2000")
    A.label("L_fb_loop")
    for grp in range(2):
        m0, dd = dma_ops('K', 0, grp)
        A(m0); A("s_nop 0"); A(dd[0]); A(dd[1])
    A("s_waitcnt vmcnt(0)\ns_barrier")
    for a in range(2):
        for s in range(4): A(kread(0, a, s))
    A("s_waitcnt lgkmcnt(0)\ns_barrier")
    for g in range(40): A(qk_mfma(0, g))
    A("s_nop 7")
    for t in range(5):
        s = [S(0, t, a, r) for a in range(2) for r in range(4)]
        for k in range(0, 8, 2):
            A(f"v_max3_f32 v{V_X+t}, v{s[k]}, v{s[k+1]}, v{V_X+t}")
    A(f"""
    s_add_u32 s{S_KO0}, s{S_KO0}, 0x4000
    s_add_u32 s{S_KO1}, s{S_KO1}, 0x4000
    s_cmp_lt_u32 s{S_KO0}, {hex(HEAD_BYTES)}
    s_cbranch_scc1 L_fb_loop
    """)
    for t in range(5):
        x = V_X + t; y = V_X + 5
        A(f"""
        v_mov_b32 v{y}, v{x}
        s_nop 1
        v_permlane32_swap_b32 v{x}, v{y}
        v_max_f32 v{x}, v{x}, v{y}
        v_mov_b32 v{y}, v{x}
        s_nop 1
        v_permlane16_swap_b32 v{x}, v{y}
        v_max_f32 v{x}, v{x}, v{y}
        """)
    A(f"""
    v_lshlrev_b32 v{V_T}, 2, v{V_LANE}
    s_mul_i32 s{S_T0}, s{S_W}, 1280
    s_add_u32 s{S_T0}, s{S_T0}, {hex(LDS_SP)}
    v_add_u32 v{V_T+1}, s{S_T0}, v{V_T}
    s_xor_b32 s{S_T1}, s{S_W}, 1
    s_mul_i32 s{S_T1}, s{S_T1}, 1280
    s_add_u32 s{S_T1}, s{S_T1}, {hex(LDS_SP)}
    v_add_u32 v{V_T+2}, s{S_T1}, v{V_T}
    """)
    for t in range(5): A(f"ds_write_b32 v{V_T+1}, v{V_X+t} offset:{t*256}")
    A("s_waitcnt lgkmcnt(0)\ns_barrier")
    for t in range(5): A(f"ds_read_b32 v{V_S+t}, v{V_T+2} offset:{t*256}")
    A("s_waitcnt lgkmcnt(0)")
    for t in range(5):
        A(f"v_max_f32 v{V_X+t}, v{V_X+t}, v{V_S+t}")
        for r in range(4): A(f"v_sub_f32 v{NM(t)+r}, 0, v{V_X+t}")
    zero_state(A, acc=False, nm=False)
    emit_plain(A, kvdma_ops('K', 0, 0)); emit_plain(A, kvdma_ops('K', 1, 1)); emit_plain(A, kvdma_ops('V', 0, 0))
    emit_plain(A, kvdma_ops('K', 2, 2)); emit_plain(A, kvdma_ops('K', 3, 3)); emit_plain(A, kvdma_ops('V', 1, 1))
    A(f"s_mov_b32 s{S_FB}, 1")
    A("s_waitcnt vmcnt(0)\ns_barrier\ns_branch L_qk0")

import os
EXP = os.environ.get('EXP', '')
NPRE = int(os.environ.get('NPRE', 6))
P1K = int(os.environ.get('P1K', 17))
NAG = 21
RING = int(os.environ.get('RING', 10))
SPIN_MAX = 1 << 17

class VMQ:
    def __init__(self, A, limit=60):
        self.A = A; self.n = 0; self.last = {}; self.done = 0; self.limit = limit
    def issue(self, tag, text):
        if self.n - self.done >= self.limit:
            keep = self.limit - 4
            self.A(f"s_waitcnt vmcnt({keep})"); self.done = self.n - keep
        self.A(text); self.n += 1; self.last[tag] = self.n
    def wait(self, *tags, extra=""):
        tgt = max(self.last[t] for t in tags)
        if tgt <= self.done:
            if extra: self.A(f"s_waitcnt {extra}")
            return
        N = self.n - tgt
        assert 0 <= N <= 63
        self.A(f"s_waitcnt vmcnt({N}) {extra}".strip()); self.done = tgt

V_OA = 1
V_OO = 5
V_PA = 6
V_PV = 7
V_L = 9
V_ACC = 12
V_RING = 60
def WF(i, nt): return (i % NAG)*12 + nt*4
def OB(i, tl): return V_RING + (i % RING)*16 + tl*4
def ACCO(tl, nt): return V_ACC + (tl*3 + nt)*4

class SOff:
    def __init__(self, A, reg): self.A = A; self.reg = reg; self.g = 0
    def at(self, i):
        g = i >> 2
        if g != self.g:
            self.A(f"s_add_u32 s{self.reg}, s{self.reg}, {(g - self.g)*4096}"); self.g = g
        return f"s{self.reg}", (f" offset:{(i & 3)*1024}" if i & 3 else "")

def epilogue(A, stamps):
    T = V_X
    XL = LDS_SP
    XF = LDS_SP + 5120
    R = V_S
    A("s_nop 7")
    for t in range(5): A(f"v_accvgpr_read_b32 v{V_KF+t}, a{L(t)}")
    A(f"""
    s_mov_b32 s{S_T0}, {f32hex(T_HI)}
    s_mov_b32 s{S_T1}, {f32hex(T_LO)}
    v_max3_f32 v{T}, v{V_KF}, v{V_KF+1}, v{V_KF+2}
    v_max3_f32 v{T}, v{T}, v{V_KF+3}, v{V_KF+4}
    v_min3_f32 v{T+1}, v{V_KF}, v{V_KF+1}, v{V_KF+2}
    v_min3_f32 v{T+1}, v{T+1}, v{V_KF+3}, v{V_KF+4}
    v_add_f32 v{T+2}, v{V_KF}, v{V_KF+1}
    v_add_f32 v{T+3}, v{V_KF+2}, v{V_KF+3}
    v_add_f32 v{T+2}, v{T+2}, v{V_KF+4}
    v_add_f32 v{T+2}, v{T+2}, v{T+3}
    v_cmp_nge_f32 vcc, s{S_T0}, v{T}
    v_cmp_nle_f32 s[{S_MSK}:{S_MSK+1}], s{S_T1}, v{T+1}
    v_cmp_u_f32 s[{S_MSK2}:{S_MSK2+1}], v{T+2}, v{T+2}
    s_or_b64 vcc, vcc, s[{S_MSK}:{S_MSK+1}]
    s_or_b64 vcc, vcc, s[{S_MSK2}:{S_MSK2+1}]
    s_cmp_lg_u64 vcc, 0
    s_cselect_b32 s{S_T0}, 1, 0
    v_mov_b32 v{T+3}, s{S_T0}
    """)
    A(f"""
    v_lshlrev_b32 v{V_T}, 2, v{V_LANE}
    s_mul_i32 s{S_T0}, s{S_W}, 1280
    s_add_u32 s{S_T0}, s{S_T0}, {hex(XL)}
    v_add_u32 v{V_T+1}, s{S_T0}, v{V_T}
    s_xor_b32 s{S_T1}, s{S_W}, 1
    s_mul_i32 s{S_T1}, s{S_T1}, 1280
    s_add_u32 s{S_T1}, s{S_T1}, {hex(XL)}
    v_add_u32 v{V_T+2}, s{S_T1}, v{V_T}
    s_lshl_b32 s{S_T0}, s{S_W}, 2
    s_add_u32 s{S_T0}, s{S_T0}, {hex(XF)}
    v_mov_b32 v{T+4}, s{S_T0}
    v_mov_b32 v{T+5}, {hex(XF)}
    v_lshlrev_b32 v{V_T}, 4, v{V_LANE}
    s_mul_i32 s{S_T0}, s{S_W}, 20480
    v_add_u32 v{T+6}, s{S_T0}, v{V_T}
    s_xor_b32 s{S_T1}, s{S_W}, 1
    s_mul_i32 s{S_T1}, s{S_T1}, 20480
    v_add_u32 v{T+7}, s{S_T1}, v{V_T}
    s_waitcnt vmcnt(0) lgkmcnt(0)
    s_barrier
    """)
    for t in range(5): A(f"ds_write_b32 v{V_T+1}, v{V_KF+t} offset:{t*256}")
    A(f"ds_write_b32 v{T+4}, v{T+3}")
    for t in range(5):
        for q in range(4):
            A(f"ds_write_b128 v{T+6}, {O(t, 4+q)} offset:{(t*4+q)*1024}")
    A("s_waitcnt lgkmcnt(0)\ns_barrier")
    A(f"ds_read_b128 {vr(V_KF+8,4)}, v{T+5}")
    for t in range(5): A(f"ds_read_b32 v{V_KF+16+2*t}, v{V_T+2} offset:{t*256}")
    for t in range(5):
        for q in range(4):
            A(f"ds_read_b128 {vr(R+(t*4+q)*4,4)}, v{T+7} offset:{(t*4+q)*1024}")
    A(f"""
    s_waitcnt lgkmcnt(14)
    v_or3_b32 v{T}, v{V_KF+8}, v{V_KF+9}, v{V_KF+10}
    v_or_b32 v{T}, v{T}, v{V_KF+11}
    s_nop 0
    v_readfirstlane_b32 s{S_T1}, v{T}
    s_nop 0
    s_andn2_b32 s{S_T1}, s{S_T1}, s{S_FB}
    s_cmp_lg_u32 s{S_T1}, 0
    s_cbranch_scc1 L_fallback
    """)
    for t in range(5):
        A(f"v_add_f32 v{V_KF+16+2*t}, v{V_KF+16+2*t}, v{V_KF+t}")
    for t in range(5):
        A(f"v_rcp_f32 v{V_KF+16+2*t}, v{V_KF+16+2*t}")
    q = VMQ(A)
    for t in range(5):
        A(f"s_waitcnt lgkmcnt({min(14, 16-4*t)})" if t < 4 else "s_waitcnt lgkmcnt(0)")
        inv = V_KF + 16 + 2*t
        for mm in range(2):
            for e in range(2):
                qq = 2*mm + e
                o = V_OK + t*16 + qq*4; r = R + (t*4+qq)*4
                A(f"v_pk_add_f32 {vr(o,2)}, {vr(o,2)}, {vr(r,2)}")
                A(f"v_pk_add_f32 {vr(o+2,2)}, {vr(o+2,2)}, {vr(r+2,2)}")
                A(f"v_pk_mul_f32 {vr(o,2)}, {vr(o,2)}, {vr(inv,2)} op_sel_hi:[1,0]")
                A(f"v_pk_mul_f32 {vr(o+2,2)}, {vr(o+2,2)}, {vr(inv,2)} op_sel_hi:[1,0]")
            o = V_OK + t*16 + mm*8
            A(f"v_cvt_pk_bf16_f32 v{o}, v{o}, v{o+1}")
            A(f"v_cvt_pk_bf16_f32 v{o+1}, v{o+2}, v{o+3}")
            A(f"v_cvt_pk_bf16_f32 v{o+2}, v{o+4}, v{o+5}")
            A(f"v_cvt_pk_bf16_f32 v{o+3}, v{o+6}, v{o+7}")
            A(f"s_add_u32 s{S_T1}, s{S_OB}, {t*32*4*1024 + mm*1024}")
            q.issue('st', f"buffer_store_dwordx4 {vr(o,4)}, v{V_T}, {sr(S_WS,4)}, s{S_T1} offen sc1")
    stamp(A, 'stores')
    A(f"""
    v_readfirstlane_b32 s{S_T0}, v{V_POLL}
    s_lshl_b32 s{S_T1}, s{S_W}, 15
    v_add_u32 v{V_OA}, s{S_T1}, v{V_T}
    v_add_u32 v{V_OA+1}, 0x20000, v{V_OA}
    v_add_u32 v{V_OA+2}, 0x40000, v{V_OA}
    v_add_u32 v{V_OA+3}, 0x60000, v{V_OA}
    s_cmp_lg_u32 s{S_T0}, 256
    s_cbranch_scc1 L_wspin
    """)
    A.label("L_wok")
    A(f"s_cmp_eq_u32 s{S_CONS}, 0\ns_cbranch_scc1 L_nocons")
    A(f"s_mov_b32 s{S_OW2}, s{S_OW}")
    sw = SOff(A, S_OW)
    def wload(i, so):
        if EXP == 'nowf' or (EXP == 'nolate' and i >= NAG):
            q.last[('w', i)] = 0
            return
        reg, off = so.at(i)
        for nt in range(3):
            q.issue(('w', i), f"buffer_load_dwordx4 {ar(WF(i,nt),4)}, v{V_OA+nt}, {sr(S_WS,4)}, {reg} offen{off} sc1")
    for i in range(NPRE): wload(i, sw)
    q.wait('st')
    A("s_barrier")
    A(f"""
    s_cmp_lg_u32 s{S_W}, 0
    s_cbranch_scc1 L_no_arr_o
    s_mov_b32 exec_hi, 0
    v_mov_b32 v{V_PV}, 1
    v_lshlrev_b32 v{V_PV+1}, 7, v{V_LANE}
    buffer_atomic_add v{V_PV}, v{V_PV+1}, {sr(S_WS,4)}, s{S_CO} offen
    s_mov_b64 exec, -1
    """)
    A.label("L_no_arr_o")
    stamp(A, 'arr')
    A(f"""
    v_mov_b32 v{V_PA}, s{S_PA0}
    v_mov_b32 v{V_L}, v{V_T}
    v_and_b32 v{V_OO}, 15, v{V_LANE}
    v_writelane_b32 v{V_PA}, s{S_PA1}, 1
    s_lshl_b32 s{S_T0}, s{S_W}, 4
    v_add_u32 v{V_OO}, s{S_T0}, v{V_OO}
    v_mul_u32_u24 v{V_OO}, 1152, v{V_OO}
    v_lshrrev_b32 v{V_PV+1}, 4, v{V_LANE}
    v_lshlrev_b32 v{V_PV+1}, 3, v{V_PV+1}
    v_add_u32 v{V_OO}, v{V_OO}, v{V_PV+1}
    """)
    for i in range(NPRE, P1K): wload(i, sw)
    A(f"s_cmp_lg_u32 s{S_W}, 0\ns_cbranch_scc1 L_poll_skip1")
    A(f"buffer_load_dword v{V_PV}, v{V_PA}, {sr(S_WS,4)}, 0 offen sc1")
    A.label("L_poll_skip1")
    n0 = q.n
    for i in range(P1K, NAG): wload(i, sw)
    nB = q.n - n0
    A(f"""
    s_cmp_lg_u32 s{S_W}, 0
    s_cbranch_scc1 L_poll_done
    s_mov_b32 s{S_T1}, {SPIN_MAX}
    s_waitcnt vmcnt({nB})
    """)
    A.label("L_poll_chk")
    A(f"""
    v_cmp_eq_u32 vcc, 32, v{V_PV}
    s_nop 1
    s_cmp_eq_u64 vcc, -1
    s_cbranch_scc1 L_poll_done
    s_sub_u32 s{S_T1}, s{S_T1}, 1
    s_cmp_eq_u32 s{S_T1}, 0
    s_cbranch_scc1 L_poll_done
    s_sleep 2
    buffer_load_dword v{V_PV}, v{V_PA}, {sr(S_WS,4)}, 0 offen sc1
    s_waitcnt vmcnt(0)
    s_branch L_poll_chk
    """)
    A.label("L_poll_done")
    A("s_barrier")
    stamp(A, 'sync')
    so = SOff(A, S_OO)
    def oload(i):
        reg, off = so.at(i)
        for tl in range(4):
            q.issue(('o', i), f"buffer_load_dwordx4 {vr(OB(i,tl),4)}, v{V_OA+tl}, {sr(S_WS,4)}, {reg} offen{off} sc1")
    for i in range(RING): oload(i)
    sw2 = SOff(A, S_OW2)
    for i in range(32):
        q.wait(('o', i), ('w', i))
        for nt in range(3):
            for tl in range(4):
                a = vr(ACCO(tl, nt), 4)
                A(mfma(a, ar(WF(i, nt), 4), vr(OB(i, tl), 4), a if i else "0"))
        if i + RING < 32: oload(i + RING)
        if i + NAG < 32: wload(i + NAG, sw2)
    stamp(A, 'oend')
    A(f"""
    s_mul_i32 s{S_T0}, s{S_W}, 12288
    v_add_u32 v{V_PV}, s{S_T0}, v{V_L}
    s_mul_i32 s{S_T0}, s{S_W}, 3072
    v_add_u32 v{V_PV+1}, s{S_T0}, v{V_L}
    s_nop 4
    """)
    for tl in range(4):
        for nt in range(3):
            A(f"ds_write_b128 v{V_PV}, {vr(ACCO(tl,nt),4)} offset:{(tl*3+nt)*1024}")
    A("s_waitcnt lgkmcnt(0)\ns_barrier")
    RR = V_RING
    for nt in range(3):
        for w in range(4):
            A(f"ds_read_b128 {vr(RR+(nt*4+w)*4,4)}, v{V_PV+1} offset:{w*12288 + nt*1024}")
    for nt in range(3):
        A(f"s_waitcnt lgkmcnt({8 - 4*nt})")
        a = RR + nt*16
        A(f"v_pk_add_f32 {vr(a,2)}, {vr(a,2)}, {vr(a+4,2)}")
        A(f"v_pk_add_f32 {vr(a+2,2)}, {vr(a+2,2)}, {vr(a+6,2)}")
        A(f"v_pk_add_f32 {vr(a+8,2)}, {vr(a+8,2)}, {vr(a+12,2)}")
        A(f"v_pk_add_f32 {vr(a+10,2)}, {vr(a+10,2)}, {vr(a+14,2)}")
        A(f"v_pk_add_f32 {vr(a,2)}, {vr(a,2)}, {vr(a+8,2)}")
        A(f"v_pk_add_f32 {vr(a+2,2)}, {vr(a+2,2)}, {vr(a+10,2)}")
        A(f"v_cvt_pk_bf16_f32 v{a}, v{a}, v{a+1}")
        A(f"v_cvt_pk_bf16_f32 v{a+1}, v{a+2}, v{a+3}")
        A(f"buffer_store_dwordx2 {vr(a,2)}, v{V_OO}, {sr(S_OUT,4)}, 0 offen offset:{nt*32}")
    if stamps: write_stamps(A)
    A("s_endpgm")
    A.label("L_nocons")
    A(f"""
    s_waitcnt vmcnt(0)
    s_barrier
    s_cmp_lg_u32 s{S_W}, 0
    s_cbranch_scc1 L_a_end
    s_mov_b32 exec_hi, 0
    v_mov_b32 v{V_PV}, 1
    v_lshlrev_b32 v{V_PV+1}, 7, v{V_LANE}
    buffer_atomic_add v{V_PV}, v{V_PV+1}, {sr(S_WS,4)}, s{S_CO} offen
    s_waitcnt vmcnt(0)
    s_endpgm
    """)
    A.label("L_wspin")
    A(f"s_mov_b32 s{S_T1}, {SPIN_MAX}")
    A.label("L_wspin_loop")
    A(f"""
    s_sleep 4
    buffer_load_dword v{V_POLL}, off, {sr(S_DBG,4)}, 0 sc1
    s_waitcnt vmcnt(0)
    v_readfirstlane_b32 s{S_T0}, v{V_POLL}
    s_sub_u32 s{S_T1}, s{S_T1}, 1
    s_cmp_eq_u32 s{S_T1}, 0
    s_cbranch_scc1 L_wok
    s_cmp_lg_u32 s{S_T0}, 256
    s_cbranch_scc1 L_wspin_loop
    s_branch L_wok
    """)

RT_MODE = True
STSET = os.environ.get('STSET', 'main')
STAMP_SETS = {
  'main': {'start':0, 'p1s':1, 'p1e':2, 'loops':3, 'loope':4, 'stores':5, 'arr':6, 'sync':7, 'oend':8},
  'startup': {'start':0, 'dma0':1, 'dma1':2, 'dma2':3, 'p1s':4, 'first':5, 'c6':6, 'c7':7, 'p1e':8},
  'pre': {'start':0, 'p1e':1, 'qw':2, 'qbar':3, 'qk0':4, 'loops':5, 'loope':6, 'ex1':7, 'stores':8},
}
STAMPS_ON = False
def stamp(A, name):
    if not STAMPS_ON: return
    if isinstance(name, int): k = name
    else:
        k = STAMP_SETS[STSET].get(name)
        if k is None: return
    A(f"{'s_memrealtime' if RT_MODE else 's_memtime'} s[{S_ST+2*k}:{S_ST+2*k+1}]")

STAMP_BASE = 0x4000000
def write_stamps(A):
    A("s_waitcnt vmcnt(0)")
    stamp(A, 9)
    A("s_waitcnt lgkmcnt(0)")
    for k in range(10): A(f"v_mov_b32 v{32+k}, s{S_ST+2*k}")
    A(f"""
    v_mov_b32 v42, s2
    v_mov_b32 v43, s{S_FB}
    s_lshl_b32 s{S_T0}, s2, 2
    s_add_u32 s{S_T0}, s{S_T0}, s{S_W}
    s_lshl_b32 s{S_T0}, s{S_T0}, 6
    s_add_u32 s{S_T0}, s{S_T0}, {hex(STAMP_BASE)}
    v_mov_b32 v44, s{S_T0}
    s_mov_b64 exec, 1
    buffer_store_dwordx4 v[32:35], v44, {sr(S_WS,4)}, 0 offen
    buffer_store_dwordx4 v[36:39], v44, {sr(S_WS,4)}, 0 offen offset:16
    buffer_store_dwordx4 v[40:43], v44, {sr(S_WS,4)}, 0 offen offset:32
    s_waitcnt vmcnt(0)
    """)

KN = "standalone__gqa_block_cached__near_ridge_kernel"
def kernel(A, stamps=False):
    A(f""".text
    .globl {KN}
    .p2align 8
    .type {KN},@function""")
    A.label(KN)
    setup_ids(A, "L_a_end")
    stamp(A, 'start')
    setup_dma_addrs(A)
    def adv(ops):
        for x in ops: A(x)
    stamp(A, 'dma0')
    emit_plain(A, xdma_ops(0)); adv(xadv())
    emit_plain(A, wdma_ops(0)); adv(wadv())
    stamp(A, 'dma1')
    emit_plain(A, kvdma_ops('K', 0, 0))
    emit_plain(A, xdma_ops(1)); adv(xadv())
    emit_plain(A, wdma_ops(1)); adv(wadv())
    emit_plain(A, xdma_ops(2))
    wof_dma_setup_and_issue(A)
    stamp(A, 'dma2')
    A(f"s_mov_b32 s{S_FB}, 0")
    setup_read_addrs(A)
    wof_addr_setup(A)
    phase_o_setup(A)
    zero_state(A)
    stamp(A, 'p1s')
    p1(A)
    stamp(A, 'p1e')
    q_exchange(A)
    A.label("L_qk0")
    qk0(A)
    stamp(A, 'loops')
    A(".p2align 6")
    A.label("L_loop")
    i0 = len(A.lines)
    for u in range(4):
        step(A, (1 + u) & 3, last_in_loop=(u == 3), loop_label="L_loop")
    i1 = len(A.lines)
    for p in check_hazards(A.lines[i0:i1]*2, "loop"): print("HAZARD", p)
    stamp(A, 'loope')
    epilogue(A, stamps)
    A.label("L_a_end")
    A("s_endpgm")
    fallback(A)

KC = "gqa_probe_kernel"
def kernel_c(A, offa, offb, mult=16):
    A(f""".text
    .globl {KC}
    .p2align 8
    .type {KC},@function""")
    A.label(KC)
    A(f"""
    s_load_dwordx2 s[8:9], s[0:1], 56
    s_cmp_ge_u32 s2, 1
    s_cbranch_scc1 L_c_end
    s_memrealtime s[20:21]
    s_waitcnt lgkmcnt(0)
    s_add_u32 s10, s8, {hex(offa)}
    s_addc_u32 s11, s9, 0
    s_add_u32 s12, s8, {hex(offb)}
    s_addc_u32 s13, s9, 0
    s_load_dword s14, s[10:11], 0
    s_load_dword s15, s[12:13], 0
    s_waitcnt lgkmcnt(0)
    s_sub_u32 s14, s15, s14
    s_min_u32 s14, s14, 20000
    s_mul_i32 s14, s14, {mult}
    """)
    A.label("L_c_loop")
    A(f"""
    s_memrealtime s[22:23]
    s_waitcnt lgkmcnt(0)
    s_sub_u32 s16, s22, s20
    s_cmp_lt_u32 s16, s14
    s_cbranch_scc1 L_c_loop
    """)
    A.label("L_c_end")
    A("s_endpgm")

def descriptor(name, vgpr, accum, sgpr=102):
    return f""".amdhsa_kernel {name}
    .amdhsa_next_free_vgpr {vgpr}
    .amdhsa_next_free_sgpr {sgpr}
    .amdhsa_accum_offset {accum}
    .amdhsa_group_segment_fixed_size 0
    .amdhsa_kernarg_size 64
    .amdhsa_user_sgpr_count 2
    .amdhsa_user_sgpr_kernarg_segment_ptr 1
    .amdhsa_system_sgpr_workgroup_id_x 1
    .end_amdhsa_kernel"""

HEADER = """; Kernarg layout for this problem (64 bytes, ptrs only, base s[0:1]):
"""

def gen(stamps=False, probe=None):
    global STAMPS_ON
    STAMPS_ON = bool(stamps)
    A = Asm()
    kernel(A, stamps)
    if probe: kernel_c(A, *probe)
    A('.section .rodata,"a"\n.p2align 6')
    if probe:
        A(descriptor(KC, 32, 32)); A(".p2align 6")
    A(descriptor(KN, 512, 256))
    for p in check_hazards(A.lines, "all"): print("HAZARD", p)
    hdr = HEADER
    if probe:
        hdr += f"; @launch kernel={KN} grid=(256,1,1) block=(256,1,1) lds={LDS_A}\n"
        hdr += f"; @launch kernel={KC} grid=(1,1,1) block=(64,1,1) lds=0\n"
    else:
        hdr += f"; @launch grid=(256,1,1) block=(256,1,1) lds={LDS_A}\n"
    return hdr + '.amdgcn_target "amdgcn-amd-amdhsa--gfx950"\n' + A.text()

if __name__ == "__main__":
    import sys
    from hiprt import add_meta
    mode = sys.argv[1] if len(sys.argv) > 1 else ""
    if mode == "probe":
        a = lambda k, wg=0: STAMP_BASE + wg*256 + 4*k
        P = {"p1": (a(0), a(2)), "pre": (a(2), a(3)), "loop": (a(3), a(4)), "epi": (a(4), a(5)), "arr": (a(5), a(6)),
             "sync": (a(6), a(7)), "oloop": (a(7), a(8)), "fin": (a(8), a(9))}
        for n, pr in P.items():
            open(f"../cdna_kernels/probe_{n}.s", "w").write(gen(1, pr))
        print("probes written"); sys.exit(0)
    if mode == "stamps":
        open(os.environ.get('OUT', "fused_st.s"), "w").write(add_meta(gen(1), [(KN, 512, 256)]))
    elif mode == "cyc":
        RT_MODE = False
        open("fused_cyc.s", "w").write(add_meta(gen(1), [(KN, 512, 256)]))
    else:
        open(os.environ.get('OUT', "fused.s"), "w").write(gen(0))
    print("written")
```

```python
from asmlib import *
import struct, math

KA = "standalone__gqa_block_cached__near_ridge_kernel"
KB = "gqa_oproj_kernel"

V_KD0, V_KD1, V_VD0, V_VD1 = 1, 2, 3, 4
V_KR = 5
V_VR = 9
V_LANE = 17
V_XD0, V_XD1 = 18, 19
V_WD = 20
V_XR = 21
V_WR = 23
V_QW = 27
V_T = 28
V_S = 32
V_NM = 112
V_OK = 132
V_KF = 212
V_ONE = 244
V_X = 248
A_OS = 0
A_L = 80
A_VF = 100
A_Q = 132

def S(sig, t, a, r=0): return V_S + sig*40 + t*8 + a*4 + r
def NM(t): return V_NM + 4*t
def QF(t, s): return A_Q + (t*4 + s)*4
def KF(a, s): return V_KF + (a*4 + s)*4
def VF(db): return A_VF + db*4
def O(t, idx):
    return vr(V_OK + t*16 + idx*4, 4) if idx < 4 else ar(A_OS + t*16 + (idx-4)*4, 4)
def L(t): return A_L + 4*t
def ACC(t, d): return V_S + (t*4 + d)*4
def PA(p, d): return V_KF + p*16 + d*4
def PB(p, t): return A_Q + p*20 + t*4

S_K = 12; S_V = 16; S_WS = 20
S_W, S_I, S_J, S_M0 = 24, 25, 26, 27
S_KO0, S_KO1, S_VO0, S_VO1 = 28, 29, 30, 31
S_CNT = 32
S_B, S_H = 33, 34
S_T0, S_T1 = 35, 36
S_X = 40
S_WQ = 44
S_XO = 48
S_WO = 53
S_MX = 57
S_FB = 58
S_SC = 60
S_ST = 64
S_SLOT, S_XCD = 37, 38
S_CO = 39
S_MSK = 62
S_DBG = 84
S_OUT = 88
S_WOR = 92
S_MSK2 = 10
S_SPM = 101
S_WFS = 96
S_OO, S_OW, S_OW2, S_PA0, S_PA1, S_CONS = 4, 5, 6, 7, 8, 9
S_OB = 59
V_POLL = 31
V_WA = 28
V_WB = 29
V_L16 = 30
V_XR2 = 112
V_WR2 = 116
V_RWA, V_RWB = 254, 255
A_WF = 212
WOF = 0x1000000
CNTB = 0x2000000
RAW0, RAW1 = 0x20000, 0x24000
RAWB = 0x2400

LDS_K = 0; LDS_V = 0x10000; LDS_SP = 0x20000
HEAD_BYTES = 2048*128*2
PBUF = [0x4000 + u*0x9000 for u in range(4)]
XB = PBUF
WQB = [b + 0x5000 for b in PBUF]
def bu(c): return (c + 3) & 3
QIMG = 0x1E000
LDS_A = 163840

def f32hex(x): return hex(struct.unpack("<I", struct.pack("<f", x))[0])
SCALE = math.log2(math.e) / math.sqrt(128.0)
T_HI = 2.0**64
T_LO = 2.0**-40

def mfma(d, a, b, c): return f"v_mfma_f32_16x16x32_bf16 {d}, {a}, {b}, {c}"

def qk_mfma(sig, g):
    a = g // 20; s = (g % 20) // 5; t = g % 5
    d = vr(S(sig, t, a), 4)
    c = d if s else vr(NM(t), 4)
    return mfma(d, vr(KF(a, s), 4), ar(QF(t, s), 4), c)
def pv_mfma(sigp, idx):
    db = idx // 5; t = idx % 5
    p = vr(S(sigp, t, 0), 4)
    if db < 8: return mfma(O(t, db), ar(VF(db), 4), p, O(t, db))
    return mfma(ar(L(t), 4), vr(V_ONE, 4), p, ar(L(t), 4))

def exp_op(sig, t, a, r): return f"v_exp_f32 {vr(S(sig,t,a,r))}, {vr(S(sig,t,a,r))}"
def cvt_op(sig, t, a, h):
    return f"v_cvt_pk_bf16_f32 {vr(S(sig,t,0,2*a+h))}, {vr(S(sig,t,a,2*h))}, {vr(S(sig,t,a,2*h+1))}"
def kread(slot, a, s): return f"ds_read_b128 {vr(KF(a,s),4)}, {vr(V_KR+s)} offset:{slot*16384 + a*4096}"
def vread(slot, db, hf): return f"ds_read_b64_tr_b16 {ar(VF(db)+2*hf,2)}, {vr(V_VR+db)} offset:{slot*16384 + hf*4096}"

import os
KV_AUX = " nt"
X_AUX = os.environ.get("X_AUX", "")
WQ_AUX = os.environ.get("WQ_AUX", "")
WO_AUX = os.environ.get("WO_AUX", "")
def dma_ops(kind, slot, grp):
    base = (LDS_K if kind == 'K' else LDS_V) + slot*16384 + grp*8192
    srd = sr(S_K if kind == 'K' else S_V, 4)
    so = sr((S_KO0 if kind == 'K' else S_VO0) + grp)
    v0, v1 = (V_KD0, V_KD1) if kind == 'K' else (V_VD0, V_VD1)
    return (f"s_add_u32 m0, {sr(S_M0)}, {hex(base)}",
            [f"buffer_load_dwordx4 {vr(v0)}, {srd}, {so} offen{KV_AUX} lds",
             f"buffer_load_dwordx4 {vr(v1)}, {srd}, {so} offen offset:1024{KV_AUX} lds"])

def emit_gaps(A, mf, sc, ve):
    for g in range(len(mf)):
        A(mf[g])
        assert len(sc[g]) <= 1, (g, sc[g])
        for x in sc[g]: A(x)
        for x in ve[g]: A(x)

def step(A, n4, last_in_loop=False, loop_label=None):
    sig = n4 & 1; sp = 1 - sig
    NG = 85
    sc = [[] for _ in range(NG)]
    ve = [[] for _ in range(NG)]
    for t in range(5):
        for r in range(4): ve[8*t + 2*r].append(exp_op(sp, t, 1, r))
    vslot = (n4 - 1) & 3
    vr_ops = [vread(vslot, db, hf) for db in range(8) for hf in range(2)]
    k = 0
    for g in range(1, 40, 2):
        if g % 4 == 1:
            if k < 16:
                ve[g].append(vr_ops[k]); k += 1
                if k < 16: ve[g].append(vr_ops[k]); k += 1
        else:
            if k < 16: ve[g].append(vr_ops[k]); k += 1
            t = g // 8; h = (g % 8) // 4
            ve[g].append(cvt_op(sp, t, 1, h))
    assert k == 16
    for t in range(5):
        for r in range(4): ve[40 + 8*t + 2*r].append(exp_op(sig, t, 0, r))
    kslot = (n4 + 1) & 3
    kr_ops = [kread(kslot, a, s) for a in range(2) for s in range(4)]
    k = 0
    for g in range(43, 80, 4):
        if k < 8: ve[g].append(kr_ops[k]); k += 1
        t = (g - 40) // 8; h = ((g - 40) % 8) // 4
        ve[g].append(cvt_op(sig, t, 0, h))
    dk = n4 & 3; dv = (n4 + 2) & 3
    groups = [dma_ops('K', dk, 0), dma_ops('K', dk, 1), dma_ops('V', dv, 0), dma_ops('V', dv, 1)]
    dgaps = [25, 29, 33, 37, 41, 45, 49, 53]
    for q in range(4):
        m0, dd = groups[q]
        g0, g1 = dgaps[2*q], dgaps[2*q+1]
        assert not ve[g0] and not ve[g1], (g0, g1, ve[g0], ve[g1])
        sc[g0-1].append(m0)
        ve[g0].append(dd[0]); ve[g1].append(dd[1])
    sc[2].append(f"s_cmp_lt_u32 {sr(S_KO0)}, {hex(HEAD_BYTES)}")
    sc[3].append(f"s_cselect_b32 {sr(S_K+2)}, {hex(HEAD_BYTES)}, 0")
    sc[4].append(f"s_cmp_lt_u32 {sr(S_VO0)}, {hex(HEAD_BYTES)}")
    sc[5].append(f"s_cselect_b32 {sr(S_V+2)}, {hex(HEAD_BYTES)}, 0")
    sc[56].append(f"s_add_u32 {sr(S_KO0)}, {sr(S_KO0)}, 0x4000")
    sc[57].append(f"s_add_u32 {sr(S_KO1)}, {sr(S_KO1)}, 0x4000")
    sc[58].append(f"s_add_u32 {sr(S_VO0)}, {sr(S_VO0)}, 0x4000")
    sc[59].append(f"s_add_u32 {sr(S_VO1)}, {sr(S_VO1)}, 0x4000")
    sc[39].append("s_waitcnt lgkmcnt(0)")
    if last_in_loop:
        sc[82].append(f"s_sub_u32 {sr(S_CNT)}, {sr(S_CNT)}, 1")
    A("s_waitcnt vmcnt(16) lgkmcnt(0)")
    A("s_barrier")
    mf = [qk_mfma(sig, g) if g < 40 else pv_mfma(sp, g - 40) for g in range(NG)]
    emit_gaps(A, mf, sc, ve)
    if last_in_loop:
        A(f"s_bitcmp1_b32 {sr(S_SPM)}, {sr(S_CNT)}")
        A(f"s_cbranch_scc0 {loop_label}")
        A("s_branch L_special")
        A.label("L_loop_exit")

def special_blocks(A):
    A.label("L_special")
    A(f"""
    s_cmp_eq_u32 s{S_CNT}, 0
    s_cbranch_scc1 L_loop_exit
    s_cmp_eq_u32 s{S_CNT}, 2
    s_cbranch_scc1 L_sp_poll
    s_cmp_eq_u32 s{S_CNT}, 6
    s_cbranch_scc1 L_sp_arr
    """)
    wof_produce(A)
    A("s_branch L_loop")
    A.label("L_sp_arr")
    A(f"""
    s_cmp_lg_u32 s{S_W}, 0
    s_cbranch_scc1 L_loop
    s_mov_b64 exec, 1
    v_mov_b32 v{V_X}, 1
    buffer_atomic_add v{V_X}, off, {sr(S_DBG,4)}, 0
    s_mov_b64 exec, -1
    s_branch L_loop
    """)
    A.label("L_sp_poll")
    A(f"buffer_load_dword v{V_POLL}, off, {sr(S_DBG,4)}, 0 sc1")
    A("s_branch L_loop")

def setup_ids(A, endlabel):
    A(f"""
    s_load_dwordx4 s[4:7], s[0:1], 8
    s_load_dwordx2 s[8:9], s[0:1], 56
    s_load_dwordx2 s[{S_X}:{S_X+1}], s[0:1], 0
    s_load_dwordx2 s[{S_WQ}:{S_WQ+1}], s[0:1], 24
    s_load_dwordx2 s[{S_WOR}:{S_WOR+1}], s[0:1], 32
    s_load_dwordx2 s[{S_OUT}:{S_OUT+1}], s[0:1], 40
    s_load_dwordx2 s[{S_DBG}:{S_DBG+1}], s[0:1], 48
    s_cmp_ge_u32 s2, 256
    s_cbranch_scc1 {endlabel}
    v_lshrrev_b32 v{V_T}, 6, v0
    v_and_b32 v{V_LANE}, 63, v0
    v_readfirstlane_b32 s{S_W}, v{V_T}
    s_and_b32 s3, s2, 7
    s_lshr_b32 s10, s2, 3
    s_mov_b32 s{S_XCD}, s3
    s_mov_b32 s{S_SLOT}, s10
    s_and_b32 s11, s3, 1
    s_lshl_b32 s11, s11, 2
    s_lshr_b32 s{S_T0}, s10, 3
    s_add_u32 s{S_B}, s11, s{S_T0}
    s_lshr_b32 s11, s3, 1
    s_lshl_b32 s11, s11, 3
    s_and_b32 s{S_T0}, s10, 7
    s_add_u32 s{S_H}, s11, s{S_T0}
    s_lshr_b32 s{S_I}, s{S_W}, 1
    s_and_b32 s{S_J}, s{S_W}, 1
    s_lshl_b32 s{S_M0}, s{S_W}, 11
    s_mul_i32 s{S_MX}, s{S_W}, 5120
    s_lshl_b32 s11, s{S_B}, 4
    s_lshr_b32 s{S_T0}, s{S_H}, 1
    s_add_u32 s11, s11, s{S_T0}
    s_lshr_b32 s{S_KO0}, s11, 13
    s_lshl_b32 s{S_T0}, s11, 19
    s_mul_i32 s10, s{S_B}, 184320
    s_lshl_b32 s11, s{S_H}, 8
    s_waitcnt lgkmcnt(0)
    s_add_u32 s{S_X}, s{S_X}, s10
    s_addc_u32 s{S_X+1}, s{S_X+1}, 0
    s_mov_b32 s{S_X+2}, 184320
    s_mov_b32 s{S_X+3}, 0x20000
    s_add_u32 s{S_WQ}, s{S_WQ}, s11
    s_addc_u32 s{S_WQ+1}, s{S_WQ+1}, 0
    s_sub_u32 s{S_WQ+2}, {576*8192}, s11
    s_mov_b32 s{S_WQ+3}, 0x20000
    s_mov_b32 s3, s{S_T0}
    """)
    L = Asm()
    L(f"""
    s_add_u32 s{S_K}, s4, s3
    s_addc_u32 s{S_K+1}, s5, s{S_KO0}
    s_mov_b32 s{S_K+2}, {hex(HEAD_BYTES)}
    s_mov_b32 s{S_K+3}, 0x20000
    s_add_u32 s{S_V}, s6, s3
    s_addc_u32 s{S_V+1}, s7, s{S_KO0}
    s_mov_b32 s{S_V+2}, {hex(HEAD_BYTES)}
    s_mov_b32 s{S_V+3}, 0x20000
    s_mov_b32 s{S_WS}, s8
    s_mov_b32 s{S_WS+1}, s9
    s_mov_b32 s{S_WS+2}, 0x10000000
    s_mov_b32 s{S_WS+3}, 0x20000
    """)
    return L.lines

def setup_dma_addrs(A):
    T = V_X; L_ = V_LANE
    A(f"""
    v_lshrrev_b32 v{T}, 4, v{L_}
    v_and_b32 v{T+1}, 15, v{L_}
    v_lshrrev_b32 v{T+2}, 3, v{L_}
    v_and_b32 v{T+3}, 7, v{L_}
    s_mul_i32 s{S_T0}, s{S_W}, {40*1152}
    s_and_b32 s{S_T1}, s{S_W}, 1
    s_lshl_b32 s{S_T1}, s{S_T1}, 2
    v_mul_u32_u24 v{T+4}, 1152, v{T+2}
    v_add_u32 v{T+4}, s{S_T0}, v{T+4}
    v_xor_b32 v{T+5}, v{T+3}, v{T}
    v_xor_b32 v{T+5}, s{S_T1}, v{T+5}
    v_lshlrev_b32 v{T+6}, 4, v{T+5}
    v_add_u32 v{V_XD0}, v{T+4}, v{T+6}
    v_xor_b32 v{T+6}, 64, v{T+6}
    v_add_u32 v{V_XD1}, v{T+4}, v{T+6}
    """)
    A(f"""
    v_or_b32 v{T+4}, s{S_T1}, v{T}
    v_lshlrev_b32 v{T+4}, 1, v{T+4}
    v_xor_b32 v{T+4}, v{T+4}, v{T+1}
    v_lshlrev_b32 v{T+4}, 4, v{T+4}
    s_lshl_b32 s{S_T0}, s{S_W}, 3
    v_add_u32 v{T+5}, s{S_T0}, v{T}
    v_lshlrev_b32 v{T+6}, 13, v{T+5}
    v_add_u32 v{V_WD}, v{T+4}, v{T+6}
    """)
    for e in range(5): A(f"s_mov_b32 s{S_XO+e}, {e*8192 if e < 4 else 4*9216}")
    for e in range(4): A(f"s_mov_b32 s{S_WO+e}, {(e>>1)*32*8192 + (e&1)*(32768-1024)}")
    L = Asm()
    for e, (vk, vv) in enumerate([(V_KD0, V_VD0), (V_KD1, V_VD1)]):
        L(f"""
        v_add_u32 v{T+2}, {4*e}, v{T+5}
        v_and_b32 v{T+3}, 15, v{T+2}
        v_xor_b32 v{T+3}, v{T+3}, v{T+1}
        v_lshlrev_b32 v{T+3}, 4, v{T+3}
        v_lshlrev_b32 v{T+4}, 8, v{T+2}
        v_add_u32 v{vk}, v{T+3}, v{T+4}
        v_and_b32 v{T+3}, 7, v{T+2}
        v_lshlrev_b32 v{T+3}, 1, v{T+3}
        v_xor_b32 v{T+3}, v{T+3}, v{T+1}
        v_lshlrev_b32 v{T+3}, 4, v{T+3}
        v_add_u32 v{vv}, v{T+3}, v{T+4}
        """)
        if e:
            L(f"v_subrev_u32 v{vk}, 1024, v{vk}")
            L(f"v_subrev_u32 v{vv}, 1024, v{vv}")
    return L.lines

def xdma_ops(u):
    srd = sr(S_X, 4)
    out = []
    for e in range(5):
        m0 = None
        if e == 0: m0 = f"s_add_u32 m0, {sr(S_MX)}, {hex(XB[u])}"
        if e == 4: m0 = f"s_add_u32 m0, {sr(S_MX)}, {hex(XB[u] + 4096)}"
        v = V_XD0 if e % 2 == 0 else V_XD1
        off = f" offset:{e*1024}" if 0 < e < 4 else ""
        out.append((m0, f"buffer_load_dwordx4 {vr(v)}, {srd}, {sr(S_XO+e)} offen{off}{X_AUX} lds"))
    return out
def xadv(): return [f"s_add_u32 {sr(S_XO+e)}, {sr(S_XO+e)}, 128" for e in range(5)]
def wdma_ops(u):
    srd = sr(S_WQ, 4)
    out = []
    for e in range(4):
        m0 = f"s_add_u32 m0, {sr(S_M0)}, {hex(WQB[u] + (e>>1)*8192)}" if e % 2 == 0 else None
        off = " offset:1024" if e & 1 else ""
        out.append((m0, f"buffer_load_dwordx4 {vr(V_WD)}, {srd}, {sr(S_WO+e)} offen{off}{WQ_AUX} lds"))
    return out
def wadv(): return [f"s_add_u32 {sr(S_WO+e)}, {sr(S_WO+e)}, 0x80000" for e in range(4)]
def kvdma_ops(kind, tile_n, slot):
    out = []
    for grp in range(2):
        so = (S_KO0 if kind == 'K' else S_VO0) + grp
        m0, dd = dma_ops(kind, slot, grp)
        out.append(([f"s_mov_b32 s{so}, {hex(tile_n*16384 + grp*8192)}", m0], dd[0]))
        out.append(([], dd[1]))
    return out

def emit_plain(A, ops):
    for pre, d in ops:
        if pre:
            for x in (pre if isinstance(pre, list) else [pre]): A(x)
            A("s_nop 0")
        A(d)

def setup_read_addrs(A):
    T = V_X; L_ = V_LANE
    A(f"""
    v_lshrrev_b32 v{T}, 4, v{L_}
    v_and_b32 v{T+1}, 15, v{L_}
    """)
    A(f"""
    s_mul_i32 s{S_T0}, s{S_I}, {80*128}
    s_add_u32 s{S_T0}, s{S_T0}, {hex(XB[0])}
    v_lshrrev_b32 v{T+2}, 1, v{T+1}
    v_xor_b32 v{T+2}, v{T+2}, v{T}
    v_lshlrev_b32 v{T+2}, 4, v{T+2}
    v_lshlrev_b32 v{T+3}, 7, v{T+1}
    v_add_u32 v{T+3}, s{S_T0}, v{T+3}
    v_add_u32 v{V_XR}, v{T+2}, v{T+3}
    v_xor_b32 v{T+2}, 64, v{T+2}
    v_add_u32 v{V_XR+1}, v{T+2}, v{T+3}
    v_add_u32 v{V_XR2}, 0x12000, v{V_XR}
    v_add_u32 v{V_XR2+1}, 0x12000, v{V_XR+1}
    """)
    A(f"""
    v_lshrrev_b32 v{T+2}, 2, v{T+1}
    v_and_b32 v{T+3}, 1, v{T}
    v_lshlrev_b32 v{T+3}, 2, v{T+3}
    v_or_b32 v{T+3}, v{T+3}, v{T+2}
    v_lshlrev_b32 v{T+4}, 3, v{T}
    v_add_u32 v{T+4}, v{T+4}, v{T+2}
    v_lshlrev_b32 v{T+4}, 8, v{T+4}
    v_and_b32 v{T+5}, 3, v{L_}
    v_lshlrev_b32 v{T+5}, 3, v{T+5}
    v_add_u32 v{T+4}, v{T+4}, v{T+5}
    v_add_u32 v{T+4}, {hex(WQB[0])}, v{T+4}
    s_lshl_b32 s{S_T0}, s{S_J}, 2
    v_xor_b32 v{T+3}, s{S_T0}, v{T+3}
    """)
    for d in range(4):
        A(f"""
        v_xor_b32 v{T+5}, {d}, v{T+3}
        v_lshlrev_b32 v{T+5}, 5, v{T+5}
        v_add_u32 v{V_WR+d}, v{T+4}, v{T+5}
        v_add_u32 v{V_WR2+d}, 0x12000, v{V_WR+d}
        """)
    A(f"""
    s_mul_i32 s{S_T0}, s{S_I}, 20480
    s_lshl_b32 s{S_T1}, s{S_J}, 11
    s_add_u32 s{S_T0}, s{S_T0}, s{S_T1}
    s_add_u32 s{S_T0}, s{S_T0}, {hex(QIMG)}
    v_lshrrev_b32 v{T+2}, 1, v{T}
    v_lshlrev_b32 v{T+2}, 8, v{T+2}
    v_lshlrev_b32 v{T+3}, 4, v{T+1}
    v_add_u32 v{T+2}, v{T+2}, v{T+3}
    v_and_b32 v{T+3}, 1, v{T}
    v_lshlrev_b32 v{T+3}, 3, v{T+3}
    v_add_u32 v{T+2}, v{T+2}, v{T+3}
    v_add_u32 v{V_QW}, s{S_T0}, v{T+2}
    """)
    A(f"s_lshl_b32 s{S_T0}, s{S_J}, 13")
    for s in range(4):
        A(f"""
        v_add_u32 v{T+2}, {4*s}, v{T}
        v_xor_b32 v{T+2}, v{T+2}, v{T+1}
        v_lshlrev_b32 v{T+2}, 4, v{T+2}
        v_lshlrev_b32 v{T+3}, 8, v{T+1}
        v_add_u32 v{T+2}, v{T+2}, v{T+3}
        v_add_u32 v{V_KR+s}, s{S_T0}, v{T+2}
        """)
    A(f"""
    v_lshrrev_b32 v{T+2}, 2, v{T+1}
    v_lshlrev_b32 v{T+3}, 2, v{T}
    v_add_u32 v{T+2}, v{T+2}, v{T+3}
    v_and_b32 v{T+3}, 7, v{T+2}
    v_lshlrev_b32 v{T+2}, 8, v{T+2}
    v_and_b32 v{T+4}, 3, v{L_}
    v_lshlrev_b32 v{T+4}, 3, v{T+4}
    v_add_u32 v{T+2}, v{T+2}, v{T+4}
    s_add_u32 s{S_T0}, s{S_T0}, {hex(LDS_V)}
    v_add_u32 v{T+2}, s{S_T0}, v{T+2}
    s_lshl_b32 s{S_T1}, s{S_J}, 2
    v_xor_b32 v{T+3}, s{S_T1}, v{T+3}
    """)
    for idx in range(8):
        A(f"""
        v_xor_b32 v{T+4}, {idx}, v{T+3}
        v_lshlrev_b32 v{T+4}, 5, v{T+4}
        v_add_u32 v{V_VR+idx}, v{T+2}, v{T+4}
        """)
    A(f"""
    v_and_b32 v{T+2}, 3, v{L_}
    v_cmp_eq_u32 vcc, 0, v{T+2}
    v_mov_b32 v{T+3}, 0x3f803f80
    s_mov_b32 s{S_SC}, {f32hex(SCALE)}
    s_mov_b32 s{S_SC+1}, {f32hex(SCALE)}
    v_cndmask_b32 v{V_ONE}, 0, v{T+3}, vcc
    v_cndmask_b32 v{V_ONE+1}, 0, v{T+3}, vcc
    v_cndmask_b32 v{V_ONE+2}, 0, v{T+3}, vcc
    v_cndmask_b32 v{V_ONE+3}, 0, v{T+3}, vcc
    """)

def zero_state(A, acc=True, nm=True):
    if acc:
        for r in range(V_S, V_S+80, 2): A(f"v_mov_b64 {vr(r,2)}, 0")
    if nm:
        for r in range(V_NM, V_NM+20, 2): A(f"v_mov_b64 {vr(r,2)}, 0")
    for r in range(V_OK, V_OK+80, 2): A(f"v_mov_b64 {vr(r,2)}, 0")
    A("v_accvgpr_write_b32 a0, 0")
    A("s_nop 1")
    for r in range(1, 100): A(f"v_accvgpr_mov_b32 a{r}, a0")

def xread(u, kap, p, t):
    return f"ds_read_b128 {ar(PB(p,t),4)}, {vr((V_XR if u < 2 else V_XR2)+kap)} offset:{(u&1)*0x9000 + t*2048}"
def wread(u, kap, p, d, hf):
    return f"ds_read_b64_tr_b16 {vr(PA(p,d)+2*hf,2)}, {vr((V_WR if u < 2 else V_WR2)+d)} offset:{(u&1)*0x9000 + kap*8192 + hf*1024}"
def p1_reads(u, kap, p):
    g = [[xread(u, kap, p, 0)], [wread(u, kap, p, 0, 0), wread(u, kap, p, 0, 1)]]
    g += [[xread(u, kap, p, t)] for t in range(1, 5)]
    g += [[wread(u, kap, p, d, 0), wread(u, kap, p, d, 1)] for d in range(1, 4)]
    return g
def p1_mfma(p, g, czero=False):
    d = g // 5; t = g % 5
    a = vr(ACC(t, d), 4)
    return mfma(a, vr(PA(p, d), 4), ar(PB(p, t), 4), "0" if czero else a)

class VCount:
    def __init__(self): self.n = 0; self.last = {}
    def note(self, tag): self.n += 1; self.last[tag] = self.n
    def need(self, *tags): return self.n - max(self.last[t] for t in tags)

def p1_half(A, q, h, reads, dmas, advs, extra=None):
    p = h & 1
    sc = [[] for _ in range(20)]; ve = [[] for _ in range(20)]
    for k, grp in enumerate(reads): ve[k] = list(grp)
    n = len(dmas)
    gaps = [10, 12, 14, 16, 18][:n]
    assert n <= 5
    for (pre, d, tag), gg in zip(dmas, gaps):
        pre = [] if pre is None else (pre if isinstance(pre, list) else [pre])
        assert len(pre) <= 2
        for k, x in enumerate(pre):
            sc[gg - len(pre) + k].append(x)
        ve[gg].append(d); q.note(tag)
    k = 0
    for gg in range(0, 8):
        if k < len(advs) and not sc[gg]:
            sc[gg].append(advs[k]); k += 1
    assert k == len(advs)
    for gg, ops in (extra or {}).items():
        assert not any(o.startswith("buffer_") for o in ve[gg]), (gg, ve[gg])
        ve[gg] += ops
        assert len(ve[gg]) <= 2, (gg, ve[gg])
    mf = [p1_mfma(p, g, czero=(h == 0)) for g in range(20)]
    emit_gaps(A, mf, sc, ve)

def tagged(ops, tag): return [(pre, d, tag) for pre, d in ops]

def wof_dma_setup(A):
    T = V_X; L_ = V_LANE
    A(f"""
    s_lshr_b32 s10, s2, 1
    s_and_b32 s11, s2, 1
    s_mul_i32 s{S_T0}, s10, {32*1152}
    s_mul_i32 s{S_T1}, s11, 576
    s_add_u32 s{S_T0}, s{S_T0}, s{S_T1}
    s_add_u32 s{S_WOR}, s{S_WOR}, s{S_T0}
    s_addc_u32 s{S_WOR+1}, s{S_WOR+1}, 0
    s_sub_u32 s{S_WOR+2}, {4096*1152}, s{S_T0}
    s_mov_b32 s{S_WOR+3}, 0x20000
    v_lshrrev_b32 v{T}, 5, v{L_}
    v_and_b32 v{T+1}, 31, v{L_}
    v_lshlrev_b32 v{T+2}, 1, v{T}
    v_xor_b32 v{T+1}, v{T+1}, v{T+2}
    v_lshlrev_b32 v{T+1}, 4, v{T+1}
    s_lshl_b32 s{S_T0}, s{S_W}, 3
    v_add_u32 v{T}, s{S_T0}, v{T}
    v_mul_u32_u24 v{T}, 1152, v{T}
    v_add_u32 v{V_RWA}, v{T}, v{T+1}
    v_lshrrev_b32 v{T+2}, 2, v{L_}
    s_lshl_b32 s{S_T0}, s{S_J}, 4
    v_add_u32 v{T+2}, s{S_T0}, v{T+2}
    v_mul_u32_u24 v{T+2}, 1152, v{T+2}
    v_and_b32 v{T+3}, 3, v{L_}
    v_lshlrev_b32 v{T+3}, 4, v{T+3}
    v_add_u32 v{T+2}, v{T+2}, v{T+3}
    v_add_u32 v{V_RWB}, 512, v{T+2}
    """)

def wof_dma_issue(A):
    A(f"""
    s_mul_i32 s{S_T0}, s{S_I}, {RAW1-RAW0}
    s_mul_i32 s{S_T1}, s{S_J}, 4352
    s_add_u32 s{S_T0}, s{S_T0}, s{S_T1}
    s_add_u32 m0, s{S_T0}, {hex(RAW0)}
    """)
    for e in range(4):
        A(f"s_movk_i32 s{S_T1}, {e*1216}")
        off = f" offset:{e*1088}" if e else ""
        A(f"buffer_load_dwordx4 v{V_RWA}, {sr(S_WOR,4)}, s{S_T1} offen{off}{WO_AUX} lds")
    A(f"""
    s_mul_i32 s{S_T0}, s{S_J}, {RAW1-RAW0}
    s_add_u32 m0, s{S_T0}, {hex(RAW0+RAWB)}
    s_nop 0
    buffer_load_dwordx4 v{V_RWB}, {sr(S_WOR,4)}, 0 offen{WO_AUX} lds
    """)

def wof_addr_setup(A):
    T = V_X; L_ = V_LANE
    A(f"""
    v_lshrrev_b32 v{T}, 5, v{L_}
    v_mul_u32_u24 v{T}, 4352, v{T}
    v_lshrrev_b32 v{T+1}, 3, v{L_}
    v_and_b32 v{T+1}, 3, v{T+1}
    v_mul_u32_u24 v{T+1}, 1088, v{T+1}
    v_add_u32 v{T}, v{T}, v{T+1}
    v_lshrrev_b32 v{T+1}, 2, v{L_}
    v_and_b32 v{T+2}, 1, v{T+1}
    v_lshlrev_b32 v{T+3}, 9, v{T+2}
    v_add_u32 v{T}, v{T}, v{T+3}
    v_xor_b32 v{T+2}, s{S_W}, v{T+2}
    v_lshlrev_b32 v{T+2}, 5, v{T+2}
    v_add_u32 v{T}, v{T}, v{T+2}
    v_and_b32 v{T+2}, 3, v{L_}
    v_lshlrev_b32 v{T+2}, 3, v{T+2}
    v_add_u32 v{T}, v{T}, v{T+2}
    v_add_u32 v{V_WA}, {hex(RAW0)}, v{T}
    v_lshlrev_b32 v{T+1}, 6, v{T+1}
    v_add_u32 v{T+1}, v{T+1}, v{T+2}
    s_lshl_b32 s{S_T0}, s{S_J}, 5
    s_add_u32 s{S_T0}, s{S_T0}, {hex(RAW0+RAWB)}
    v_add_u32 v{V_WB}, s{S_T0}, v{T+1}
    v_lshlrev_b32 v{V_L16}, 4, v{L_}
    s_lshr_b32 s10, s2, 1
    s_and_b32 s11, s2, 1
    s_mul_i32 s11, s11, 18
    s_add_u32 s11, s11, s{S_W}
    s_lshl_b32 s11, s11, 7
    s_add_u32 s11, s11, s10
    s_lshl_b32 s11, s11, 10
    s_add_u32 s{S_WFS}, s11, {hex(WOF)}
    s_add_u32 s{S_WFS+1}, s{S_WFS}, 0x80000
    s_add_u32 s{S_WFS+2}, s{S_WFS+1}, 0x80000
    s_add_u32 s{S_WFS+3}, s{S_WFS+2}, 0x80000
    s_add_u32 s{S_WFS+4}, s{S_WFS+3}, 0x80000
    s_cmp_lt_u32 s{S_W}, 2
    s_cselect_b32 s{S_WFS+4}, s{S_WFS+4}, 0x10000000
    """)

def wof_produce(A):
    for e in range(5):
        dst = A_WF + 4*e
        for hf in range(2):
            if e < 4: A(f"ds_read_b64_tr_b16 {ar(dst+2*hf,2)}, v{V_WA} offset:{e*128 + hf*(RAW1-RAW0)}")
            else: A(f"ds_read_b64_tr_b16 {ar(dst+2*hf,2)}, v{V_WB} offset:{hf*(RAW1-RAW0)}")
    for e in range(5):
        A(f"s_waitcnt lgkmcnt({8 - 2*e})")
        A(f"buffer_store_dwordx4 {ar(A_WF+4*e,4)}, v{V_L16}, {sr(S_WS,4)}, s{S_WFS+e} offen sc1")

def phase_o_setup(A):
    A(f"""
    s_mul_i32 s10, s{S_SLOT}, 43
    s_lshr_b32 s10, s10, 8
    s_lshr_b32 s11, s{S_XCD}, 1
    s_mul_i32 s11, s11, 5
    s_add_u32 s11, s11, s10
    s_mul_i32 s10, s10, 6
    s_sub_u32 s10, s{S_SLOT}, s10
    s_and_b32 s{S_T0}, s{S_XCD}, 1
    s_mul_i32 s{S_T0}, s{S_T0}, 6
    s_add_u32 s10, s10, s{S_T0}
    s_lshl_b32 s{S_OO}, s11, 19
    s_mul_i32 s{S_OW}, s10, {3*131072}
    s_add_u32 s{S_OW}, s{S_OW}, {hex(WOF)}
    s_mul_i32 s{S_T0}, s11, {64*1152}
    s_mul_i32 s{S_T1}, s10, 96
    s_add_u32 s{S_T0}, s{S_T0}, s{S_T1}
    s_add_u32 s{S_OUT}, s{S_OUT}, s{S_T0}
    s_addc_u32 s{S_OUT+1}, s{S_OUT+1}, 0
    s_sub_u32 s{S_OUT+2}, {1280*1152}, s{S_T0}
    s_mov_b32 s{S_OUT+3}, 0x20000
    s_mov_b32 s{S_DBG+2}, 256
    s_mov_b32 s{S_DBG+3}, 0x20000
    s_cmp_lt_u32 s{S_SLOT}, 30
    s_cselect_b32 s{S_CONS}, 1, 0
    s_lshl_b32 s11, s11, 2
    """)
    def caddr(dst, b):
        A(f"""
        s_lshl_b32 s{S_T0}, s{b}, 5
        s_add_u32 s{S_T0}, s{S_T0}, s{S_SLOT}
        s_lshl_b32 s{S_T0}, s{S_T0}, 7
        s_add_u32 s{dst}, s{S_T0}, {hex(CNTB)}
        """)
    A(f"s_mul_i32 s10, s11, 103\ns_lshr_b32 s10, s10, 10")
    caddr(S_PA0, 10)
    A(f"s_add_u32 s11, s11, 3\ns_mul_i32 s10, s11, 103\ns_lshr_b32 s10, s10, 10")
    caddr(S_PA1, 10)
    A(f"s_lshl_b32 s{S_CO}, s{S_B}, 12\ns_add_u32 s{S_CO}, s{S_CO}, {hex(CNTB)}")
    A(f"""
    s_lshl_b32 s10, s2, 7
    s_add_u32 s10, s10, {hex(CNTB)}
    v_and_b32 v{V_X}, 31, v{V_LANE}
    v_lshlrev_b32 v{V_X}, 2, v{V_X}
    v_mov_b32 v{V_X+1}, 0
    buffer_store_dword v{V_X+1}, v{V_X}, {sr(S_WS,4)}, s10 offen sc1
    """)
    A(f"""
    s_mul_i32 s{S_T0}, s{S_B}, 10
    s_mul_i32 s{S_T1}, s{S_I}, 5
    s_add_u32 s{S_T0}, s{S_T0}, s{S_T1}
    s_lshl_b32 s{S_T0}, s{S_T0}, 5
    s_add_u32 s{S_T0}, s{S_T0}, s{S_H}
    s_lshl_b32 s{S_T0}, s{S_T0}, 1
    s_add_u32 s{S_T0}, s{S_T0}, s{S_J}
    s_lshl_b32 s{S_OB}, s{S_T0}, 11
    """)

def p1(A, q):
    A(f"s_waitcnt vmcnt({q.need(('x',0), ('wq',0))})")
    A("s_barrier")
    stamp(A, 'first')
    for grp in p1_reads(bu(0), 0, 0):
        for x in grp: A(x)
    A("s_waitcnt lgkmcnt(0)")
    kv = {11: ('K', 0, 0), 12: ('K', 1, 1), 13: ('V', 0, 0), 14: ('K', 2, 2), 15: ('K', 3, 3), 16: ('V', 1, 1)}
    xadv_pending = wadv_pending = False
    for h in range(18):
        c = h >> 1
        if h == 12: stamp(A, 'c6')
        if h == 14: stamp(A, 'c7')
        dmas, advs = [], []
        if h & 1:
            if c + 4 <= 8: dmas = tagged(xdma_ops(bu(c + 4)), ('x', c + 4))
        else:
            if c >= 1 and c + 3 <= 8: dmas = tagged(wdma_ops(bu(c + 3)), ('wq', c + 3))
        if h in kv:
            kind, tile, slot = kv[h]
            assert not dmas
            dmas = tagged(kvdma_ops(kind, tile, slot), (kind, tile))
        if h >= 2 and not (h & 1) and (h - 1 >> 1) + 4 <= 7: advs = xadv()
        if h >= 3 and (h & 1) and (h - 1 >> 1) + 3 <= 7: advs = wadv()
        if h & 1: reads = p1_reads(bu(c + 1), 0, 0) if c < 8 else []
        else: reads = p1_reads(bu(c), 1, 1)
        extra = {k: [f"v_mov_b64 {vr(V_NM+2*k,2)}, 0"] for k in range(10)} if h == 17 else None
        p1_half(A, q, h, reads, dmas, advs, extra)
        if not (h & 1):
            if c < 8: A(f"s_waitcnt vmcnt({q.need(('x', c+1), ('wq', c+1))}) lgkmcnt(0)")
            else: A("s_waitcnt lgkmcnt(0)")
            A("s_barrier")
        elif c < 8: A("s_waitcnt lgkmcnt(0)")

def q_exchange(A):
    A("s_nop 7")
    for d in range(4):
        for t in range(5):
            a = ACC(t, d)
            A(f"v_pk_mul_f32 {vr(a,2)}, {vr(a,2)}, {sr(S_SC,2)}")
            A(f"v_pk_mul_f32 {vr(a+2,2)}, {vr(a+2,2)}, {sr(S_SC,2)}")
            A(f"v_cvt_pk_bf16_f32 {vr(a)}, {vr(a)}, {vr(a+1)}")
            A(f"v_cvt_pk_bf16_f32 {vr(a+1)}, {vr(a+2)}, {vr(a+3)}")
            A(f"ds_write_b64 {vr(V_QW)}, {vr(a,2)} offset:{t*4096 + (d>>1)*1024 + (d&1)*512}")
    A(f"""
    s_mul_i32 s{S_T0}, s{S_I}, 20480
    s_add_u32 s{S_T0}, s{S_T0}, {hex(QIMG)}
    v_lshlrev_b32 v{V_X}, 4, v{V_LANE}
    v_add_u32 v{V_X}, s{S_T0}, v{V_X}
    """)
    stamp(A, 'qw')
    A("s_waitcnt vmcnt(16) lgkmcnt(0)\ns_barrier")
    stamp(A, 'qbar')
    for t in range(5):
        for s in range(4):
            A(f"ds_read_b128 {ar(QF(t,s),4)}, v{V_X} offset:{(t*4+s)*1024}")

def qk0(A):
    for a in range(2):
        for s in range(4): A(kread(0, a, s))
    A("s_waitcnt lgkmcnt(0)")
    sc = [[] for _ in range(40)]; ve = [[] for _ in range(40)]
    k = 0
    for g in range(24, 40):
        t, r = k // 4, k % 4
        ve[g].append(exp_op(0, t, 0, r)); k += 1
    emit_gaps(A, [qk_mfma(0, g) for g in range(40)], sc, ve)
    stamp(A, 'qk0')
    for a in range(2):
        for s in range(4): A(kread(1, a, s))
    for r in range(4): A(exp_op(0, 4, 0, r))
    for t in range(5):
        A(cvt_op(0, t, 0, 0)); A(cvt_op(0, t, 0, 1))
    A("s_waitcnt lgkmcnt(0)\ns_barrier")
    emit_plain(A, kvdma_ops('K', 4, 0)); emit_plain(A, kvdma_ops('V', 2, 2))
    A(f"s_cmp_lg_u32 s{S_FB}, 0\ns_cbranch_scc1 L_no_raw")
    wof_dma_issue(A)
    A.label("L_no_raw")
    A(f"""
    s_mov_b32 s{S_KO0}, {hex(5*16384)}
    s_mov_b32 s{S_KO1}, {hex(5*16384+8192)}
    s_mov_b32 s{S_VO0}, {hex(3*16384)}
    s_mov_b32 s{S_VO1}, {hex(3*16384+8192)}
    s_mov_b32 s{S_CNT}, 8
    """)

def fallback(A):
    T = V_X; M = V_T
    A.label("L_fallback")
    A("s_waitcnt vmcnt(0) lgkmcnt(0)\ns_barrier")
    for t in range(5):
        A(f"v_mov_b32 v{V_X+t}, 0xff800000")
    for r in range(V_NM, V_NM+20, 2): A(f"v_mov_b64 {vr(r,2)}, 0")
    A(f"s_mov_b32 s{S_K+2}, {hex(HEAD_BYTES)}\ns_mov_b32 s{S_V+2}, {hex(HEAD_BYTES)}")
    A(f"s_mov_b32 s{S_KO0}, 0\ns_mov_b32 s{S_KO1}, 0x2000")
    A.label("L_fb_loop")
    for grp in range(2):
        m0, dd = dma_ops('K', 0, grp)
        A(m0); A("s_nop 0"); A(dd[0]); A(dd[1])
    A("s_waitcnt vmcnt(0)\ns_barrier")
    for a in range(2):
        for s in range(4): A(kread(0, a, s))
    A("s_waitcnt lgkmcnt(0)\ns_barrier")
    for g in range(40): A(qk_mfma(0, g))
    A("s_nop 7")
    for t in range(5):
        s = [S(0, t, a, r) for a in range(2) for r in range(4)]
        for k in range(0, 8, 2):
            A(f"v_max3_f32 v{V_X+t}, v{s[k]}, v{s[k+1]}, v{V_X+t}")
    A(f"""
    s_add_u32 s{S_KO0}, s{S_KO0}, 0x4000
    s_add_u32 s{S_KO1}, s{S_KO1}, 0x4000
    s_cmp_lt_u32 s{S_KO0}, {hex(HEAD_BYTES)}
    s_cbranch_scc1 L_fb_loop
    """)
    for t in range(5):
        x = V_X + t; y = V_X + 5
        A(f"""
        v_mov_b32 v{y}, v{x}
        s_nop 1
        v_permlane32_swap_b32 v{x}, v{y}
        v_max_f32 v{x}, v{x}, v{y}
        v_mov_b32 v{y}, v{x}
        s_nop 1
        v_permlane16_swap_b32 v{x}, v{y}
        v_max_f32 v{x}, v{x}, v{y}
        """)
    A(f"""
    v_lshlrev_b32 v{V_T}, 2, v{V_LANE}
    s_mul_i32 s{S_T0}, s{S_W}, 1280
    s_add_u32 s{S_T0}, s{S_T0}, {hex(LDS_SP)}
    v_add_u32 v{V_T+1}, s{S_T0}, v{V_T}
    s_xor_b32 s{S_T1}, s{S_W}, 1
    s_mul_i32 s{S_T1}, s{S_T1}, 1280
    s_add_u32 s{S_T1}, s{S_T1}, {hex(LDS_SP)}
    v_add_u32 v{V_T+2}, s{S_T1}, v{V_T}
    """)
    for t in range(5): A(f"ds_write_b32 v{V_T+1}, v{V_X+t} offset:{t*256}")
    A("s_waitcnt lgkmcnt(0)\ns_barrier")
    for t in range(5): A(f"ds_read_b32 v{V_S+t}, v{V_T+2} offset:{t*256}")
    A("s_waitcnt lgkmcnt(0)")
    for t in range(5):
        A(f"v_max_f32 v{V_X+t}, v{V_X+t}, v{V_S+t}")
        for r in range(4): A(f"v_sub_f32 v{NM(t)+r}, 0, v{V_X+t}")
    zero_state(A, acc=False, nm=False)
    emit_plain(A, kvdma_ops('K', 0, 0)); emit_plain(A, kvdma_ops('K', 1, 1)); emit_plain(A, kvdma_ops('V', 0, 0))
    emit_plain(A, kvdma_ops('K', 2, 2)); emit_plain(A, kvdma_ops('K', 3, 3)); emit_plain(A, kvdma_ops('V', 1, 1))
    A(f"s_mov_b32 s{S_FB}, 1")
    A(f"s_mov_b32 s{S_SPM}, 0x05")
    A("s_waitcnt vmcnt(0)\ns_barrier\ns_branch L_qk0")

import os
EXP = os.environ.get('EXP', '')
NPRE = int(os.environ.get('NPRE', 6))
P1K = int(os.environ.get('P1K', 17))
NAG = 21
RING = int(os.environ.get('RING', 10))
SPIN_MAX = 1 << 17

class VMQ:
    def __init__(self, A, limit=60):
        self.A = A; self.n = 0; self.last = {}; self.done = 0; self.limit = limit
    def issue(self, tag, text):
        if self.n - self.done >= self.limit:
            keep = self.limit - 4
            self.A(f"s_waitcnt vmcnt({keep})"); self.done = self.n - keep
        self.A(text); self.n += 1; self.last[tag] = self.n
    def wait(self, *tags, extra=""):
        tgt = max(self.last[t] for t in tags)
        if tgt <= self.done:
            if extra: self.A(f"s_waitcnt {extra}")
            return
        N = self.n - tgt
        assert 0 <= N <= 63
        self.A(f"s_waitcnt vmcnt({N}) {extra}".strip()); self.done = tgt

V_OA = 1
V_OO = 5
V_PA = 6
V_PV = 7
V_L = 9
V_ACC = 12
V_RING = 60
def WF(i, nt): return (i % NAG)*12 + nt*4
def OB(i, tl): return V_RING + (i % RING)*16 + tl*4
def ACCO(tl, nt): return V_ACC + (tl*3 + nt)*4

class SOff:
    def __init__(self, A, reg): self.A = A; self.reg = reg; self.g = 0
    def at(self, i):
        g = i >> 2
        if g != self.g:
            self.A(f"s_add_u32 s{self.reg}, s{self.reg}, {(g - self.g)*4096}"); self.g = g
        return f"s{self.reg}", (f" offset:{(i & 3)*1024}" if i & 3 else "")

def epilogue(A, stamps):
    T = V_X
    XL = LDS_SP
    XF = LDS_SP + 5120
    R = V_S
    A("s_nop 7")
    for t in range(5): A(f"v_accvgpr_read_b32 v{V_KF+t}, a{L(t)}")
    A(f"""
    s_mov_b32 s{S_T0}, {f32hex(T_HI)}
    s_mov_b32 s{S_T1}, {f32hex(T_LO)}
    v_max3_f32 v{T}, v{V_KF}, v{V_KF+1}, v{V_KF+2}
    v_max3_f32 v{T}, v{T}, v{V_KF+3}, v{V_KF+4}
    v_min3_f32 v{T+1}, v{V_KF}, v{V_KF+1}, v{V_KF+2}
    v_min3_f32 v{T+1}, v{T+1}, v{V_KF+3}, v{V_KF+4}
    v_add_f32 v{T+2}, v{V_KF}, v{V_KF+1}
    v_add_f32 v{T+3}, v{V_KF+2}, v{V_KF+3}
    v_add_f32 v{T+2}, v{T+2}, v{V_KF+4}
    v_add_f32 v{T+2}, v{T+2}, v{T+3}
    v_cmp_nge_f32 vcc, s{S_T0}, v{T}
    v_cmp_nle_f32 s[{S_MSK}:{S_MSK+1}], s{S_T1}, v{T+1}
    v_cmp_u_f32 s[{S_MSK2}:{S_MSK2+1}], v{T+2}, v{T+2}
    s_or_b64 vcc, vcc, s[{S_MSK}:{S_MSK+1}]
    s_or_b64 vcc, vcc, s[{S_MSK2}:{S_MSK2+1}]
    s_cmp_lg_u64 vcc, 0
    s_cselect_b32 s{S_T0}, 1, 0
    v_mov_b32 v{T+3}, s{S_T0}
    """)
    A(f"""
    v_lshlrev_b32 v{V_T}, 2, v{V_LANE}
    s_mul_i32 s{S_T0}, s{S_W}, 1280
    s_add_u32 s{S_T0}, s{S_T0}, {hex(XL)}
    v_add_u32 v{V_T+1}, s{S_T0}, v{V_T}
    s_xor_b32 s{S_T1}, s{S_W}, 1
    s_mul_i32 s{S_T1}, s{S_T1}, 1280
    s_add_u32 s{S_T1}, s{S_T1}, {hex(XL)}
    v_add_u32 v{V_T+2}, s{S_T1}, v{V_T}
    s_lshl_b32 s{S_T0}, s{S_W}, 2
    s_add_u32 s{S_T0}, s{S_T0}, {hex(XF)}
    v_mov_b32 v{T+4}, s{S_T0}
    v_mov_b32 v{T+5}, {hex(XF)}
    v_lshlrev_b32 v{V_T}, 4, v{V_LANE}
    s_mul_i32 s{S_T0}, s{S_W}, 20480
    v_add_u32 v{T+6}, s{S_T0}, v{V_T}
    s_xor_b32 s{S_T1}, s{S_W}, 1
    s_mul_i32 s{S_T1}, s{S_T1}, 20480
    v_add_u32 v{T+7}, s{S_T1}, v{V_T}
    s_waitcnt vmcnt(0) lgkmcnt(0)
    s_barrier
    """)
    for t in range(5): A(f"ds_write_b32 v{V_T+1}, v{V_KF+t} offset:{t*256}")
    A(f"ds_write_b32 v{T+4}, v{T+3}")
    for t in range(5):
        for q in range(4):
            A(f"ds_write_b128 v{T+6}, {O(t, 4+q)} offset:{(t*4+q)*1024}")
    A("s_waitcnt lgkmcnt(0)\ns_barrier")
    stamp(A, 'ex1')
    A(f"ds_read_b128 {vr(V_KF+8,4)}, v{T+5}")
    for t in range(5): A(f"ds_read_b32 v{V_KF+16+2*t}, v{V_T+2} offset:{t*256}")
    for t in range(5):
        for q in range(4):
            A(f"ds_read_b128 {vr(R+(t*4+q)*4,4)}, v{T+7} offset:{(t*4+q)*1024}")
    A(f"""
    s_waitcnt lgkmcnt(14)
    v_or3_b32 v{T}, v{V_KF+8}, v{V_KF+9}, v{V_KF+10}
    v_or_b32 v{T}, v{T}, v{V_KF+11}
    s_nop 0
    v_readfirstlane_b32 s{S_T1}, v{T}
    s_nop 0
    s_andn2_b32 s{S_T1}, s{S_T1}, s{S_FB}
    s_cmp_lg_u32 s{S_T1}, 0
    s_cbranch_scc1 L_fallback
    """)
    for t in range(5):
        A(f"v_add_f32 v{V_KF+16+2*t}, v{V_KF+16+2*t}, v{V_KF+t}")
    for t in range(5):
        A(f"v_rcp_f32 v{V_KF+16+2*t}, v{V_KF+16+2*t}")
    q = VMQ(A)
    for t in range(5):
        A(f"s_waitcnt lgkmcnt({min(14, 16-4*t)})" if t < 4 else "s_waitcnt lgkmcnt(0)")
        inv = V_KF + 16 + 2*t
        for mm in range(2):
            for e in range(2):
                qq = 2*mm + e
                o = V_OK + t*16 + qq*4; r = R + (t*4+qq)*4
                A(f"v_pk_add_f32 {vr(o,2)}, {vr(o,2)}, {vr(r,2)}")
                A(f"v_pk_add_f32 {vr(o+2,2)}, {vr(o+2,2)}, {vr(r+2,2)}")
                A(f"v_pk_mul_f32 {vr(o,2)}, {vr(o,2)}, {vr(inv,2)} op_sel_hi:[1,0]")
                A(f"v_pk_mul_f32 {vr(o+2,2)}, {vr(o+2,2)}, {vr(inv,2)} op_sel_hi:[1,0]")
            o = V_OK + t*16 + mm*8
            A(f"v_cvt_pk_bf16_f32 v{o}, v{o}, v{o+1}")
            A(f"v_cvt_pk_bf16_f32 v{o+1}, v{o+2}, v{o+3}")
            A(f"v_cvt_pk_bf16_f32 v{o+2}, v{o+4}, v{o+5}")
            A(f"v_cvt_pk_bf16_f32 v{o+3}, v{o+6}, v{o+7}")
            A(f"s_add_u32 s{S_T1}, s{S_OB}, {t*32*4*1024 + mm*1024}")
            q.issue('st', f"buffer_store_dwordx4 {vr(o,4)}, v{V_T}, {sr(S_WS,4)}, s{S_T1} offen sc1")
    stamp(A, 'stores')
    A(f"""
    v_readfirstlane_b32 s{S_T0}, v{V_POLL}
    s_lshl_b32 s{S_T1}, s{S_W}, 15
    v_add_u32 v{V_OA}, s{S_T1}, v{V_T}
    v_add_u32 v{V_OA+1}, 0x20000, v{V_OA}
    v_add_u32 v{V_OA+2}, 0x40000, v{V_OA}
    v_add_u32 v{V_OA+3}, 0x60000, v{V_OA}
    s_cmp_lg_u32 s{S_T0}, 256
    s_cbranch_scc1 L_wspin
    """)
    A.label("L_wok")
    A(f"s_cmp_eq_u32 s{S_CONS}, 0\ns_cbranch_scc1 L_nocons")
    A(f"s_mov_b32 s{S_OW2}, s{S_OW}")
    sw = SOff(A, S_OW)
    def wload(i, so):
        if EXP == 'nowf' or (EXP == 'nolate' and i >= NAG):
            q.last[('w', i)] = 0
            return
        reg, off = so.at(i)
        for nt in range(3):
            q.issue(('w', i), f"buffer_load_dwordx4 {ar(WF(i,nt),4)}, v{V_OA+nt}, {sr(S_WS,4)}, {reg} offen{off} sc1")
    for i in range(NPRE): wload(i, sw)
    q.wait('st')
    A("s_barrier")
    A(f"""
    s_cmp_lg_u32 s{S_W}, 0
    s_cbranch_scc1 L_no_arr_o
    s_mov_b32 exec_hi, 0
    v_mov_b32 v{V_PV}, 1
    v_lshlrev_b32 v{V_PV+1}, 7, v{V_LANE}
    buffer_atomic_add v{V_PV}, v{V_PV+1}, {sr(S_WS,4)}, s{S_CO} offen
    s_mov_b64 exec, -1
    """)
    A.label("L_no_arr_o")
    stamp(A, 'arr')
    A(f"""
    v_mov_b32 v{V_PA}, s{S_PA0}
    v_mov_b32 v{V_L}, v{V_T}
    v_and_b32 v{V_OO}, 15, v{V_LANE}
    v_writelane_b32 v{V_PA}, s{S_PA1}, 1
    s_lshl_b32 s{S_T0}, s{S_W}, 4
    v_add_u32 v{V_OO}, s{S_T0}, v{V_OO}
    v_mul_u32_u24 v{V_OO}, 1152, v{V_OO}
    v_lshrrev_b32 v{V_PV+1}, 4, v{V_LANE}
    v_lshlrev_b32 v{V_PV+1}, 3, v{V_PV+1}
    v_add_u32 v{V_OO}, v{V_OO}, v{V_PV+1}
    """)
    for i in range(NPRE, P1K): wload(i, sw)
    A(f"s_cmp_lg_u32 s{S_W}, 0\ns_cbranch_scc1 L_poll_skip1")
    A(f"buffer_load_dword v{V_PV}, v{V_PA}, {sr(S_WS,4)}, 0 offen sc1")
    A.label("L_poll_skip1")
    n0 = q.n
    for i in range(P1K, NAG): wload(i, sw)
    nB = q.n - n0
    A(f"""
    s_cmp_lg_u32 s{S_W}, 0
    s_cbranch_scc1 L_poll_done
    s_mov_b32 s{S_T1}, {SPIN_MAX}
    s_waitcnt vmcnt({nB})
    """)
    A.label("L_poll_chk")
    A(f"""
    v_cmp_eq_u32 vcc, 32, v{V_PV}
    s_nop 1
    s_cmp_eq_u64 vcc, -1
    s_cbranch_scc1 L_poll_done
    s_sub_u32 s{S_T1}, s{S_T1}, 1
    s_cmp_eq_u32 s{S_T1}, 0
    s_cbranch_scc1 L_poll_done
    s_sleep 2
    buffer_load_dword v{V_PV}, v{V_PA}, {sr(S_WS,4)}, 0 offen sc1
    s_waitcnt vmcnt(0)
    s_branch L_poll_chk
    """)
    A.label("L_poll_done")
    A("s_barrier")
    stamp(A, 'sync')
    so = SOff(A, S_OO)
    def oload(i):
        reg, off = so.at(i)
        for tl in range(4):
            q.issue(('o', i), f"buffer_load_dwordx4 {vr(OB(i,tl),4)}, v{V_OA+tl}, {sr(S_WS,4)}, {reg} offen{off} sc1")
    for i in range(RING): oload(i)
    sw2 = SOff(A, S_OW2)
    for i in range(32):
        q.wait(('o', i), ('w', i))
        for nt in range(3):
            for tl in range(4):
                a = vr(ACCO(tl, nt), 4)
                A(mfma(a, ar(WF(i, nt), 4), vr(OB(i, tl), 4), a if i else "0"))
        if i + RING < 32: oload(i + RING)
        if i + NAG < 32: wload(i + NAG, sw2)
    stamp(A, 'oend')
    A(f"""
    s_mul_i32 s{S_T0}, s{S_W}, 12288
    v_add_u32 v{V_PV}, s{S_T0}, v{V_L}
    s_mul_i32 s{S_T0}, s{S_W}, 3072
    v_add_u32 v{V_PV+1}, s{S_T0}, v{V_L}
    s_nop 4
    """)
    for tl in range(4):
        for nt in range(3):
            A(f"ds_write_b128 v{V_PV}, {vr(ACCO(tl,nt),4)} offset:{(tl*3+nt)*1024}")
    A("s_waitcnt lgkmcnt(0)\ns_barrier")
    RR = V_RING
    for nt in range(3):
        for w in range(4):
            A(f"ds_read_b128 {vr(RR+(nt*4+w)*4,4)}, v{V_PV+1} offset:{w*12288 + nt*1024}")
    for nt in range(3):
        A(f"s_waitcnt lgkmcnt({8 - 4*nt})")
        a = RR + nt*16
        A(f"v_pk_add_f32 {vr(a,2)}, {vr(a,2)}, {vr(a+4,2)}")
        A(f"v_pk_add_f32 {vr(a+2,2)}, {vr(a+2,2)}, {vr(a+6,2)}")
        A(f"v_pk_add_f32 {vr(a+8,2)}, {vr(a+8,2)}, {vr(a+12,2)}")
        A(f"v_pk_add_f32 {vr(a+10,2)}, {vr(a+10,2)}, {vr(a+14,2)}")
        A(f"v_pk_add_f32 {vr(a,2)}, {vr(a,2)}, {vr(a+8,2)}")
        A(f"v_pk_add_f32 {vr(a+2,2)}, {vr(a+2,2)}, {vr(a+10,2)}")
        A(f"v_cvt_pk_bf16_f32 v{a}, v{a}, v{a+1}")
        A(f"v_cvt_pk_bf16_f32 v{a+1}, v{a+2}, v{a+3}")
        A(f"buffer_store_dwordx2 {vr(a,2)}, v{V_OO}, {sr(S_OUT,4)}, 0 offen offset:{nt*32}")
    if stamps: write_stamps(A)
    A("s_endpgm")
    A.label("L_nocons")
    A(f"""
    s_waitcnt vmcnt(0)
    s_barrier
    s_cmp_lg_u32 s{S_W}, 0
    s_cbranch_scc1 L_a_end
    s_mov_b32 exec_hi, 0
    v_mov_b32 v{V_PV}, 1
    v_lshlrev_b32 v{V_PV+1}, 7, v{V_LANE}
    buffer_atomic_add v{V_PV}, v{V_PV+1}, {sr(S_WS,4)}, s{S_CO} offen
    s_waitcnt vmcnt(0)
    s_endpgm
    """)
    A.label("L_wspin")
    A(f"s_mov_b32 s{S_T1}, {SPIN_MAX}")
    A.label("L_wspin_loop")
    A(f"""
    s_sleep 4
    buffer_load_dword v{V_POLL}, off, {sr(S_DBG,4)}, 0 sc1
    s_waitcnt vmcnt(0)
    v_readfirstlane_b32 s{S_T0}, v{V_POLL}
    s_sub_u32 s{S_T1}, s{S_T1}, 1
    s_cmp_eq_u32 s{S_T1}, 0
    s_cbranch_scc1 L_wok
    s_cmp_lg_u32 s{S_T0}, 256
    s_cbranch_scc1 L_wspin_loop
    s_branch L_wok
    """)

RT_MODE = True
STSET = os.environ.get('STSET', 'main')
STAMP_SETS = {
  'main': {'start':0, 'p1s':1, 'p1e':2, 'loops':3, 'loope':4, 'stores':5, 'arr':6, 'sync':7, 'oend':8},
  'startup': {'start':0, 'dma0':1, 'dma1':2, 'dma2':3, 'p1s':4, 'first':5, 'c6':6, 'c7':7, 'p1e':8},
  'pre': {'start':0, 'p1e':1, 'qw':2, 'qbar':3, 'qk0':4, 'loops':5, 'loope':6, 'ex1':7, 'stores':8},
}
STAMPS_ON = False
def stamp(A, name):
    if not STAMPS_ON: return
    if isinstance(name, int): k = name
    else:
        k = STAMP_SETS[STSET].get(name)
        if k is None: return
    A(f"{'s_memrealtime' if RT_MODE else 's_memtime'} s[{S_ST+2*k}:{S_ST+2*k+1}]")

STAMP_BASE = 0x4000000
def write_stamps(A):
    A("s_waitcnt vmcnt(0)")
    stamp(A, 9)
    A("s_waitcnt lgkmcnt(0)")
    for k in range(10): A(f"v_mov_b32 v{32+k}, s{S_ST+2*k}")
    A(f"""
    v_mov_b32 v42, s2
    v_mov_b32 v43, s{S_FB}
    s_lshl_b32 s{S_T0}, s2, 2
    s_add_u32 s{S_T0}, s{S_T0}, s{S_W}
    s_lshl_b32 s{S_T0}, s{S_T0}, 6
    s_add_u32 s{S_T0}, s{S_T0}, {hex(STAMP_BASE)}
    v_mov_b32 v44, s{S_T0}
    s_mov_b64 exec, 1
    buffer_store_dwordx4 v[32:35], v44, {sr(S_WS,4)}, 0 offen
    buffer_store_dwordx4 v[36:39], v44, {sr(S_WS,4)}, 0 offen offset:16
    buffer_store_dwordx4 v[40:43], v44, {sr(S_WS,4)}, 0 offen offset:32
    s_waitcnt vmcnt(0)
    """)

KN = "standalone__gqa_block_cached__near_ridge_kernel"
TOUCH = int(os.environ.get('TOUCH', 0))
V_TCH = 32
def touch_ops(A):
    T = V_TCH
    A(f"""
    s_and_b32 s3, s{S_SLOT}, 7
    s_lshl_b32 s3, s3, 2
    s_add_u32 s3, s3, s{S_W}
    s_mul_i32 s3, s3, {5*1152}
    v_mul_u32_u24 v{T}, 52, v{V_LANE}
    v_lshrrev_b32 v{T}, 8, v{T}
    v_mul_u32_u24 v{T+1}, 5, v{T}
    v_sub_u32 v{T+1}, v{V_LANE}, v{T+1}
    v_lshlrev_b32 v{T+1}, 7, v{T+1}
    v_mul_u32_u24 v{T}, 1152, v{T}
    v_add_u32 v{T}, v{T}, v{T+1}
    s_add_u32 s3, s3, {4*128}
    s_mov_b32 exec_lo, 0x1ffffff
    s_mov_b32 exec_hi, 0
    buffer_load_dword a240, v{T}, {sr(S_X,4)}, s3 offen
    s_mov_b64 exec, -1
    s_lshr_b32 s3, s{S_SLOT}, 3
    s_lshl_b32 s3, s3, 2
    s_add_u32 s3, s3, s{S_W}
    s_mul_i32 s3, s3, {20*8192}
    s_add_u32 s3, s3, {256*8192}
    v_lshrrev_b32 v{T+2}, 1, v{V_LANE}
    v_lshlrev_b32 v{T+2}, 13, v{T+2}
    v_and_b32 v{T+3}, 1, v{V_LANE}
    v_lshlrev_b32 v{T+3}, 7, v{T+3}
    v_add_u32 v{T+2}, v{T+2}, v{T+3}
    s_mov_b32 exec_hi, 0xff
    buffer_load_dword a241, v{T+2}, {sr(S_WQ,4)}, s3 offen
    s_mov_b64 exec, -1
    """)
FILL_PER_DMA = int(os.environ.get('FPD', 10))
def kernel(A, stamps=False):
    A(f""".text
    .globl {KN}
    .p2align 8
    .type {KN},@function""")
    A.label(KN)
    late = setup_ids(A, "L_a_end")
    stamp(A, 'start')
    late2 = setup_dma_addrs(A)
    F = Asm()
    for x in late2 + late: F(x)
    setup_read_addrs(F)
    F(f"s_mov_b32 s{S_FB}, 0")
    F(f"s_mov_b32 s{S_SPM}, 0xc5")
    wof_addr_setup(F)
    phase_o_setup(F)
    zero_state(F, acc=False, nm=False)
    wof_dma_setup(F)
    fill = list(F.lines)
    q = VCount()
    def emit_fill(n):
        k = 0
        while fill and (k < n or fill[0].startswith(("s_addc", "s_subb", "s_cselect"))):
            x = fill.pop(0); A(x); k += 1
            if x.startswith("buffer_"): q.note('misc')
        if k == 0 and n == 1: A("s_nop 0")
    stamp(A, 'dma0')
    for c in range(4):
        for ops, tag in ((xdma_ops(bu(c)), ('x', c)), (wdma_ops(bu(c)), ('wq', c))):
            for pre, d in ops:
                if pre: A(pre); emit_fill(1)
                A(d); q.note(tag)
                if c or tag[0] == 'wq': emit_fill(FILL_PER_DMA)
            for x in (xadv() if tag[0] == 'x' else wadv()): A(x)
        if c == 0: stamp(A, 'dma1')
    if TOUCH:
        T = V_X
        tl = Asm(); touch_ops(tl)
        for x in tl.lines:
            A(x)
            if x.startswith("buffer_"): q.note('misc')
    stamp(A, 'dma2')
    emit_fill(10000)
    stamp(A, 'p1s')
    p1(A, q)
    stamp(A, 'p1e')
    q_exchange(A)
    A.label("L_qk0")
    qk0(A)
    stamp(A, 'loops')
    A(".p2align 6")
    A.label("L_loop")
    i0 = len(A.lines)
    for u in range(4):
        step(A, (1 + u) & 3, last_in_loop=(u == 3), loop_label="L_loop")
    i1 = len(A.lines)
    for p in check_hazards(A.lines[i0:i1]*2, "loop"): print("HAZARD", p)
    stamp(A, 'loope')
    epilogue(A, stamps)
    A.label("L_a_end")
    A("s_endpgm")
    special_blocks(A)
    fallback(A)

KC = "gqa_probe_kernel"
def kernel_c(A, offa, offb, mult=16):
    A(f""".text
    .globl {KC}
    .p2align 8
    .type {KC},@function""")
    A.label(KC)
    A(f"""
    s_load_dwordx2 s[8:9], s[0:1], 56
    s_cmp_ge_u32 s2, 1
    s_cbranch_scc1 L_c_end
    s_memrealtime s[20:21]
    s_waitcnt lgkmcnt(0)
    s_add_u32 s10, s8, {hex(offa)}
    s_addc_u32 s11, s9, 0
    s_add_u32 s12, s8, {hex(offb)}
    s_addc_u32 s13, s9, 0
    s_load_dword s14, s[10:11], 0
    s_load_dword s15, s[12:13], 0
    s_waitcnt lgkmcnt(0)
    s_sub_u32 s14, s15, s14
    s_min_u32 s14, s14, 20000
    s_mul_i32 s14, s14, {mult}
    """)
    A.label("L_c_loop")
    A(f"""
    s_memrealtime s[22:23]
    s_waitcnt lgkmcnt(0)
    s_sub_u32 s16, s22, s20
    s_cmp_lt_u32 s16, s14
    s_cbranch_scc1 L_c_loop
    """)
    A.label("L_c_end")
    A("s_endpgm")

def descriptor(name, vgpr, accum, sgpr=102):
    return f""".amdhsa_kernel {name}
    .amdhsa_next_free_vgpr {vgpr}
    .amdhsa_next_free_sgpr {sgpr}
    .amdhsa_accum_offset {accum}
    .amdhsa_group_segment_fixed_size 0
    .amdhsa_kernarg_size 64
    .amdhsa_user_sgpr_count 2
    .amdhsa_user_sgpr_kernarg_segment_ptr 1
    .amdhsa_system_sgpr_workgroup_id_x 1
    .end_amdhsa_kernel"""

HEADER = """; Kernarg layout for this problem (64 bytes, ptrs only, base s[0:1]):
;   offset  24: d_in[3] wq  shape=(576, 4096) dtype=bfloat16 strides=(8192, 2) contiguous=True
"""

def gen(stamps=False, probe=None):
    global STAMPS_ON
    STAMPS_ON = bool(stamps)
    A = Asm()
    kernel(A, stamps)
    if probe: kernel_c(A, *probe)
    A('.section .rodata,"a"\n.p2align 6')
    if probe:
        A(descriptor(KC, 32, 32)); A(".p2align 6")
    A(descriptor(KN, 512, 256))
    for p in check_hazards(A.lines, "all"): print("HAZARD", p)
    hdr = HEADER
    if probe:
        hdr += f"; @launch kernel={KN} grid=(256,1,1) block=(256,1,1) lds={LDS_A}\n"
        hdr += f"; @launch kernel={KC} grid=(1,1,1) block=(64,1,1) lds=0\n"
    else:
        hdr += f"; @launch grid=(256,1,1) block=(256,1,1) lds={LDS_A}\n"
    return hdr + '.amdgcn_target "amdgcn-amd-amdhsa--gfx950"\n' + A.text()

if __name__ == "__main__":
    import sys
    from hiprt import add_meta
    mode = sys.argv[1] if len(sys.argv) > 1 else ""
    if mode == "probe":
        a = lambda k, wg=0: STAMP_BASE + wg*256 + 4*k
        P = {"p1": (a(0), a(2)), "pre": (a(2), a(3)), "loop": (a(3), a(4)), "epi": (a(4), a(5)), "arr": (a(5), a(6)),
             "sync": (a(6), a(7)), "oloop": (a(7), a(8)), "fin": (a(8), a(9))}
        for n, pr in P.items():
            open(f"../cdna_kernels/probe_{n}.s", "w").write(gen(1, pr))
        print("probes written"); sys.exit(0)
    if mode == "stamps":
        open(os.environ.get('OUT', "fused_st.s"), "w").write(add_meta(gen(1), [(KN, 512, 256)]))
    elif mode == "cyc":
        RT_MODE = False
        open(os.environ.get('OUT', "fused_cyc.s"), "w").write(add_meta(gen(1), [(KN, 512, 256)]))
    else:
        open(os.environ.get('OUT', "fused.s"), "w").write(gen(0))
    print("written")
```

```python
from asmlib import *
import struct, math

KA = "standalone__gqa_block_cached__near_ridge_kernel"
KB = "gqa_oproj_kernel"

V_KD0, V_KD1, V_VD0, V_VD1 = 1, 2, 3, 4
V_KR = 5
V_VR = 9
V_LANE = 17
V_XD0, V_XD1 = 18, 19
V_WD = 20
V_XR = 21
V_WR = 23
V_QW = 27
V_T = 28
V_S = 32
V_NM = 112
V_OK = 132
V_KF = 212
V_ONE = 244
V_X = 248
A_OS = 0
A_L = 80
A_VF = 100
A_Q = 132

def S(sig, t, a, r=0): return V_S + sig*40 + t*8 + a*4 + r
def NM(t): return V_NM + 4*t
def QF(t, s): return A_Q + (t*4 + s)*4
def KF(a, s): return V_KF + (a*4 + s)*4
def VF(db): return A_VF + db*4
def O(t, idx):
    return vr(V_OK + t*16 + idx*4, 4) if idx < 4 else ar(A_OS + t*16 + (idx-4)*4, 4)
def L(t): return A_L + 4*t
def ACC(t, d): return V_S + (t*4 + d)*4
def PA(p, d): return V_KF + p*16 + d*4
def PB(p, t): return A_Q + p*20 + t*4

S_K = 12; S_V = 16; S_WS = 20
S_W, S_I, S_J, S_M0 = 24, 25, 26, 27
S_KO0, S_KO1, S_VO0, S_VO1 = 28, 29, 30, 31
S_CNT = 32
S_B, S_H = 33, 34
S_T0, S_T1 = 35, 36
S_X = 40
S_WQ = 44
S_XO = 48
S_WO = 53
S_MX = 57
S_FB = 58
S_SC = 60
S_ST = 64
S_SLOT, S_XCD = 37, 38
S_CO = 39
S_MSK = 62
S_DBG = 84
S_OUT = 88
S_WOR = 92
S_MSK2 = 10
S_SPM = 101
S_WFS = 96
S_OO, S_OW, S_OW2, S_PA0, S_PA1, S_CONS = 4, 5, 6, 7, 8, 9
S_OB = 59
V_POLL = 31
V_WA = 28
V_WB = 29
V_L16 = 30
V_XR2 = 112
V_WR2 = 116
V_RWA, V_RWB = 254, 255
A_WF = 212
WOF = 0x1000000
CNTB = 0x2000000
RAW0, RAW1 = 0x20000, 0x24000
RAWB = 0x2400

LDS_K = 0; LDS_V = 0x10000; LDS_SP = 0x20000
HEAD_BYTES = 2048*128*2
PBUF = [0x4000 + u*0x9000 for u in range(4)]
XB = PBUF
WQB = [b + 0x5000 for b in PBUF]
def bu(c): return (c + 3) & 3
QIMG = 0x1E000
LDS_A = 163840

def f32hex(x): return hex(struct.unpack("<I", struct.pack("<f", x))[0])
SCALE = math.log2(math.e) / math.sqrt(128.0)
T_HI = 2.0**64
T_LO = 2.0**-40

def mfma(d, a, b, c): return f"v_mfma_f32_16x16x32_bf16 {d}, {a}, {b}, {c}"

def qk_mfma(sig, g):
    a = g // 20; s = (g % 20) // 5; t = g % 5
    d = vr(S(sig, t, a), 4)
    c = d if s else vr(NM(t), 4)
    return mfma(d, vr(KF(a, s), 4), ar(QF(t, s), 4), c)
def pv_mfma(sigp, idx):
    db = idx // 5; t = idx % 5
    p = vr(S(sigp, t, 0), 4)
    if db < 8: return mfma(O(t, db), ar(VF(db), 4), p, O(t, db))
    return mfma(ar(L(t), 4), vr(V_ONE, 4), p, ar(L(t), 4))

def exp_op(sig, t, a, r): return f"v_exp_f32 {vr(S(sig,t,a,r))}, {vr(S(sig,t,a,r))}"
def cvt_op(sig, t, a, h):
    return f"v_cvt_pk_bf16_f32 {vr(S(sig,t,0,2*a+h))}, {vr(S(sig,t,a,2*h))}, {vr(S(sig,t,a,2*h+1))}"
def kread(slot, a, s): return f"ds_read_b128 {vr(KF(a,s),4)}, {vr(V_KR+s)} offset:{slot*16384 + a*4096}"
def vread(slot, db, hf): return f"ds_read_b64_tr_b16 {ar(VF(db)+2*hf,2)}, {vr(V_VR+db)} offset:{slot*16384 + hf*4096}"

import os
PF = int(os.environ.get("PF", 0))
PFH = int(os.environ.get("PFH", 0))
PF_AUX = os.environ.get("PF_AUX", "")
V_PF = 253
S_PFD = 40; S_PFO = 48
KV_AUX = os.environ.get("KV_AUX", " nt")
X_AUX = os.environ.get("X_AUX", "")
WQ_AUX = os.environ.get("WQ_AUX", "")
WO_AUX = os.environ.get("WO_AUX", "")
def dma_ops(kind, slot, grp):
    base = (LDS_K if kind == 'K' else LDS_V) + slot*16384 + grp*8192
    srd = sr(S_K if kind == 'K' else S_V, 4)
    so = sr((S_KO0 if kind == 'K' else S_VO0) + grp)
    v0, v1 = (V_KD0, V_KD1) if kind == 'K' else (V_VD0, V_VD1)
    return (f"s_add_u32 m0, {sr(S_M0)}, {hex(base)}",
            [f"buffer_load_dwordx4 {vr(v0)}, {srd}, {so} offen{KV_AUX} lds",
             f"buffer_load_dwordx4 {vr(v1)}, {srd}, {so} offen offset:1024{KV_AUX} lds"])

def emit_gaps(A, mf, sc, ve):
    for g in range(len(mf)):
        A(mf[g])
        assert len(sc[g]) <= 1, (g, sc[g])
        for x in sc[g]: A(x)
        for x in ve[g]: A(x)

def step(A, n4, last_in_loop=False, loop_label=None):
    sig = n4 & 1; sp = 1 - sig
    NG = 85
    sc = [[] for _ in range(NG)]
    ve = [[] for _ in range(NG)]
    for t in range(5):
        for r in range(4): ve[8*t + 2*r].append(exp_op(sp, t, 1, r))
    vslot = (n4 - 1) & 3
    vr_ops = [vread(vslot, db, hf) for db in range(8) for hf in range(2)]
    k = 0
    for g in range(1, 40, 2):
        if g % 4 == 1:
            if k < 16:
                ve[g].append(vr_ops[k]); k += 1
                if k < 16: ve[g].append(vr_ops[k]); k += 1
        else:
            if k < 16: ve[g].append(vr_ops[k]); k += 1
            t = g // 8; h = (g % 8) // 4
            ve[g].append(cvt_op(sp, t, 1, h))
    assert k == 16
    for t in range(5):
        for r in range(4): ve[40 + 8*t + 2*r].append(exp_op(sig, t, 0, r))
    kslot = (n4 + 1) & 3
    kr_ops = [kread(kslot, a, s) for a in range(2) for s in range(4)]
    k = 0
    for g in range(43, 80, 4):
        if k < 8: ve[g].append(kr_ops[k]); k += 1
        t = (g - 40) // 8; h = ((g - 40) % 8) // 4
        ve[g].append(cvt_op(sig, t, 0, h))
    dk = n4 & 3; dv = (n4 + 2) & 3
    groups = [dma_ops('K', dk, 0), dma_ops('K', dk, 1), dma_ops('V', dv, 0), dma_ops('V', dv, 1)]
    dgaps = [25, 29, 33, 37, 41, 45, 49, 53]
    for q in range(4):
        m0, dd = groups[q]
        g0, g1 = dgaps[2*q], dgaps[2*q+1]
        assert not ve[g0] and not ve[g1], (g0, g1, ve[g0], ve[g1])
        sc[g0-1].append(m0)
        ve[g0].append(dd[0]); ve[g1].append(dd[1])
    sc[2].append(f"s_cmp_lt_u32 {sr(S_KO0)}, {hex(HEAD_BYTES)}")
    sc[3].append(f"s_cselect_b32 {sr(S_K+2)}, {hex(HEAD_BYTES)}, 0")
    sc[4].append(f"s_cmp_lt_u32 {sr(S_VO0)}, {hex(HEAD_BYTES)}")
    sc[5].append(f"s_cselect_b32 {sr(S_V+2)}, {hex(HEAD_BYTES)}, 0")
    sc[56].append(f"s_add_u32 {sr(S_KO0)}, {sr(S_KO0)}, 0x4000")
    sc[57].append(f"s_add_u32 {sr(S_KO1)}, {sr(S_KO1)}, 0x4000")
    sc[58].append(f"s_add_u32 {sr(S_VO0)}, {sr(S_VO0)}, 0x4000")
    sc[59].append(f"s_add_u32 {sr(S_VO1)}, {sr(S_VO1)}, 0x4000")
    sc[39].append("s_waitcnt lgkmcnt(0)")
    if PF:
        assert not ve[57]
        ve[57].append(f"buffer_load_dword a255, v{V_PF}, {sr(S_PFD,4)}, s{S_PFO} offen{PF_AUX}")
        sc[60].append(f"s_add_u32 s{S_PFO}, s{S_PFO}, 0x4000")
    if last_in_loop:
        sc[82].append(f"s_sub_u32 {sr(S_CNT)}, {sr(S_CNT)}, 1")
    A(f"s_waitcnt vmcnt({18 if PF else 16}) lgkmcnt(0)")
    A("s_barrier")
    mf = [qk_mfma(sig, g) if g < 40 else pv_mfma(sp, g - 40) for g in range(NG)]
    emit_gaps(A, mf, sc, ve)
    if last_in_loop:
        A(f"s_bitcmp1_b32 {sr(S_SPM)}, {sr(S_CNT)}")
        A(f"s_cbranch_scc0 {loop_label}")
        A("s_branch L_special")
        A.label("L_loop_exit")

def special_blocks(A):
    A.label("L_special")
    A(f"""
    s_cmp_eq_u32 s{S_CNT}, 0
    s_cbranch_scc1 L_loop_exit
    s_cmp_eq_u32 s{S_CNT}, 2
    s_cbranch_scc1 L_sp_poll
    s_cmp_eq_u32 s{S_CNT}, 6
    s_cbranch_scc1 L_sp_arr
    """)
    wof_produce(A)
    A("s_branch L_loop")
    A.label("L_sp_arr")
    A(f"""
    s_cmp_lg_u32 s{S_W}, 0
    s_cbranch_scc1 L_loop
    s_mov_b64 exec, 1
    v_mov_b32 v{V_X}, 1
    buffer_atomic_add v{V_X}, off, {sr(S_DBG,4)}, 0
    s_mov_b64 exec, -1
    s_branch L_loop
    """)
    A.label("L_sp_poll")
    A(f"buffer_load_dword v{V_POLL}, off, {sr(S_DBG,4)}, 0 sc1")
    A("s_branch L_loop")

def setup_ids(A, endlabel):
    A(f"""
    s_load_dwordx4 s[4:7], s[0:1], 8
    s_load_dwordx2 s[8:9], s[0:1], 56
    s_load_dwordx2 s[{S_X}:{S_X+1}], s[0:1], 0
    s_load_dwordx2 s[{S_WQ}:{S_WQ+1}], s[0:1], 24
    s_load_dwordx2 s[{S_WOR}:{S_WOR+1}], s[0:1], 32
    s_load_dwordx2 s[{S_OUT}:{S_OUT+1}], s[0:1], 40
    s_load_dwordx2 s[{S_DBG}:{S_DBG+1}], s[0:1], 48
    s_cmp_ge_u32 s2, 256
    s_cbranch_scc1 {endlabel}
    v_lshrrev_b32 v{V_T}, 6, v0
    v_and_b32 v{V_LANE}, 63, v0
    v_readfirstlane_b32 s{S_W}, v{V_T}
    s_and_b32 s3, s2, 7
    s_lshr_b32 s10, s2, 3
    s_mov_b32 s{S_XCD}, s3
    s_mov_b32 s{S_SLOT}, s10
    s_and_b32 s11, s3, 1
    s_lshl_b32 s11, s11, 2
    s_lshr_b32 s{S_T0}, s10, 3
    s_add_u32 s{S_B}, s11, s{S_T0}
    s_lshr_b32 s11, s3, 1
    s_lshl_b32 s11, s11, 3
    s_and_b32 s{S_T0}, s10, 7
    s_add_u32 s{S_H}, s11, s{S_T0}
    s_lshr_b32 s{S_I}, s{S_W}, 1
    s_and_b32 s{S_J}, s{S_W}, 1
    s_lshl_b32 s{S_M0}, s{S_W}, 11
    s_mul_i32 s{S_MX}, s{S_W}, 5120
    s_lshl_b32 s11, s{S_B}, 4
    s_lshr_b32 s{S_T0}, s{S_H}, 1
    s_add_u32 s11, s11, s{S_T0}
    s_lshr_b32 s{S_KO0}, s11, 13
    s_lshl_b32 s{S_T0}, s11, 19
    s_mul_i32 s10, s{S_B}, 184320
    s_lshl_b32 s11, s{S_H}, 8
    s_waitcnt lgkmcnt(0)
    s_add_u32 s{S_X}, s{S_X}, s10
    s_addc_u32 s{S_X+1}, s{S_X+1}, 0
    s_mov_b32 s{S_X+2}, 184320
    s_mov_b32 s{S_X+3}, 0x20000
    s_add_u32 s{S_WQ}, s{S_WQ}, s11
    s_addc_u32 s{S_WQ+1}, s{S_WQ+1}, 0
    s_sub_u32 s{S_WQ+2}, {576*8192}, s11
    s_mov_b32 s{S_WQ+3}, 0x20000
    s_mov_b32 s3, s{S_T0}
    """)
    L = Asm()
    L(f"""
    s_add_u32 s{S_K}, s4, s3
    s_addc_u32 s{S_K+1}, s5, s{S_KO0}
    s_mov_b32 s{S_K+2}, {hex(HEAD_BYTES)}
    s_mov_b32 s{S_K+3}, 0x20000
    s_add_u32 s{S_V}, s6, s3
    s_addc_u32 s{S_V+1}, s7, s{S_KO0}
    s_mov_b32 s{S_V+2}, {hex(HEAD_BYTES)}
    s_mov_b32 s{S_V+3}, 0x20000
    s_mov_b32 s{S_WS}, s8
    s_mov_b32 s{S_WS+1}, s9
    s_mov_b32 s{S_WS+2}, 0x10000000
    s_mov_b32 s{S_WS+3}, 0x20000
    """)
    return L.lines

def setup_dma_addrs(A):
    T = V_X; L_ = V_LANE
    A(f"""
    v_lshrrev_b32 v{T}, 4, v{L_}
    v_and_b32 v{T+1}, 15, v{L_}
    v_lshrrev_b32 v{T+2}, 3, v{L_}
    v_and_b32 v{T+3}, 7, v{L_}
    s_mul_i32 s{S_T0}, s{S_W}, {40*1152}
    s_and_b32 s{S_T1}, s{S_W}, 1
    s_lshl_b32 s{S_T1}, s{S_T1}, 2
    v_mul_u32_u24 v{T+4}, 1152, v{T+2}
    v_add_u32 v{T+4}, s{S_T0}, v{T+4}
    v_xor_b32 v{T+5}, v{T+3}, v{T}
    v_xor_b32 v{T+5}, s{S_T1}, v{T+5}
    v_lshlrev_b32 v{T+6}, 4, v{T+5}
    v_add_u32 v{V_XD0}, v{T+4}, v{T+6}
    v_xor_b32 v{T+6}, 64, v{T+6}
    v_add_u32 v{V_XD1}, v{T+4}, v{T+6}
    """)
    A(f"""
    v_or_b32 v{T+4}, s{S_T1}, v{T}
    v_lshlrev_b32 v{T+4}, 1, v{T+4}
    v_xor_b32 v{T+4}, v{T+4}, v{T+1}
    v_lshlrev_b32 v{T+4}, 4, v{T+4}
    s_lshl_b32 s{S_T0}, s{S_W}, 3
    v_add_u32 v{T+5}, s{S_T0}, v{T}
    v_lshlrev_b32 v{T+6}, 13, v{T+5}
    v_add_u32 v{V_WD}, v{T+4}, v{T+6}
    """)
    for e in range(5): A(f"s_mov_b32 s{S_XO+e}, {e*8192 if e < 4 else 4*9216}")
    for e in range(4): A(f"s_mov_b32 s{S_WO+e}, {(e>>1)*32*8192 + (e&1)*(32768-1024)}")
    L = Asm()
    for e, (vk, vv) in enumerate([(V_KD0, V_VD0), (V_KD1, V_VD1)]):
        L(f"""
        v_add_u32 v{T+2}, {4*e}, v{T+5}
        v_and_b32 v{T+3}, 15, v{T+2}
        v_xor_b32 v{T+3}, v{T+3}, v{T+1}
        v_lshlrev_b32 v{T+3}, 4, v{T+3}
        v_lshlrev_b32 v{T+4}, 8, v{T+2}
        v_add_u32 v{vk}, v{T+3}, v{T+4}
        v_and_b32 v{T+3}, 7, v{T+2}
        v_lshlrev_b32 v{T+3}, 1, v{T+3}
        v_xor_b32 v{T+3}, v{T+3}, v{T+1}
        v_lshlrev_b32 v{T+3}, 4, v{T+3}
        v_add_u32 v{vv}, v{T+3}, v{T+4}
        """)
        if e:
            L(f"v_subrev_u32 v{vk}, 1024, v{vk}")
            L(f"v_subrev_u32 v{vv}, 1024, v{vv}")
    return L.lines

def xdma_ops(u):
    srd = sr(S_X, 4)
    out = []
    for e in range(5):
        m0 = None
        if e == 0: m0 = f"s_add_u32 m0, {sr(S_MX)}, {hex(XB[u])}"
        if e == 4: m0 = f"s_add_u32 m0, {sr(S_MX)}, {hex(XB[u] + 4096)}"
        v = V_XD0 if e % 2 == 0 else V_XD1
        off = f" offset:{e*1024}" if 0 < e < 4 else ""
        out.append((m0, f"buffer_load_dwordx4 {vr(v)}, {srd}, {sr(S_XO+e)} offen{off}{X_AUX} lds"))
    return out
def xadv(): return [f"s_add_u32 {sr(S_XO+e)}, {sr(S_XO+e)}, 128" for e in range(5)]
def wdma_ops(u):
    srd = sr(S_WQ, 4)
    out = []
    for e in range(4):
        m0 = f"s_add_u32 m0, {sr(S_M0)}, {hex(WQB[u] + (e>>1)*8192)}" if e % 2 == 0 else None
        off = " offset:1024" if e & 1 else ""
        out.append((m0, f"buffer_load_dwordx4 {vr(V_WD)}, {srd}, {sr(S_WO+e)} offen{off}{WQ_AUX} lds"))
    return out
def wadv(): return [f"s_add_u32 {sr(S_WO+e)}, {sr(S_WO+e)}, 0x80000" for e in range(4)]
def kvdma_ops(kind, tile_n, slot):
    out = []
    for grp in range(2):
        so = (S_KO0 if kind == 'K' else S_VO0) + grp
        m0, dd = dma_ops(kind, slot, grp)
        out.append(([f"s_mov_b32 s{so}, {hex(tile_n*16384 + grp*8192)}", m0], dd[0]))
        out.append(([], dd[1]))
    return out

def emit_plain(A, ops):
    for pre, d in ops:
        if pre:
            for x in (pre if isinstance(pre, list) else [pre]): A(x)
            A("s_nop 0")
        A(d)

def setup_read_addrs(A):
    T = V_X; L_ = V_LANE
    A(f"""
    v_lshrrev_b32 v{T}, 4, v{L_}
    v_and_b32 v{T+1}, 15, v{L_}
    """)
    A(f"""
    s_mul_i32 s{S_T0}, s{S_I}, {80*128}
    s_add_u32 s{S_T0}, s{S_T0}, {hex(XB[0])}
    v_lshrrev_b32 v{T+2}, 1, v{T+1}
    v_xor_b32 v{T+2}, v{T+2}, v{T}
    v_lshlrev_b32 v{T+2}, 4, v{T+2}
    v_lshlrev_b32 v{T+3}, 7, v{T+1}
    v_add_u32 v{T+3}, s{S_T0}, v{T+3}
    v_add_u32 v{V_XR}, v{T+2}, v{T+3}
    v_xor_b32 v{T+2}, 64, v{T+2}
    v_add_u32 v{V_XR+1}, v{T+2}, v{T+3}
    v_add_u32 v{V_XR2}, 0x12000, v{V_XR}
    v_add_u32 v{V_XR2+1}, 0x12000, v{V_XR+1}
    """)
    A(f"""
    v_lshrrev_b32 v{T+2}, 2, v{T+1}
    v_and_b32 v{T+3}, 1, v{T}
    v_lshlrev_b32 v{T+3}, 2, v{T+3}
    v_or_b32 v{T+3}, v{T+3}, v{T+2}
    v_lshlrev_b32 v{T+4}, 3, v{T}
    v_add_u32 v{T+4}, v{T+4}, v{T+2}
    v_lshlrev_b32 v{T+4}, 8, v{T+4}
    v_and_b32 v{T+5}, 3, v{L_}
    v_lshlrev_b32 v{T+5}, 3, v{T+5}
    v_add_u32 v{T+4}, v{T+4}, v{T+5}
    v_add_u32 v{T+4}, {hex(WQB[0])}, v{T+4}
    s_lshl_b32 s{S_T0}, s{S_J}, 2
    v_xor_b32 v{T+3}, s{S_T0}, v{T+3}
    """)
    for d in range(4):
        A(f"""
        v_xor_b32 v{T+5}, {d}, v{T+3}
        v_lshlrev_b32 v{T+5}, 5, v{T+5}
        v_add_u32 v{V_WR+d}, v{T+4}, v{T+5}
        v_add_u32 v{V_WR2+d}, 0x12000, v{V_WR+d}
        """)
    A(f"""
    s_mul_i32 s{S_T0}, s{S_I}, 20480
    s_lshl_b32 s{S_T1}, s{S_J}, 11
    s_add_u32 s{S_T0}, s{S_T0}, s{S_T1}
    s_add_u32 s{S_T0}, s{S_T0}, {hex(QIMG)}
    v_lshrrev_b32 v{T+2}, 1, v{T}
    v_lshlrev_b32 v{T+2}, 8, v{T+2}
    v_lshlrev_b32 v{T+3}, 4, v{T+1}
    v_add_u32 v{T+2}, v{T+2}, v{T+3}
    v_and_b32 v{T+3}, 1, v{T}
    v_lshlrev_b32 v{T+3}, 3, v{T+3}
    v_add_u32 v{T+2}, v{T+2}, v{T+3}
    v_add_u32 v{V_QW}, s{S_T0}, v{T+2}
    """)
    A(f"s_lshl_b32 s{S_T0}, s{S_J}, 13")
    for s in range(4):
        A(f"""
        v_add_u32 v{T+2}, {4*s}, v{T}
        v_xor_b32 v{T+2}, v{T+2}, v{T+1}
        v_lshlrev_b32 v{T+2}, 4, v{T+2}
        v_lshlrev_b32 v{T+3}, 8, v{T+1}
        v_add_u32 v{T+2}, v{T+2}, v{T+3}
        v_add_u32 v{V_KR+s}, s{S_T0}, v{T+2}
        """)
    A(f"""
    v_lshrrev_b32 v{T+2}, 2, v{T+1}
    v_lshlrev_b32 v{T+3}, 2, v{T}
    v_add_u32 v{T+2}, v{T+2}, v{T+3}
    v_and_b32 v{T+3}, 7, v{T+2}
    v_lshlrev_b32 v{T+2}, 8, v{T+2}
    v_and_b32 v{T+4}, 3, v{L_}
    v_lshlrev_b32 v{T+4}, 3, v{T+4}
    v_add_u32 v{T+2}, v{T+2}, v{T+4}
    s_add_u32 s{S_T0}, s{S_T0}, {hex(LDS_V)}
    v_add_u32 v{T+2}, s{S_T0}, v{T+2}
    s_lshl_b32 s{S_T1}, s{S_J}, 2
    v_xor_b32 v{T+3}, s{S_T1}, v{T+3}
    """)
    for idx in range(8):
        A(f"""
        v_xor_b32 v{T+4}, {idx}, v{T+3}
        v_lshlrev_b32 v{T+4}, 5, v{T+4}
        v_add_u32 v{V_VR+idx}, v{T+2}, v{T+4}
        """)
    A(f"""
    v_and_b32 v{T+2}, 3, v{L_}
    v_cmp_eq_u32 vcc, 0, v{T+2}
    v_mov_b32 v{T+3}, 0x3f803f80
    s_mov_b32 s{S_SC}, {f32hex(SCALE)}
    s_mov_b32 s{S_SC+1}, {f32hex(SCALE)}
    v_cndmask_b32 v{V_ONE}, 0, v{T+3}, vcc
    v_cndmask_b32 v{V_ONE+1}, 0, v{T+3}, vcc
    v_cndmask_b32 v{V_ONE+2}, 0, v{T+3}, vcc
    v_cndmask_b32 v{V_ONE+3}, 0, v{T+3}, vcc
    """)

def zero_state(A, acc=True, nm=True):
    if acc:
        for r in range(V_S, V_S+80, 2): A(f"v_mov_b64 {vr(r,2)}, 0")
    if nm:
        for r in range(V_NM, V_NM+20, 2): A(f"v_mov_b64 {vr(r,2)}, 0")
    for r in range(V_OK, V_OK+80, 2): A(f"v_mov_b64 {vr(r,2)}, 0")
    A("v_accvgpr_write_b32 a0, 0")
    A("s_nop 1")
    for r in range(1, 100): A(f"v_accvgpr_mov_b32 a{r}, a0")

def xread(u, kap, p, t):
    return f"ds_read_b128 {ar(PB(p,t),4)}, {vr((V_XR if u < 2 else V_XR2)+kap)} offset:{(u&1)*0x9000 + t*2048}"
def wread(u, kap, p, d, hf):
    return f"ds_read_b64_tr_b16 {vr(PA(p,d)+2*hf,2)}, {vr((V_WR if u < 2 else V_WR2)+d)} offset:{(u&1)*0x9000 + kap*8192 + hf*1024}"
def p1_reads(u, kap, p):
    g = [[xread(u, kap, p, 0)], [wread(u, kap, p, 0, 0), wread(u, kap, p, 0, 1)]]
    g += [[xread(u, kap, p, t)] for t in range(1, 5)]
    g += [[wread(u, kap, p, d, 0), wread(u, kap, p, d, 1)] for d in range(1, 4)]
    return g
def p1_mfma(p, g, czero=False):
    d = g // 5; t = g % 5
    a = vr(ACC(t, d), 4)
    return mfma(a, vr(PA(p, d), 4), ar(PB(p, t), 4), "0" if czero else a)

class VCount:
    def __init__(self): self.n = 0; self.last = {}
    def note(self, tag): self.n += 1; self.last[tag] = self.n
    def need(self, *tags): return self.n - max(self.last[t] for t in tags)

def p1_half(A, q, h, reads, dmas, advs, extra=None):
    p = h & 1
    sc = [[] for _ in range(20)]; ve = [[] for _ in range(20)]
    for k, grp in enumerate(reads): ve[k] = list(grp)
    n = len(dmas)
    gaps = [10, 12, 14, 16, 18][:n]
    assert n <= 5
    for (pre, d, tag), gg in zip(dmas, gaps):
        pre = [] if pre is None else (pre if isinstance(pre, list) else [pre])
        assert len(pre) <= 2
        for k, x in enumerate(pre):
            sc[gg - len(pre) + k].append(x)
        ve[gg].append(d); q.note(tag)
    k = 0
    for gg in range(0, 8):
        if k < len(advs) and not sc[gg]:
            sc[gg].append(advs[k]); k += 1
    assert k == len(advs)
    for gg, ops in (extra or {}).items():
        assert not any(o.startswith("buffer_") for o in ve[gg]), (gg, ve[gg])
        ve[gg] += ops
        assert len(ve[gg]) <= 2, (gg, ve[gg])
    mf = [p1_mfma(p, g, czero=(h == 0)) for g in range(20)]
    emit_gaps(A, mf, sc, ve)

def tagged(ops, tag): return [(pre, d, tag) for pre, d in ops]

def wof_dma_setup(A):
    T = V_X; L_ = V_LANE
    A(f"""
    s_lshr_b32 s10, s2, 1
    s_and_b32 s11, s2, 1
    s_mul_i32 s{S_T0}, s10, {32*1152}
    s_mul_i32 s{S_T1}, s11, 576
    s_add_u32 s{S_T0}, s{S_T0}, s{S_T1}
    s_add_u32 s{S_WOR}, s{S_WOR}, s{S_T0}
    s_addc_u32 s{S_WOR+1}, s{S_WOR+1}, 0
    s_sub_u32 s{S_WOR+2}, {4096*1152}, s{S_T0}
    s_mov_b32 s{S_WOR+3}, 0x20000
    v_lshrrev_b32 v{T}, 5, v{L_}
    v_and_b32 v{T+1}, 31, v{L_}
    v_lshlrev_b32 v{T+2}, 1, v{T}
    v_xor_b32 v{T+1}, v{T+1}, v{T+2}
    v_lshlrev_b32 v{T+1}, 4, v{T+1}
    s_lshl_b32 s{S_T0}, s{S_W}, 3
    v_add_u32 v{T}, s{S_T0}, v{T}
    v_mul_u32_u24 v{T}, 1152, v{T}
    v_add_u32 v{V_RWA}, v{T}, v{T+1}
    v_lshrrev_b32 v{T+2}, 2, v{L_}
    s_lshl_b32 s{S_T0}, s{S_J}, 4
    v_add_u32 v{T+2}, s{S_T0}, v{T+2}
    v_mul_u32_u24 v{T+2}, 1152, v{T+2}
    v_and_b32 v{T+3}, 3, v{L_}
    v_lshlrev_b32 v{T+3}, 4, v{T+3}
    v_add_u32 v{T+2}, v{T+2}, v{T+3}
    v_add_u32 v{V_RWB}, 512, v{T+2}
    """)

def wof_dma_issue(A):
    A(f"""
    s_mul_i32 s{S_T0}, s{S_I}, {RAW1-RAW0}
    s_mul_i32 s{S_T1}, s{S_J}, 4352
    s_add_u32 s{S_T0}, s{S_T0}, s{S_T1}
    s_add_u32 m0, s{S_T0}, {hex(RAW0)}
    """)
    for e in range(4):
        A(f"s_movk_i32 s{S_T1}, {e*1216}")
        off = f" offset:{e*1088}" if e else ""
        A(f"buffer_load_dwordx4 v{V_RWA}, {sr(S_WOR,4)}, s{S_T1} offen{off}{WO_AUX} lds")
    A(f"""
    s_mul_i32 s{S_T0}, s{S_J}, {RAW1-RAW0}
    s_add_u32 m0, s{S_T0}, {hex(RAW0+RAWB)}
    s_nop 0
    buffer_load_dwordx4 v{V_RWB}, {sr(S_WOR,4)}, 0 offen{WO_AUX} lds
    """)

def wof_addr_setup(A):
    T = V_X; L_ = V_LANE
    A(f"""
    v_lshrrev_b32 v{T}, 5, v{L_}
    v_mul_u32_u24 v{T}, 4352, v{T}
    v_lshrrev_b32 v{T+1}, 3, v{L_}
    v_and_b32 v{T+1}, 3, v{T+1}
    v_mul_u32_u24 v{T+1}, 1088, v{T+1}
    v_add_u32 v{T}, v{T}, v{T+1}
    v_lshrrev_b32 v{T+1}, 2, v{L_}
    v_and_b32 v{T+2}, 1, v{T+1}
    v_lshlrev_b32 v{T+3}, 9, v{T+2}
    v_add_u32 v{T}, v{T}, v{T+3}
    v_xor_b32 v{T+2}, s{S_W}, v{T+2}
    v_lshlrev_b32 v{T+2}, 5, v{T+2}
    v_add_u32 v{T}, v{T}, v{T+2}
    v_and_b32 v{T+2}, 3, v{L_}
    v_lshlrev_b32 v{T+2}, 3, v{T+2}
    v_add_u32 v{T}, v{T}, v{T+2}
    v_add_u32 v{V_WA}, {hex(RAW0)}, v{T}
    v_lshlrev_b32 v{T+1}, 6, v{T+1}
    v_add_u32 v{T+1}, v{T+1}, v{T+2}
    s_lshl_b32 s{S_T0}, s{S_J}, 5
    s_add_u32 s{S_T0}, s{S_T0}, {hex(RAW0+RAWB)}
    v_add_u32 v{V_WB}, s{S_T0}, v{T+1}
    v_lshlrev_b32 v{V_L16}, 4, v{L_}
    s_lshr_b32 s10, s2, 1
    s_and_b32 s11, s2, 1
    s_mul_i32 s11, s11, 18
    s_add_u32 s11, s11, s{S_W}
    s_lshl_b32 s11, s11, 7
    s_add_u32 s11, s11, s10
    s_lshl_b32 s11, s11, 10
    s_add_u32 s{S_WFS}, s11, {hex(WOF)}
    s_add_u32 s{S_WFS+1}, s{S_WFS}, 0x80000
    s_add_u32 s{S_WFS+2}, s{S_WFS+1}, 0x80000
    s_add_u32 s{S_WFS+3}, s{S_WFS+2}, 0x80000
    s_add_u32 s{S_WFS+4}, s{S_WFS+3}, 0x80000
    s_cmp_lt_u32 s{S_W}, 2
    s_cselect_b32 s{S_WFS+4}, s{S_WFS+4}, 0x10000000
    """)

def wof_produce(A):
    for e in range(5):
        dst = A_WF + 4*e
        for hf in range(2):
            if e < 4: A(f"ds_read_b64_tr_b16 {ar(dst+2*hf,2)}, v{V_WA} offset:{e*128 + hf*(RAW1-RAW0)}")
            else: A(f"ds_read_b64_tr_b16 {ar(dst+2*hf,2)}, v{V_WB} offset:{hf*(RAW1-RAW0)}")
    for e in range(5):
        A(f"s_waitcnt lgkmcnt({8 - 2*e})")
        A(f"buffer_store_dwordx4 {ar(A_WF+4*e,4)}, v{V_L16}, {sr(S_WS,4)}, s{S_WFS+e} offen sc1")

def phase_o_setup(A):
    A(f"""
    s_mul_i32 s10, s{S_SLOT}, 43
    s_lshr_b32 s10, s10, 8
    s_lshr_b32 s11, s{S_XCD}, 1
    s_mul_i32 s11, s11, 5
    s_add_u32 s11, s11, s10
    s_mul_i32 s10, s10, 6
    s_sub_u32 s10, s{S_SLOT}, s10
    s_and_b32 s{S_T0}, s{S_XCD}, 1
    s_mul_i32 s{S_T0}, s{S_T0}, 6
    s_add_u32 s10, s10, s{S_T0}
    s_lshl_b32 s{S_OO}, s11, 19
    s_mul_i32 s{S_OW}, s10, {3*131072}
    s_add_u32 s{S_OW}, s{S_OW}, {hex(WOF)}
    s_mul_i32 s{S_T0}, s11, {64*1152}
    s_mul_i32 s{S_T1}, s10, 96
    s_add_u32 s{S_T0}, s{S_T0}, s{S_T1}
    s_add_u32 s{S_OUT}, s{S_OUT}, s{S_T0}
    s_addc_u32 s{S_OUT+1}, s{S_OUT+1}, 0
    s_sub_u32 s{S_OUT+2}, {1280*1152}, s{S_T0}
    s_mov_b32 s{S_OUT+3}, 0x20000
    s_mov_b32 s{S_DBG+2}, 256
    s_mov_b32 s{S_DBG+3}, 0x20000
    s_cmp_lt_u32 s{S_SLOT}, 30
    s_cselect_b32 s{S_CONS}, 1, 0
    s_lshl_b32 s11, s11, 2
    """)
    def caddr(dst, b):
        A(f"""
        s_lshl_b32 s{S_T0}, s{b}, 5
        s_add_u32 s{S_T0}, s{S_T0}, s{S_SLOT}
        s_lshl_b32 s{S_T0}, s{S_T0}, 7
        s_add_u32 s{dst}, s{S_T0}, {hex(CNTB)}
        """)
    A(f"s_mul_i32 s10, s11, 103\ns_lshr_b32 s10, s10, 10")
    caddr(S_PA0, 10)
    A(f"s_add_u32 s11, s11, 3\ns_mul_i32 s10, s11, 103\ns_lshr_b32 s10, s10, 10")
    caddr(S_PA1, 10)
    A(f"s_lshl_b32 s{S_CO}, s{S_B}, 12\ns_add_u32 s{S_CO}, s{S_CO}, {hex(CNTB)}")
    A(f"""
    s_lshl_b32 s10, s2, 7
    s_add_u32 s10, s10, {hex(CNTB)}
    v_and_b32 v{V_X}, 31, v{V_LANE}
    v_lshlrev_b32 v{V_X}, 2, v{V_X}
    v_mov_b32 v{V_X+1}, 0
    buffer_store_dword v{V_X+1}, v{V_X}, {sr(S_WS,4)}, s10 offen sc1
    """)
    A(f"""
    s_mul_i32 s{S_T0}, s{S_B}, 10
    s_mul_i32 s{S_T1}, s{S_I}, 5
    s_add_u32 s{S_T0}, s{S_T0}, s{S_T1}
    s_lshl_b32 s{S_T0}, s{S_T0}, 5
    s_add_u32 s{S_T0}, s{S_T0}, s{S_H}
    s_lshl_b32 s{S_T0}, s{S_T0}, 1
    s_add_u32 s{S_T0}, s{S_T0}, s{S_J}
    s_lshl_b32 s{S_OB}, s{S_T0}, 11
    """)

def p1(A, q):
    A(f"s_waitcnt vmcnt({q.need(('x',0), ('wq',0))})")
    A("s_barrier")
    stamp(A, 'first')
    for grp in p1_reads(bu(0), 0, 0):
        for x in grp: A(x)
    A("s_waitcnt lgkmcnt(0)")
    kv = {11: ('K', 0, 0), 12: ('K', 1, 1), 13: ('V', 0, 0), 14: ('K', 2, 2), 15: ('K', 3, 3), 16: ('V', 1, 1)}
    xadv_pending = wadv_pending = False
    for h in range(18):
        c = h >> 1
        if h == 12: stamp(A, 'c6')
        if h == 14: stamp(A, 'c7')
        dmas, advs = [], []
        if h & 1:
            if c + 4 <= 8: dmas = tagged(xdma_ops(bu(c + 4)), ('x', c + 4))
        else:
            if c >= 1 and c + 3 <= 8: dmas = tagged(wdma_ops(bu(c + 3)), ('wq', c + 3))
        if h in kv:
            kind, tile, slot = kv[h]
            assert not dmas
            dmas = tagged(kvdma_ops(kind, tile, slot), (kind, tile))
        if h >= 2 and not (h & 1) and (h - 1 >> 1) + 4 <= 7: advs = xadv()
        if h >= 3 and (h & 1) and (h - 1 >> 1) + 3 <= 7: advs = wadv()
        if h & 1: reads = p1_reads(bu(c + 1), 0, 0) if c < 8 else []
        else: reads = p1_reads(bu(c), 1, 1)
        extra = {k: [f"v_mov_b64 {vr(V_NM+2*k,2)}, 0"] for k in range(10)} if h == 17 else None
        p1_half(A, q, h, reads, dmas, advs, extra)
        if not (h & 1):
            if c < 8: A(f"s_waitcnt vmcnt({q.need(('x', c+1), ('wq', c+1))}) lgkmcnt(0)")
            else: A("s_waitcnt lgkmcnt(0)")
            A("s_barrier")
        elif c < 8: A("s_waitcnt lgkmcnt(0)")

def q_exchange(A):
    A("s_nop 7")
    for d in range(4):
        for t in range(5):
            a = ACC(t, d)
            A(f"v_pk_mul_f32 {vr(a,2)}, {vr(a,2)}, {sr(S_SC,2)}")
            A(f"v_pk_mul_f32 {vr(a+2,2)}, {vr(a+2,2)}, {sr(S_SC,2)}")
            A(f"v_cvt_pk_bf16_f32 {vr(a)}, {vr(a)}, {vr(a+1)}")
            A(f"v_cvt_pk_bf16_f32 {vr(a+1)}, {vr(a+2)}, {vr(a+3)}")
            A(f"ds_write_b64 {vr(V_QW)}, {vr(a,2)} offset:{t*4096 + (d>>1)*1024 + (d&1)*512}")
    A(f"""
    s_mul_i32 s{S_T0}, s{S_I}, 20480
    s_add_u32 s{S_T0}, s{S_T0}, {hex(QIMG)}
    v_lshlrev_b32 v{V_X}, 4, v{V_LANE}
    v_add_u32 v{V_X}, s{S_T0}, v{V_X}
    """)
    stamp(A, 'qw')
    A("s_waitcnt vmcnt(16) lgkmcnt(0)\ns_barrier")
    stamp(A, 'qbar')
    for t in range(5):
        for s in range(4):
            A(f"ds_read_b128 {ar(QF(t,s),4)}, v{V_X} offset:{(t*4+s)*1024}")

def qk0(A):
    for a in range(2):
        for s in range(4): A(kread(0, a, s))
    A("s_waitcnt lgkmcnt(0)")
    sc = [[] for _ in range(40)]; ve = [[] for _ in range(40)]
    k = 0
    for g in range(24, 40):
        t, r = k // 4, k % 4
        ve[g].append(exp_op(0, t, 0, r)); k += 1
    emit_gaps(A, [qk_mfma(0, g) for g in range(40)], sc, ve)
    stamp(A, 'qk0')
    for a in range(2):
        for s in range(4): A(kread(1, a, s))
    for r in range(4): A(exp_op(0, 4, 0, r))
    for t in range(5):
        A(cvt_op(0, t, 0, 0)); A(cvt_op(0, t, 0, 1))
    A("s_waitcnt lgkmcnt(0)\ns_barrier")
    emit_plain(A, kvdma_ops('K', 4, 0)); emit_plain(A, kvdma_ops('V', 2, 2))
    A(f"s_cmp_lg_u32 s{S_FB}, 0\ns_cbranch_scc1 L_no_raw")
    wof_dma_issue(A)
    A.label("L_no_raw")
    if PF:
        A(f"""
        s_and_b32 s{S_T0}, s{S_H}, 1
        s_cmp_eq_u32 s{S_T0}, 0
        s_cbranch_scc0 L_pf_v
        s_mov_b32 s{S_PFD}, s{S_K}
        s_mov_b32 s{S_PFD+1}, s{S_K+1}
        s_mov_b32 s{S_PFO}, {hex((5+PF)*16384)}
        s_branch L_pf_j
        """)
        A.label("L_pf_v")
        A(f"""
        s_mov_b32 s{S_PFD}, s{S_V}
        s_mov_b32 s{S_PFD+1}, s{S_V+1}
        s_mov_b32 s{S_PFO}, {hex((3+PF)*16384)}
        """)
        A.label("L_pf_j")
        A(f"""
        s_mov_b32 s{S_PFD+2}, {hex(HEAD_BYTES)}
        s_mov_b32 s{S_PFD+3}, 0x20000
        s_lshl_b32 s{S_T0}, s{S_W}, 12
        v_lshlrev_b32 v{V_PF}, 6, v{V_LANE}
        v_add_u32 v{V_PF}, s{S_T0}, v{V_PF}
        """)
    A(f"""
    s_mov_b32 s{S_KO0}, {hex(5*16384)}
    s_mov_b32 s{S_KO1}, {hex(5*16384+8192)}
    s_mov_b32 s{S_VO0}, {hex(3*16384)}
    s_mov_b32 s{S_VO1}, {hex(3*16384+8192)}
    s_mov_b32 s{S_CNT}, 8
    """)

def fallback(A):
    T = V_X; M = V_T
    A.label("L_fallback")
    A("s_waitcnt vmcnt(0) lgkmcnt(0)\ns_barrier")
    for t in range(5):
        A(f"v_mov_b32 v{V_X+t}, 0xff800000")
    for r in range(V_NM, V_NM+20, 2): A(f"v_mov_b64 {vr(r,2)}, 0")
    A(f"s_mov_b32 s{S_K+2}, {hex(HEAD_BYTES)}\ns_mov_b32 s{S_V+2}, {hex(HEAD_BYTES)}")
    A(f"s_mov_b32 s{S_KO0}, 0\ns_mov_b32 s{S_KO1}, 0x2000")
    A.label("L_fb_loop")
    for grp in range(2):
        m0, dd = dma_ops('K', 0, grp)
        A(m0); A("s_nop 0"); A(dd[0]); A(dd[1])
    A("s_waitcnt vmcnt(0)\ns_barrier")
    for a in range(2):
        for s in range(4): A(kread(0, a, s))
    A("s_waitcnt lgkmcnt(0)\ns_barrier")
    for g in range(40): A(qk_mfma(0, g))
    A("s_nop 7")
    for t in range(5):
        s = [S(0, t, a, r) for a in range(2) for r in range(4)]
        for k in range(0, 8, 2):
            A(f"v_max3_f32 v{V_X+t}, v{s[k]}, v{s[k+1]}, v{V_X+t}")
    A(f"""
    s_add_u32 s{S_KO0}, s{S_KO0}, 0x4000
    s_add_u32 s{S_KO1}, s{S_KO1}, 0x4000
    s_cmp_lt_u32 s{S_KO0}, {hex(HEAD_BYTES)}
    s_cbranch_scc1 L_fb_loop
    """)
    for t in range(5):
        x = V_X + t; y = V_X + 5
        A(f"""
        v_mov_b32 v{y}, v{x}
        s_nop 1
        v_permlane32_swap_b32 v{x}, v{y}
        v_max_f32 v{x}, v{x}, v{y}
        v_mov_b32 v{y}, v{x}
        s_nop 1
        v_permlane16_swap_b32 v{x}, v{y}
        v_max_f32 v{x}, v{x}, v{y}
        """)
    A(f"""
    v_lshlrev_b32 v{V_T}, 2, v{V_LANE}
    s_mul_i32 s{S_T0}, s{S_W}, 1280
    s_add_u32 s{S_T0}, s{S_T0}, {hex(LDS_SP)}
    v_add_u32 v{V_T+1}, s{S_T0}, v{V_T}
    s_xor_b32 s{S_T1}, s{S_W}, 1
    s_mul_i32 s{S_T1}, s{S_T1}, 1280
    s_add_u32 s{S_T1}, s{S_T1}, {hex(LDS_SP)}
    v_add_u32 v{V_T+2}, s{S_T1}, v{V_T}
    """)
    for t in range(5): A(f"ds_write_b32 v{V_T+1}, v{V_X+t} offset:{t*256}")
    A("s_waitcnt lgkmcnt(0)\ns_barrier")
    for t in range(5): A(f"ds_read_b32 v{V_S+t}, v{V_T+2} offset:{t*256}")
    A("s_waitcnt lgkmcnt(0)")
    for t in range(5):
        A(f"v_max_f32 v{V_X+t}, v{V_X+t}, v{V_S+t}")
        for r in range(4): A(f"v_sub_f32 v{NM(t)+r}, 0, v{V_X+t}")
    zero_state(A, acc=False, nm=False)
    emit_plain(A, kvdma_ops('K', 0, 0)); emit_plain(A, kvdma_ops('K', 1, 1)); emit_plain(A, kvdma_ops('V', 0, 0))
    emit_plain(A, kvdma_ops('K', 2, 2)); emit_plain(A, kvdma_ops('K', 3, 3)); emit_plain(A, kvdma_ops('V', 1, 1))
    A(f"s_mov_b32 s{S_FB}, 1")
    A(f"s_mov_b32 s{S_SPM}, 0x05")
    A("s_waitcnt vmcnt(0)\ns_barrier\ns_branch L_qk0")

import os
EXP = os.environ.get('EXP', '')
NPRE = int(os.environ.get('NPRE', 6))
P1K = int(os.environ.get('P1K', 17))
NAG = 21
RING = int(os.environ.get('RING', 10))
SPIN_MAX = 1 << 17

class VMQ:
    def __init__(self, A, limit=60):
        self.A = A; self.n = 0; self.last = {}; self.done = 0; self.limit = limit
    def issue(self, tag, text):
        if self.n - self.done >= self.limit:
            keep = self.limit - 4
            self.A(f"s_waitcnt vmcnt({keep})"); self.done = self.n - keep
        self.A(text); self.n += 1; self.last[tag] = self.n
    def wait(self, *tags, extra=""):
        tgt = max(self.last[t] for t in tags)
        if tgt <= self.done:
            if extra: self.A(f"s_waitcnt {extra}")
            return
        N = self.n - tgt
        assert 0 <= N <= 63
        self.A(f"s_waitcnt vmcnt({N}) {extra}".strip()); self.done = tgt

V_OA = 1
V_OO = 5
V_PA = 6
V_PV = 7
V_L = 9
V_ACC = 12
V_RING = 60
def WF(i, nt): return (i % NAG)*12 + nt*4
def OB(i, tl): return V_RING + (i % RING)*16 + tl*4
def ACCO(tl, nt): return V_ACC + (tl*3 + nt)*4

class SOff:
    def __init__(self, A, reg): self.A = A; self.reg = reg; self.g = 0
    def at(self, i):
        g = i >> 2
        if g != self.g:
            self.A(f"s_add_u32 s{self.reg}, s{self.reg}, {(g - self.g)*4096}"); self.g = g
        return f"s{self.reg}", (f" offset:{(i & 3)*1024}" if i & 3 else "")

def epilogue(A, stamps):
    T = V_X
    XL = LDS_SP
    XF = LDS_SP + 5120
    R = V_S
    A("s_nop 7")
    for t in range(5): A(f"v_accvgpr_read_b32 v{V_KF+t}, a{L(t)}")
    A(f"""
    s_mov_b32 s{S_T0}, {f32hex(T_HI)}
    s_mov_b32 s{S_T1}, {f32hex(T_LO)}
    v_max3_f32 v{T}, v{V_KF}, v{V_KF+1}, v{V_KF+2}
    v_max3_f32 v{T}, v{T}, v{V_KF+3}, v{V_KF+4}
    v_min3_f32 v{T+1}, v{V_KF}, v{V_KF+1}, v{V_KF+2}
    v_min3_f32 v{T+1}, v{T+1}, v{V_KF+3}, v{V_KF+4}
    v_add_f32 v{T+2}, v{V_KF}, v{V_KF+1}
    v_add_f32 v{T+3}, v{V_KF+2}, v{V_KF+3}
    v_add_f32 v{T+2}, v{T+2}, v{V_KF+4}
    v_add_f32 v{T+2}, v{T+2}, v{T+3}
    v_cmp_nge_f32 vcc, s{S_T0}, v{T}
    v_cmp_nle_f32 s[{S_MSK}:{S_MSK+1}], s{S_T1}, v{T+1}
    v_cmp_u_f32 s[{S_MSK2}:{S_MSK2+1}], v{T+2}, v{T+2}
    s_or_b64 vcc, vcc, s[{S_MSK}:{S_MSK+1}]
    s_or_b64 vcc, vcc, s[{S_MSK2}:{S_MSK2+1}]
    s_cmp_lg_u64 vcc, 0
    s_cselect_b32 s{S_T0}, 1, 0
    v_mov_b32 v{T+3}, s{S_T0}
    """)
    A(f"""
    v_lshlrev_b32 v{V_T}, 2, v{V_LANE}
    s_mul_i32 s{S_T0}, s{S_W}, 1280
    s_add_u32 s{S_T0}, s{S_T0}, {hex(XL)}
    v_add_u32 v{V_T+1}, s{S_T0}, v{V_T}
    s_xor_b32 s{S_T1}, s{S_W}, 1
    s_mul_i32 s{S_T1}, s{S_T1}, 1280
    s_add_u32 s{S_T1}, s{S_T1}, {hex(XL)}
    v_add_u32 v{V_T+2}, s{S_T1}, v{V_T}
    s_lshl_b32 s{S_T0}, s{S_W}, 2
    s_add_u32 s{S_T0}, s{S_T0}, {hex(XF)}
    v_mov_b32 v{T+4}, s{S_T0}
    v_mov_b32 v{T+5}, {hex(XF)}
    v_lshlrev_b32 v{V_T}, 4, v{V_LANE}
    s_mul_i32 s{S_T0}, s{S_W}, 20480
    v_add_u32 v{T+6}, s{S_T0}, v{V_T}
    s_xor_b32 s{S_T1}, s{S_W}, 1
    s_mul_i32 s{S_T1}, s{S_T1}, 20480
    v_add_u32 v{T+7}, s{S_T1}, v{V_T}
    s_waitcnt vmcnt(0) lgkmcnt(0)
    s_barrier
    """)
    for t in range(5): A(f"ds_write_b32 v{V_T+1}, v{V_KF+t} offset:{t*256}")
    A(f"ds_write_b32 v{T+4}, v{T+3}")
    for t in range(5):
        for q in range(4):
            A(f"ds_write_b128 v{T+6}, {O(t, 4+q)} offset:{(t*4+q)*1024}")
    A("s_waitcnt lgkmcnt(0)\ns_barrier")
    stamp(A, 'ex1')
    A(f"ds_read_b128 {vr(V_KF+8,4)}, v{T+5}")
    for t in range(5): A(f"ds_read_b32 v{V_KF+16+2*t}, v{V_T+2} offset:{t*256}")
    for t in range(5):
        for q in range(4):
            A(f"ds_read_b128 {vr(R+(t*4+q)*4,4)}, v{T+7} offset:{(t*4+q)*1024}")
    A(f"""
    s_waitcnt lgkmcnt(14)
    v_or3_b32 v{T}, v{V_KF+8}, v{V_KF+9}, v{V_KF+10}
    v_or_b32 v{T}, v{T}, v{V_KF+11}
    s_nop 0
    v_readfirstlane_b32 s{S_T1}, v{T}
    s_nop 0
    s_andn2_b32 s{S_T1}, s{S_T1}, s{S_FB}
    s_cmp_lg_u32 s{S_T1}, 0
    s_cbranch_scc1 L_fallback
    """)
    for t in range(5):
        A(f"v_add_f32 v{V_KF+16+2*t}, v{V_KF+16+2*t}, v{V_KF+t}")
    for t in range(5):
        A(f"v_rcp_f32 v{V_KF+16+2*t}, v{V_KF+16+2*t}")
    q = VMQ(A)
    for t in range(5):
        A(f"s_waitcnt lgkmcnt({min(14, 16-4*t)})" if t < 4 else "s_waitcnt lgkmcnt(0)")
        inv = V_KF + 16 + 2*t
        for mm in range(2):
            for e in range(2):
                qq = 2*mm + e
                o = V_OK + t*16 + qq*4; r = R + (t*4+qq)*4
                A(f"v_pk_add_f32 {vr(o,2)}, {vr(o,2)}, {vr(r,2)}")
                A(f"v_pk_add_f32 {vr(o+2,2)}, {vr(o+2,2)}, {vr(r+2,2)}")
                A(f"v_pk_mul_f32 {vr(o,2)}, {vr(o,2)}, {vr(inv,2)} op_sel_hi:[1,0]")
                A(f"v_pk_mul_f32 {vr(o+2,2)}, {vr(o+2,2)}, {vr(inv,2)} op_sel_hi:[1,0]")
            o = V_OK + t*16 + mm*8
            A(f"v_cvt_pk_bf16_f32 v{o}, v{o}, v{o+1}")
            A(f"v_cvt_pk_bf16_f32 v{o+1}, v{o+2}, v{o+3}")
            A(f"v_cvt_pk_bf16_f32 v{o+2}, v{o+4}, v{o+5}")
            A(f"v_cvt_pk_bf16_f32 v{o+3}, v{o+6}, v{o+7}")
            A(f"s_add_u32 s{S_T1}, s{S_OB}, {t*32*4*1024 + mm*1024}")
            q.issue('st', f"buffer_store_dwordx4 {vr(o,4)}, v{V_T}, {sr(S_WS,4)}, s{S_T1} offen sc1")
    stamp(A, 'stores')
    A(f"""
    v_readfirstlane_b32 s{S_T0}, v{V_POLL}
    s_lshl_b32 s{S_T1}, s{S_W}, 15
    v_add_u32 v{V_OA}, s{S_T1}, v{V_T}
    v_add_u32 v{V_OA+1}, 0x20000, v{V_OA}
    v_add_u32 v{V_OA+2}, 0x40000, v{V_OA}
    v_add_u32 v{V_OA+3}, 0x60000, v{V_OA}
    s_cmp_lg_u32 s{S_T0}, 256
    s_cbranch_scc1 L_wspin
    """)
    A.label("L_wok")
    A(f"s_cmp_eq_u32 s{S_CONS}, 0\ns_cbranch_scc1 L_nocons")
    A(f"s_mov_b32 s{S_OW2}, s{S_OW}")
    sw = SOff(A, S_OW)
    def wload(i, so):
        if EXP == 'nowf' or (EXP == 'nolate' and i >= NAG):
            q.last[('w', i)] = 0
            return
        reg, off = so.at(i)
        for nt in range(3):
            q.issue(('w', i), f"buffer_load_dwordx4 {ar(WF(i,nt),4)}, v{V_OA+nt}, {sr(S_WS,4)}, {reg} offen{off} sc1")
    for i in range(NPRE): wload(i, sw)
    q.wait('st')
    A("s_barrier")
    A(f"""
    s_cmp_lg_u32 s{S_W}, 0
    s_cbranch_scc1 L_no_arr_o
    s_mov_b32 exec_hi, 0
    v_mov_b32 v{V_PV}, 1
    v_lshlrev_b32 v{V_PV+1}, 7, v{V_LANE}
    buffer_atomic_add v{V_PV}, v{V_PV+1}, {sr(S_WS,4)}, s{S_CO} offen
    s_mov_b64 exec, -1
    """)
    A.label("L_no_arr_o")
    stamp(A, 'arr')
    A(f"""
    v_mov_b32 v{V_PA}, s{S_PA0}
    v_mov_b32 v{V_L}, v{V_T}
    v_and_b32 v{V_OO}, 15, v{V_LANE}
    v_writelane_b32 v{V_PA}, s{S_PA1}, 1
    s_lshl_b32 s{S_T0}, s{S_W}, 4
    v_add_u32 v{V_OO}, s{S_T0}, v{V_OO}
    v_mul_u32_u24 v{V_OO}, 1152, v{V_OO}
    v_lshrrev_b32 v{V_PV+1}, 4, v{V_LANE}
    v_lshlrev_b32 v{V_PV+1}, 3, v{V_PV+1}
    v_add_u32 v{V_OO}, v{V_OO}, v{V_PV+1}
    """)
    for i in range(NPRE, P1K): wload(i, sw)
    A(f"s_cmp_lg_u32 s{S_W}, 0\ns_cbranch_scc1 L_poll_skip1")
    A(f"buffer_load_dword v{V_PV}, v{V_PA}, {sr(S_WS,4)}, 0 offen sc1")
    A.label("L_poll_skip1")
    n0 = q.n
    for i in range(P1K, NAG): wload(i, sw)
    nB = q.n - n0
    A(f"""
    s_cmp_lg_u32 s{S_W}, 0
    s_cbranch_scc1 L_poll_done
    s_mov_b32 s{S_T1}, {SPIN_MAX}
    s_waitcnt vmcnt({nB})
    """)
    A.label("L_poll_chk")
    A(f"""
    v_cmp_eq_u32 vcc, 32, v{V_PV}
    s_nop 1
    s_cmp_eq_u64 vcc, -1
    s_cbranch_scc1 L_poll_done
    s_sub_u32 s{S_T1}, s{S_T1}, 1
    s_cmp_eq_u32 s{S_T1}, 0
    s_cbranch_scc1 L_poll_done
    s_sleep 2
    buffer_load_dword v{V_PV}, v{V_PA}, {sr(S_WS,4)}, 0 offen sc1
    s_waitcnt vmcnt(0)
    s_branch L_poll_chk
    """)
    A.label("L_poll_done")
    A("s_barrier")
    stamp(A, 'sync')
    so = SOff(A, S_OO)
    def oload(i):
        reg, off = so.at(i)
        for tl in range(4):
            q.issue(('o', i), f"buffer_load_dwordx4 {vr(OB(i,tl),4)}, v{V_OA+tl}, {sr(S_WS,4)}, {reg} offen{off} sc1")
    for i in range(RING): oload(i)
    sw2 = SOff(A, S_OW2)
    for i in range(32):
        q.wait(('o', i), ('w', i))
        for nt in range(3):
            for tl in range(4):
                a = vr(ACCO(tl, nt), 4)
                A(mfma(a, ar(WF(i, nt), 4), vr(OB(i, tl), 4), a if i else "0"))
        if i + RING < 32: oload(i + RING)
        if i + NAG < 32: wload(i + NAG, sw2)
    stamp(A, 'oend')
    A(f"""
    s_mul_i32 s{S_T0}, s{S_W}, 12288
    v_add_u32 v{V_PV}, s{S_T0}, v{V_L}
    s_mul_i32 s{S_T0}, s{S_W}, 3072
    v_add_u32 v{V_PV+1}, s{S_T0}, v{V_L}
    s_nop 4
    """)
    for tl in range(4):
        for nt in range(3):
            A(f"ds_write_b128 v{V_PV}, {vr(ACCO(tl,nt),4)} offset:{(tl*3+nt)*1024}")
    A("s_waitcnt lgkmcnt(0)\ns_barrier")
    RR = V_RING
    for nt in range(3):
        for w in range(4):
            A(f"ds_read_b128 {vr(RR+(nt*4+w)*4,4)}, v{V_PV+1} offset:{w*12288 + nt*1024}")
    for nt in range(3):
        A(f"s_waitcnt lgkmcnt({8 - 4*nt})")
        a = RR + nt*16
        A(f"v_pk_add_f32 {vr(a,2)}, {vr(a,2)}, {vr(a+4,2)}")
        A(f"v_pk_add_f32 {vr(a+2,2)}, {vr(a+2,2)}, {vr(a+6,2)}")
        A(f"v_pk_add_f32 {vr(a+8,2)}, {vr(a+8,2)}, {vr(a+12,2)}")
        A(f"v_pk_add_f32 {vr(a+10,2)}, {vr(a+10,2)}, {vr(a+14,2)}")
        A(f"v_pk_add_f32 {vr(a,2)}, {vr(a,2)}, {vr(a+8,2)}")
        A(f"v_pk_add_f32 {vr(a+2,2)}, {vr(a+2,2)}, {vr(a+10,2)}")
        A(f"v_cvt_pk_bf16_f32 v{a}, v{a}, v{a+1}")
        A(f"v_cvt_pk_bf16_f32 v{a+1}, v{a+2}, v{a+3}")
        A(f"buffer_store_dwordx2 {vr(a,2)}, v{V_OO}, {sr(S_OUT,4)}, 0 offen offset:{nt*32}")
    if stamps: write_stamps(A)
    A("s_endpgm")
    A.label("L_nocons")
    A(f"""
    s_waitcnt vmcnt(0)
    s_barrier
    s_cmp_lg_u32 s{S_W}, 0
    s_cbranch_scc1 L_a_end
    s_mov_b32 exec_hi, 0
    v_mov_b32 v{V_PV}, 1
    v_lshlrev_b32 v{V_PV+1}, 7, v{V_LANE}
    buffer_atomic_add v{V_PV}, v{V_PV+1}, {sr(S_WS,4)}, s{S_CO} offen
    s_waitcnt vmcnt(0)
    s_endpgm
    """)
    A.label("L_wspin")
    A(f"s_mov_b32 s{S_T1}, {SPIN_MAX}")
    A.label("L_wspin_loop")
    A(f"""
    s_sleep 4
    buffer_load_dword v{V_POLL}, off, {sr(S_DBG,4)}, 0 sc1
    s_waitcnt vmcnt(0)
    v_readfirstlane_b32 s{S_T0}, v{V_POLL}
    s_sub_u32 s{S_T1}, s{S_T1}, 1
    s_cmp_eq_u32 s{S_T1}, 0
    s_cbranch_scc1 L_wok
    s_cmp_lg_u32 s{S_T0}, 256
    s_cbranch_scc1 L_wspin_loop
    s_branch L_wok
    """)

RT_MODE = True
STSET = os.environ.get('STSET', 'main')
STAMP_SETS = {
  'main': {'start':0, 'p1s':1, 'p1e':2, 'loops':3, 'loope':4, 'stores':5, 'arr':6, 'sync':7, 'oend':8},
  'startup': {'start':0, 'dma0':1, 'dma1':2, 'dma2':3, 'p1s':4, 'first':5, 'c6':6, 'c7':7, 'p1e':8},
  'pre': {'start':0, 'p1e':1, 'qw':2, 'qbar':3, 'qk0':4, 'loops':5, 'loope':6, 'ex1':7, 'stores':8},
}
STAMPS_ON = False
def stamp(A, name):
    if not STAMPS_ON: return
    if isinstance(name, int): k = name
    else:
        k = STAMP_SETS[STSET].get(name)
        if k is None: return
    A(f"{'s_memrealtime' if RT_MODE else 's_memtime'} s[{S_ST+2*k}:{S_ST+2*k+1}]")

STAMP_BASE = 0x4000000
def write_stamps(A):
    A("s_waitcnt vmcnt(0)")
    stamp(A, 9)
    A("s_waitcnt lgkmcnt(0)")
    for k in range(10): A(f"v_mov_b32 v{32+k}, s{S_ST+2*k}")
    A(f"""
    v_mov_b32 v42, s2
    v_mov_b32 v43, s{S_FB}
    s_lshl_b32 s{S_T0}, s2, 2
    s_add_u32 s{S_T0}, s{S_T0}, s{S_W}
    s_lshl_b32 s{S_T0}, s{S_T0}, 6
    s_add_u32 s{S_T0}, s{S_T0}, {hex(STAMP_BASE)}
    v_mov_b32 v44, s{S_T0}
    s_mov_b64 exec, 1
    buffer_store_dwordx4 v[32:35], v44, {sr(S_WS,4)}, 0 offen
    buffer_store_dwordx4 v[36:39], v44, {sr(S_WS,4)}, 0 offen offset:16
    buffer_store_dwordx4 v[40:43], v44, {sr(S_WS,4)}, 0 offen offset:32
    s_waitcnt vmcnt(0)
    """)

KN = "standalone__gqa_block_cached__near_ridge_kernel"
TOUCH = int(os.environ.get('TOUCH', 0))
V_TCH = 32
def touch_ops(A):
    T = V_TCH
    A(f"""
    s_and_b32 s3, s{S_SLOT}, 7
    s_lshl_b32 s3, s3, 2
    s_add_u32 s3, s3, s{S_W}
    s_mul_i32 s3, s3, {5*1152}
    v_mul_u32_u24 v{T}, 52, v{V_LANE}
    v_lshrrev_b32 v{T}, 8, v{T}
    v_mul_u32_u24 v{T+1}, 5, v{T}
    v_sub_u32 v{T+1}, v{V_LANE}, v{T+1}
    v_lshlrev_b32 v{T+1}, 7, v{T+1}
    v_mul_u32_u24 v{T}, 1152, v{T}
    v_add_u32 v{T}, v{T}, v{T+1}
    s_add_u32 s3, s3, {4*128}
    s_mov_b32 exec_lo, 0x1ffffff
    s_mov_b32 exec_hi, 0
    buffer_load_dword a240, v{T}, {sr(S_X,4)}, s3 offen
    s_mov_b64 exec, -1
    s_lshr_b32 s3, s{S_SLOT}, 3
    s_lshl_b32 s3, s3, 2
    s_add_u32 s3, s3, s{S_W}
    s_mul_i32 s3, s3, {20*8192}
    s_add_u32 s3, s3, {256*8192}
    v_lshrrev_b32 v{T+2}, 1, v{V_LANE}
    v_lshlrev_b32 v{T+2}, 13, v{T+2}
    v_and_b32 v{T+3}, 1, v{V_LANE}
    v_lshlrev_b32 v{T+3}, 7, v{T+3}
    v_add_u32 v{T+2}, v{T+2}, v{T+3}
    s_mov_b32 exec_hi, 0xff
    buffer_load_dword a241, v{T+2}, {sr(S_WQ,4)}, s3 offen
    s_mov_b64 exec, -1
    """)
FILL_PER_DMA = int(os.environ.get('FPD', 10))
def kernel(A, stamps=False):
    A(f""".text
    .globl {KN}
    .p2align 8
    .type {KN},@function""")
    A.label(KN)
    late = setup_ids(A, "L_a_end")
    stamp(A, 'start')
    late2 = setup_dma_addrs(A)
    F = Asm()
    for x in late2 + late: F(x)
    setup_read_addrs(F)
    F(f"s_mov_b32 s{S_FB}, 0")
    F(f"s_mov_b32 s{S_SPM}, 0xc5")
    wof_addr_setup(F)
    phase_o_setup(F)
    zero_state(F, acc=False, nm=False)
    wof_dma_setup(F)
    fill = list(F.lines)
    q = VCount()
    def emit_fill(n):
        k = 0
        while fill and (k < n or fill[0].startswith(("s_addc", "s_subb", "s_cselect"))):
            x = fill.pop(0); A(x); k += 1
            if x.startswith("buffer_"): q.note('misc')
        if k == 0 and n == 1: A("s_nop 0")
    stamp(A, 'dma0')
    for c in range(4):
        for ops, tag in ((xdma_ops(bu(c)), ('x', c)), (wdma_ops(bu(c)), ('wq', c))):
            for pre, d in ops:
                if pre: A(pre); emit_fill(1)
                A(d); q.note(tag)
                if c or tag[0] == 'wq': emit_fill(FILL_PER_DMA)
            for x in (xadv() if tag[0] == 'x' else wadv()): A(x)
        if c == 0: stamp(A, 'dma1')
    if TOUCH:
        T = V_X
        tl = Asm(); touch_ops(tl)
        for x in tl.lines:
            A(x)
            if x.startswith("buffer_"): q.note('misc')
    stamp(A, 'dma2')
    emit_fill(10000)
    stamp(A, 'p1s')
    p1(A, q)
    stamp(A, 'p1e')
    q_exchange(A)
    A.label("L_qk0")
    qk0(A)
    stamp(A, 'loops')
    A(".p2align 6")
    A.label("L_loop")
    i0 = len(A.lines)
    for u in range(4):
        step(A, (1 + u) & 3, last_in_loop=(u == 3), loop_label="L_loop")
    i1 = len(A.lines)
    for p in check_hazards(A.lines[i0:i1]*2, "loop"): print("HAZARD", p)
    stamp(A, 'loope')
    epilogue(A, stamps)
    A.label("L_a_end")
    A("s_endpgm")
    special_blocks(A)
    fallback(A)

KC = "gqa_probe_kernel"
def kernel_c(A, offa, offb, mult=16):
    A(f""".text
    .globl {KC}
    .p2align 8
    .type {KC},@function""")
    A.label(KC)
    A(f"""
    s_load_dwordx2 s[8:9], s[0:1], 56
    s_cmp_ge_u32 s2, 1
    s_cbranch_scc1 L_c_end
    s_memrealtime s[20:21]
    s_waitcnt lgkmcnt(0)
    s_add_u32 s10, s8, {hex(offa)}
    s_addc_u32 s11, s9, 0
    s_add_u32 s12, s8, {hex(offb)}
    s_addc_u32 s13, s9, 0
    s_load_dword s14, s[10:11], 0
    s_load_dword s15, s[12:13], 0
    s_waitcnt lgkmcnt(0)
    s_sub_u32 s14, s15, s14
    s_min_u32 s14, s14, 20000
    s_mul_i32 s14, s14, {mult}
    """)
    A.label("L_c_loop")
    A(f"""
    s_memrealtime s[22:23]
    s_waitcnt lgkmcnt(0)
    s_sub_u32 s16, s22, s20
    s_cmp_lt_u32 s16, s14
    s_cbranch_scc1 L_c_loop
    """)
    A.label("L_c_end")
    A("s_endpgm")

def descriptor(name, vgpr, accum, sgpr=102):
    return f""".amdhsa_kernel {name}
    .amdhsa_next_free_vgpr {vgpr}
    .amdhsa_next_free_sgpr {sgpr}
    .amdhsa_accum_offset {accum}
    .amdhsa_group_segment_fixed_size 0
    .amdhsa_kernarg_size 64
    .amdhsa_user_sgpr_count 2
    .amdhsa_user_sgpr_kernarg_segment_ptr 1
    .amdhsa_system_sgpr_workgroup_id_x 1
    .end_amdhsa_kernel"""

HEADER = """; Kernarg layout for this problem (64 bytes, ptrs only, base s[0:1]):
;   offset  24: d_in[3] wq  shape=(576, 4096) dtype=bfloat16 strides=(8192, 2) contiguous=True
"""

def gen(stamps=False, probe=None):
    global STAMPS_ON
    STAMPS_ON = bool(stamps)
    A = Asm()
    kernel(A, stamps)
    if probe: kernel_c(A, *probe)
    A('.section .rodata,"a"\n.p2align 6')
    if probe:
        A(descriptor(KC, 32, 32)); A(".p2align 6")
    A(descriptor(KN, 512, 256))
    for p in check_hazards(A.lines, "all"): print("HAZARD", p)
    hdr = HEADER
    if probe:
        hdr += f"; @launch kernel={KN} grid=(256,1,1) block=(256,1,1) lds={LDS_A}\n"
        hdr += f"; @launch kernel={KC} grid=(1,1,1) block=(64,1,1) lds=0\n"
    else:
        hdr += f"; @launch grid=(256,1,1) block=(256,1,1) lds={LDS_A}\n"
    return hdr + '.amdgcn_target "amdgcn-amd-amdhsa--gfx950"\n' + A.text()

if __name__ == "__main__":
    import sys
    from hiprt import add_meta
    mode = sys.argv[1] if len(sys.argv) > 1 else ""
    if mode == "probe":
        a = lambda k, wg=0: STAMP_BASE + wg*256 + 4*k
        P = {"p1": (a(0), a(2)), "pre": (a(2), a(3)), "loop": (a(3), a(4)), "epi": (a(4), a(5)), "arr": (a(5), a(6)),
             "sync": (a(6), a(7)), "oloop": (a(7), a(8)), "fin": (a(8), a(9))}
        for n, pr in P.items():
            open(f"../cdna_kernels/probe_{n}.s", "w").write(gen(1, pr))
        print("probes written"); sys.exit(0)
    if mode == "stamps":
        open(os.environ.get('OUT', "fused_st.s"), "w").write(add_meta(gen(1), [(KN, 512, 256)]))
    elif mode == "cyc":
        RT_MODE = False
        open(os.environ.get('OUT', "fused_cyc.s"), "w").write(add_meta(gen(1), [(KN, 512, 256)]))
    else:
        open(os.environ.get('OUT', "fused.s"), "w").write(gen(0))
    print("written")
```

```python
from asmlib import *
import struct, math

KA = "standalone__gqa_block_cached__near_ridge_kernel"
KB = "gqa_oproj_kernel"

V_KD0, V_KD1, V_VD0, V_VD1 = 1, 2, 3, 4
V_KR = 5
V_VR = 9
V_LANE = 17
V_XD0, V_XD1 = 18, 19
V_WD = 20
V_XR = 21
V_WR = 23
V_QW = 27
V_T = 28
V_S = 32
V_NM = 112
V_OK = 132
V_KF = 212
V_ONE = 244
V_X = 248
A_OS = 0
A_L = 80
A_VF = 100
A_Q = 132

def S(sig, t, a, r=0): return V_S + sig*40 + t*8 + a*4 + r
def NM(t): return V_NM + 4*t
def QF(t, s): return A_Q + (t*4 + s)*4
def KF(a, s): return V_KF + (a*4 + s)*4
def VF(db): return A_VF + db*4
def O(t, idx):
    return vr(V_OK + t*16 + idx*4, 4) if idx < 4 else ar(A_OS + t*16 + (idx-4)*4, 4)
def L(t): return A_L + 4*t
def ACC(t, d): return V_S + (t*4 + d)*4
def PA(p, d): return V_KF + p*16 + d*4
def PB(p, t): return A_Q + p*20 + t*4

S_K = 12; S_V = 16; S_WS = 20
S_W, S_I, S_J, S_M0 = 24, 25, 26, 27
S_KO0, S_KO1, S_VO0, S_VO1 = 28, 29, 30, 31
S_CNT = 32
S_B, S_H = 33, 34
S_T0, S_T1 = 35, 36
S_X = 40
S_WQ = 44
S_XO = 48
S_WO = 53
S_MX = 57
S_FB = 58
S_SC = 60
S_ST = 64
S_SLOT, S_XCD = 37, 38
S_CO = 39
S_MSK = 62
S_DBG = 84
S_OUT = 88
S_WOR = 92
S_MSK2 = 10
S_SPM = 101
S_WFS = 96
S_OO, S_OW, S_OW2, S_PA0, S_PA1, S_CONS = 4, 5, 6, 7, 8, 9
S_OB = 59
V_POLL = 31
V_WA = 28
V_WB = 29
V_L16 = 30
V_XR2 = 112
V_WR2 = 116
V_RWA, V_RWB = 254, 255
A_WF = 212
WOF = 0x1000000
CNTB = 0x2000000
RAW0, RAW1 = 0x20000, 0x24000
RAWB = 0x2400

LDS_K = 0; LDS_V = 0x10000; LDS_SP = 0x20000
HEAD_BYTES = 2048*128*2
PBUF = [0x4000 + u*0x9000 for u in range(4)]
XB = PBUF
WQB = [b + 0x5000 for b in PBUF]
def bu(c): return (c + 3) & 3
QIMG = 0x1E000
LDS_A = 163840

def f32hex(x): return hex(struct.unpack("<I", struct.pack("<f", x))[0])
SCALE = math.log2(math.e) / math.sqrt(128.0)
T_HI = 2.0**40
T_LO = 2.0**-40

def mfma(d, a, b, c): return f"v_mfma_f32_16x16x32_bf16 {d}, {a}, {b}, {c}"

def qk_mfma(sig, g):
    a = g // 20; s = (g % 20) // 5; t = g % 5
    d = vr(S(sig, t, a), 4)
    c = d if s else vr(NM(t), 4)
    return mfma(d, vr(KF(a, s), 4), ar(QF(t, s), 4), c)
def pv_mfma(sigp, idx):
    db = idx // 5; t = idx % 5
    p = vr(S(sigp, t, 0), 4)
    if db < 8: return mfma(O(t, db), ar(VF(db), 4), p, O(t, db))
    return mfma(ar(L(t), 4), vr(V_ONE, 4), p, ar(L(t), 4))

def exp_op(sig, t, a, r): return f"v_exp_f32 {vr(S(sig,t,a,r))}, {vr(S(sig,t,a,r))}"
def cvt_op(sig, t, a, h):
    return f"v_cvt_pk_bf16_f32 {vr(S(sig,t,0,2*a+h))}, {vr(S(sig,t,a,2*h))}, {vr(S(sig,t,a,2*h+1))}"
def kread(slot, a, s): return f"ds_read_b128 {vr(KF(a,s),4)}, {vr(V_KR+s)} offset:{slot*16384 + a*4096}"
def vread(slot, db, hf): return f"ds_read_b64_tr_b16 {ar(VF(db)+2*hf,2)}, {vr(V_VR+db)} offset:{slot*16384 + hf*4096}"

import os
KV_AUX = os.environ.get("KV_AUX", " nt")
X_AUX = os.environ.get("X_AUX", "")
WQ_AUX = os.environ.get("WQ_AUX", "")
WO_AUX = os.environ.get("WO_AUX", "")
def dma_ops(kind, slot, grp):
    base = (LDS_K if kind == 'K' else LDS_V) + slot*16384 + grp*8192
    srd = sr(S_K if kind == 'K' else S_V, 4)
    so = sr((S_KO0 if kind == 'K' else S_VO0) + grp)
    v0, v1 = (V_KD0, V_KD1) if kind == 'K' else (V_VD0, V_VD1)
    return (f"s_add_u32 m0, {sr(S_M0)}, {hex(base)}",
            [f"buffer_load_dwordx4 {vr(v0)}, {srd}, {so} offen{KV_AUX} lds",
             f"buffer_load_dwordx4 {vr(v1)}, {srd}, {so} offen offset:1024{KV_AUX} lds"])

def emit_gaps(A, mf, sc, ve):
    for g in range(len(mf)):
        A(mf[g])
        assert len(sc[g]) <= 1, (g, sc[g])
        for x in sc[g]: A(x)
        for x in ve[g]: A(x)

def step(A, n4, last_in_loop=False, loop_label=None, tail=None):
    sig = n4 & 1; sp = 1 - sig
    NG = 85
    sc = [[] for _ in range(NG)]
    ve = [[] for _ in range(NG)]
    for t in range(5):
        for r in range(4): ve[8*t + 2*r].append(exp_op(sp, t, 1, r))
    vslot = (n4 - 1) & 3
    vr_ops = [vread(vslot, db, hf) for db in range(8) for hf in range(2)]
    k = 0
    for g in range(1, 40, 2):
        if g % 4 == 1:
            if k < 16:
                ve[g].append(vr_ops[k]); k += 1
                if k < 16: ve[g].append(vr_ops[k]); k += 1
        else:
            if k < 16: ve[g].append(vr_ops[k]); k += 1
            t = g // 8; h = (g % 8) // 4
            ve[g].append(cvt_op(sp, t, 1, h))
    assert k == 16
    for t in range(5):
        for r in range(4): ve[40 + 8*t + 2*r].append(exp_op(sig, t, 0, r))
    kslot = (n4 + 1) & 3
    kr_ops = [kread(kslot, a, s) for a in range(2) for s in range(4)]
    if tail and not tail['kread']: kr_ops = []
    k = 0
    for g in range(43, 80, 4):
        if k < len(kr_ops): ve[g].append(kr_ops[k]); k += 1
        t = (g - 40) // 8; h = ((g - 40) % 8) // 4
        ve[g].append(cvt_op(sig, t, 0, h))
    dk = n4 & 3; dv = (n4 + 2) & 3
    if not tail:
        groups = [dma_ops('K', dk, 0), dma_ops('K', dk, 1), dma_ops('V', dv, 0), dma_ops('V', dv, 1)]
        dgaps = [25, 29, 33, 37, 41, 45, 49, 53]
        for q in range(4):
            m0, dd = groups[q]
            g0, g1 = dgaps[2*q], dgaps[2*q+1]
            assert not ve[g0] and not ve[g1], (g0, g1, ve[g0], ve[g1])
            sc[g0-1].append(m0)
            ve[g0].append(dd[0]); ve[g1].append(dd[1])
        sc[2].append(f"s_cmp_lt_u32 {sr(S_KO0)}, {hex(HEAD_BYTES)}")
        sc[3].append(f"s_cselect_b32 {sr(S_K+2)}, {hex(HEAD_BYTES)}, 0")
        sc[4].append(f"s_cmp_lt_u32 {sr(S_VO0)}, {hex(HEAD_BYTES)}")
        sc[5].append(f"s_cselect_b32 {sr(S_V+2)}, {hex(HEAD_BYTES)}, 0")
        sc[56].append(f"s_add_u32 {sr(S_KO0)}, {sr(S_KO0)}, 0x4000")
        sc[57].append(f"s_add_u32 {sr(S_KO1)}, {sr(S_KO1)}, 0x4000")
        sc[58].append(f"s_add_u32 {sr(S_VO0)}, {sr(S_VO0)}, 0x4000")
        sc[59].append(f"s_add_u32 {sr(S_VO1)}, {sr(S_VO1)}, 0x4000")
    sc[39].append("s_waitcnt lgkmcnt(0)")
    if last_in_loop:
        sc[82].append(f"s_sub_u32 {sr(S_CNT)}, {sr(S_CNT)}, 1")
    if not tail:
        A("s_waitcnt vmcnt(16) lgkmcnt(0)")
        A("s_barrier")
        mf = [qk_mfma(sig, g) if g < 40 else pv_mfma(sp, g - 40) for g in range(NG)]
        emit_gaps(A, mf, sc, ve)
    else:
        q = tail['q']
        q.wait(tail['wait'], extra="lgkmcnt(0)")
        A("s_barrier")
        if tail['vdma']:
            for grp, (g0, g1) in enumerate(((25, 29), (33, 37))):
                m0, dd = dma_ops('V', dv, grp)
                assert not ve[g0] and not ve[g1]
                sc[g0-1].append(m0)
                ve[g0].append(('v31', dd[0])); ve[g1].append(('v31', dd[1]))
        for g, ops in tail.get('xsc', {}).items(): sc[g] += ops
        for g, ops in tail.get('xve', {}).items():
            ve[g] += ops
            assert len(ve[g]) <= 2, (n4, g, ve[g])
        mf = [qk_mfma(sig, g) if g < 40 else pv_mfma(sp, g - 40) for g in range(NG)]
        emit_gaps_q(A, q, mf, sc, ve)
    if last_in_loop:
        A(f"s_bitcmp1_b32 {sr(S_SPM)}, {sr(S_CNT)}")
        A(f"s_cbranch_scc0 {loop_label}")
        A("s_branch L_special")
        A.label("L_loop_exit")

def emit_gaps_q(A, q, mf, sc, ve):
    for g in range(len(mf)):
        A(mf[g])
        assert len(sc[g]) <= 2, (g, sc[g])
        for x in sc[g]: A(x)
        for x in ve[g]:
            if isinstance(x, tuple): q.issue(x[0], x[1])
            else: A(x)

def special_blocks(A):
    A.label("L_special")
    A(f"""
    s_cmp_eq_u32 s{S_CNT}, 0
    s_cbranch_scc1 L_loop_exit
    s_cmp_eq_u32 s{S_CNT}, 1
    s_cbranch_scc1 L_sp_poll
    s_cmp_eq_u32 s{S_CNT}, 5
    s_cbranch_scc1 L_sp_arr
    """)
    wof_produce(A)
    A("s_branch L_loop")
    A.label("L_sp_arr")
    A(f"""
    s_cmp_lg_u32 s{S_W}, 0
    s_cbranch_scc1 L_loop
    s_mov_b64 exec, 1
    v_mov_b32 v{V_X}, 1
    buffer_atomic_add v{V_X}, off, {sr(S_DBG,4)}, 0
    s_mov_b64 exec, -1
    s_branch L_loop
    """)
    A.label("L_sp_poll")
    A(f"buffer_load_dword v{V_POLL}, off, {sr(S_DBG,4)}, 0 sc1")
    A("s_branch L_loop")

def setup_ids(A, endlabel):
    A(f"""
    s_load_dwordx4 s[4:7], s[0:1], 8
    s_load_dwordx2 s[8:9], s[0:1], 56
    s_load_dwordx2 s[{S_X}:{S_X+1}], s[0:1], 0
    s_load_dwordx2 s[{S_WQ}:{S_WQ+1}], s[0:1], 24
    s_load_dwordx2 s[{S_WOR}:{S_WOR+1}], s[0:1], 32
    s_load_dwordx2 s[{S_OUT}:{S_OUT+1}], s[0:1], 40
    s_load_dwordx2 s[{S_DBG}:{S_DBG+1}], s[0:1], 48
    s_cmp_ge_u32 s2, 256
    s_cbranch_scc1 {endlabel}
    v_lshrrev_b32 v{V_T}, 6, v0
    v_and_b32 v{V_LANE}, 63, v0
    v_readfirstlane_b32 s{S_W}, v{V_T}
    s_and_b32 s3, s2, 7
    s_lshr_b32 s10, s2, 3
    s_mov_b32 s{S_XCD}, s3
    s_mov_b32 s{S_SLOT}, s10
    s_and_b32 s11, s3, 1
    s_lshl_b32 s11, s11, 2
    s_lshr_b32 s{S_T0}, s10, 3
    s_add_u32 s{S_B}, s11, s{S_T0}
    s_lshr_b32 s11, s3, 1
    s_lshl_b32 s11, s11, 3
    s_and_b32 s{S_T0}, s10, 7
    s_add_u32 s{S_H}, s11, s{S_T0}
    s_lshr_b32 s{S_I}, s{S_W}, 1
    s_and_b32 s{S_J}, s{S_W}, 1
    s_lshl_b32 s{S_M0}, s{S_W}, 11
    s_mul_i32 s{S_MX}, s{S_W}, 5120
    s_lshl_b32 s11, s{S_B}, 4
    s_lshr_b32 s{S_T0}, s{S_H}, 1
    s_add_u32 s11, s11, s{S_T0}
    s_lshr_b32 s{S_KO0}, s11, 13
    s_lshl_b32 s{S_T0}, s11, 19
    s_mul_i32 s10, s{S_B}, 184320
    s_lshl_b32 s11, s{S_H}, 8
    s_waitcnt lgkmcnt(0)
    s_add_u32 s{S_X}, s{S_X}, s10
    s_addc_u32 s{S_X+1}, s{S_X+1}, 0
    s_mov_b32 s{S_X+2}, 184320
    s_mov_b32 s{S_X+3}, 0x20000
    s_add_u32 s{S_WQ}, s{S_WQ}, s11
    s_addc_u32 s{S_WQ+1}, s{S_WQ+1}, 0
    s_sub_u32 s{S_WQ+2}, {576*8192}, s11
    s_mov_b32 s{S_WQ+3}, 0x20000
    s_mov_b32 s3, s{S_T0}
    """)
    L = Asm()
    L(f"""
    s_add_u32 s{S_K}, s4, s3
    s_addc_u32 s{S_K+1}, s5, s{S_KO0}
    s_mov_b32 s{S_K+2}, {hex(HEAD_BYTES)}
    s_mov_b32 s{S_K+3}, 0x20000
    s_add_u32 s{S_V}, s6, s3
    s_addc_u32 s{S_V+1}, s7, s{S_KO0}
    s_mov_b32 s{S_V+2}, {hex(HEAD_BYTES)}
    s_mov_b32 s{S_V+3}, 0x20000
    s_mov_b32 s{S_WS}, s8
    s_mov_b32 s{S_WS+1}, s9
    s_mov_b32 s{S_WS+2}, 0x10000000
    s_mov_b32 s{S_WS+3}, 0x20000
    """)
    return L.lines

def setup_dma_addrs(A):
    T = V_X; L_ = V_LANE
    A(f"""
    v_lshrrev_b32 v{T}, 4, v{L_}
    v_and_b32 v{T+1}, 15, v{L_}
    v_lshrrev_b32 v{T+2}, 3, v{L_}
    v_and_b32 v{T+3}, 7, v{L_}
    s_mul_i32 s{S_T0}, s{S_W}, {40*1152}
    s_and_b32 s{S_T1}, s{S_W}, 1
    s_lshl_b32 s{S_T1}, s{S_T1}, 2
    v_mul_u32_u24 v{T+4}, 1152, v{T+2}
    v_add_u32 v{T+4}, s{S_T0}, v{T+4}
    v_xor_b32 v{T+5}, v{T+3}, v{T}
    v_xor_b32 v{T+5}, s{S_T1}, v{T+5}
    v_lshlrev_b32 v{T+6}, 4, v{T+5}
    v_add_u32 v{V_XD0}, v{T+4}, v{T+6}
    v_xor_b32 v{T+6}, 64, v{T+6}
    v_add_u32 v{V_XD1}, v{T+4}, v{T+6}
    """)
    A(f"""
    v_or_b32 v{T+4}, s{S_T1}, v{T}
    v_lshlrev_b32 v{T+4}, 1, v{T+4}
    v_xor_b32 v{T+4}, v{T+4}, v{T+1}
    v_lshlrev_b32 v{T+4}, 4, v{T+4}
    s_lshl_b32 s{S_T0}, s{S_W}, 3
    v_add_u32 v{T+5}, s{S_T0}, v{T}
    v_lshlrev_b32 v{T+6}, 13, v{T+5}
    v_add_u32 v{V_WD}, v{T+4}, v{T+6}
    """)
    for e in range(5): A(f"s_mov_b32 s{S_XO+e}, {e*8192 if e < 4 else 4*9216}")
    for e in range(4): A(f"s_mov_b32 s{S_WO+e}, {(e>>1)*32*8192 + (e&1)*(32768-1024)}")
    L = Asm()
    for e, (vk, vv) in enumerate([(V_KD0, V_VD0), (V_KD1, V_VD1)]):
        L(f"""
        v_add_u32 v{T+2}, {4*e}, v{T+5}
        v_and_b32 v{T+3}, 15, v{T+2}
        v_xor_b32 v{T+3}, v{T+3}, v{T+1}
        v_lshlrev_b32 v{T+3}, 4, v{T+3}
        v_lshlrev_b32 v{T+4}, 8, v{T+2}
        v_add_u32 v{vk}, v{T+3}, v{T+4}
        v_and_b32 v{T+3}, 7, v{T+2}
        v_lshlrev_b32 v{T+3}, 1, v{T+3}
        v_xor_b32 v{T+3}, v{T+3}, v{T+1}
        v_lshlrev_b32 v{T+3}, 4, v{T+3}
        v_add_u32 v{vv}, v{T+3}, v{T+4}
        """)
        if e:
            L(f"v_subrev_u32 v{vk}, 1024, v{vk}")
            L(f"v_subrev_u32 v{vv}, 1024, v{vv}")
    return L.lines

def xdma_ops(u):
    srd = sr(S_X, 4)
    out = []
    for e in range(5):
        m0 = None
        if e == 0: m0 = f"s_add_u32 m0, {sr(S_MX)}, {hex(XB[u])}"
        if e == 4: m0 = f"s_add_u32 m0, {sr(S_MX)}, {hex(XB[u] + 4096)}"
        v = V_XD0 if e % 2 == 0 else V_XD1
        off = f" offset:{e*1024}" if 0 < e < 4 else ""
        out.append((m0, f"buffer_load_dwordx4 {vr(v)}, {srd}, {sr(S_XO+e)} offen{off}{X_AUX} lds"))
    return out
def xadv(): return [f"s_add_u32 {sr(S_XO+e)}, {sr(S_XO+e)}, 128" for e in range(5)]
def wdma_ops(u):
    srd = sr(S_WQ, 4)
    out = []
    for e in range(4):
        m0 = f"s_add_u32 m0, {sr(S_M0)}, {hex(WQB[u] + (e>>1)*8192)}" if e % 2 == 0 else None
        off = " offset:1024" if e & 1 else ""
        out.append((m0, f"buffer_load_dwordx4 {vr(V_WD)}, {srd}, {sr(S_WO+e)} offen{off}{WQ_AUX} lds"))
    return out
def wadv(): return [f"s_add_u32 {sr(S_WO+e)}, {sr(S_WO+e)}, 0x80000" for e in range(4)]
def kvdma_ops(kind, tile_n, slot):
    out = []
    for grp in range(2):
        so = (S_KO0 if kind == 'K' else S_VO0) + grp
        m0, dd = dma_ops(kind, slot, grp)
        out.append(([f"s_mov_b32 s{so}, {hex(tile_n*16384 + grp*8192)}", m0], dd[0]))
        out.append(([], dd[1]))
    return out

def emit_plain(A, ops):
    for pre, d in ops:
        if pre:
            for x in (pre if isinstance(pre, list) else [pre]): A(x)
            A("s_nop 0")
        A(d)

def setup_read_addrs(A):
    T = V_X; L_ = V_LANE
    A(f"""
    v_lshrrev_b32 v{T}, 4, v{L_}
    v_and_b32 v{T+1}, 15, v{L_}
    """)
    A(f"""
    s_mul_i32 s{S_T0}, s{S_I}, {80*128}
    s_add_u32 s{S_T0}, s{S_T0}, {hex(XB[0])}
    v_lshrrev_b32 v{T+2}, 1, v{T+1}
    v_xor_b32 v{T+2}, v{T+2}, v{T}
    v_lshlrev_b32 v{T+2}, 4, v{T+2}
    v_lshlrev_b32 v{T+3}, 7, v{T+1}
    v_add_u32 v{T+3}, s{S_T0}, v{T+3}
    v_add_u32 v{V_XR}, v{T+2}, v{T+3}
    v_xor_b32 v{T+2}, 64, v{T+2}
    v_add_u32 v{V_XR+1}, v{T+2}, v{T+3}
    v_add_u32 v{V_XR2}, 0x12000, v{V_XR}
    v_add_u32 v{V_XR2+1}, 0x12000, v{V_XR+1}
    """)
    A(f"""
    v_lshrrev_b32 v{T+2}, 2, v{T+1}
    v_and_b32 v{T+3}, 1, v{T}
    v_lshlrev_b32 v{T+3}, 2, v{T+3}
    v_or_b32 v{T+3}, v{T+3}, v{T+2}
    v_lshlrev_b32 v{T+4}, 3, v{T}
    v_add_u32 v{T+4}, v{T+4}, v{T+2}
    v_lshlrev_b32 v{T+4}, 8, v{T+4}
    v_and_b32 v{T+5}, 3, v{L_}
    v_lshlrev_b32 v{T+5}, 3, v{T+5}
    v_add_u32 v{T+4}, v{T+4}, v{T+5}
    v_add_u32 v{T+4}, {hex(WQB[0])}, v{T+4}
    s_lshl_b32 s{S_T0}, s{S_J}, 2
    v_xor_b32 v{T+3}, s{S_T0}, v{T+3}
    """)
    for d in range(4):
        A(f"""
        v_xor_b32 v{T+5}, {d}, v{T+3}
        v_lshlrev_b32 v{T+5}, 5, v{T+5}
        v_add_u32 v{V_WR+d}, v{T+4}, v{T+5}
        v_add_u32 v{V_WR2+d}, 0x12000, v{V_WR+d}
        """)
    A(f"""
    s_mul_i32 s{S_T0}, s{S_I}, 20480
    s_lshl_b32 s{S_T1}, s{S_J}, 11
    s_add_u32 s{S_T0}, s{S_T0}, s{S_T1}
    s_add_u32 s{S_T0}, s{S_T0}, {hex(QIMG)}
    v_lshrrev_b32 v{T+2}, 1, v{T}
    v_lshlrev_b32 v{T+2}, 8, v{T+2}
    v_lshlrev_b32 v{T+3}, 4, v{T+1}
    v_add_u32 v{T+2}, v{T+2}, v{T+3}
    v_and_b32 v{T+3}, 1, v{T}
    v_lshlrev_b32 v{T+3}, 3, v{T+3}
    v_add_u32 v{T+2}, v{T+2}, v{T+3}
    v_add_u32 v{V_QW}, s{S_T0}, v{T+2}
    """)
    A(f"s_lshl_b32 s{S_T0}, s{S_J}, 13")
    for s in range(4):
        A(f"""
        v_add_u32 v{T+2}, {4*s}, v{T}
        v_xor_b32 v{T+2}, v{T+2}, v{T+1}
        v_lshlrev_b32 v{T+2}, 4, v{T+2}
        v_lshlrev_b32 v{T+3}, 8, v{T+1}
        v_add_u32 v{T+2}, v{T+2}, v{T+3}
        v_add_u32 v{V_KR+s}, s{S_T0}, v{T+2}
        """)
    A(f"""
    v_lshrrev_b32 v{T+2}, 2, v{T+1}
    v_lshlrev_b32 v{T+3}, 2, v{T}
    v_add_u32 v{T+2}, v{T+2}, v{T+3}
    v_and_b32 v{T+3}, 7, v{T+2}
    v_lshlrev_b32 v{T+2}, 8, v{T+2}
    v_and_b32 v{T+4}, 3, v{L_}
    v_lshlrev_b32 v{T+4}, 3, v{T+4}
    v_add_u32 v{T+2}, v{T+2}, v{T+4}
    s_add_u32 s{S_T0}, s{S_T0}, {hex(LDS_V)}
    v_add_u32 v{T+2}, s{S_T0}, v{T+2}
    s_lshl_b32 s{S_T1}, s{S_J}, 2
    v_xor_b32 v{T+3}, s{S_T1}, v{T+3}
    """)
    for idx in range(8):
        A(f"""
        v_xor_b32 v{T+4}, {idx}, v{T+3}
        v_lshlrev_b32 v{T+4}, 5, v{T+4}
        v_add_u32 v{V_VR+idx}, v{T+2}, v{T+4}
        """)
    A(f"""
    v_and_b32 v{T+2}, 3, v{L_}
    v_cmp_eq_u32 vcc, 0, v{T+2}
    v_mov_b32 v{T+3}, 0x3f803f80
    s_mov_b32 s{S_SC}, {f32hex(SCALE)}
    s_mov_b32 s{S_SC+1}, {f32hex(SCALE)}
    v_cndmask_b32 v{V_ONE}, 0, v{T+3}, vcc
    v_cndmask_b32 v{V_ONE+1}, 0, v{T+3}, vcc
    v_cndmask_b32 v{V_ONE+2}, 0, v{T+3}, vcc
    v_cndmask_b32 v{V_ONE+3}, 0, v{T+3}, vcc
    """)

def zero_state(A, acc=True, nm=True):
    if acc:
        for r in range(V_S, V_S+80, 2): A(f"v_mov_b64 {vr(r,2)}, 0")
    if nm:
        for r in range(V_NM, V_NM+20, 2): A(f"v_mov_b64 {vr(r,2)}, 0")
    for r in range(V_OK, V_OK+80, 2): A(f"v_mov_b64 {vr(r,2)}, 0")
    A("v_accvgpr_write_b32 a0, 0")
    A("s_nop 1")
    for r in range(1, 100): A(f"v_accvgpr_mov_b32 a{r}, a0")

def xread(u, kap, p, t):
    return f"ds_read_b128 {ar(PB(p,t),4)}, {vr((V_XR if u < 2 else V_XR2)+kap)} offset:{(u&1)*0x9000 + t*2048}"
def wread(u, kap, p, d, hf):
    return f"ds_read_b64_tr_b16 {vr(PA(p,d)+2*hf,2)}, {vr((V_WR if u < 2 else V_WR2)+d)} offset:{(u&1)*0x9000 + kap*8192 + hf*1024}"
def p1_reads(u, kap, p):
    g = [[xread(u, kap, p, 0)], [wread(u, kap, p, 0, 0), wread(u, kap, p, 0, 1)]]
    g += [[xread(u, kap, p, t)] for t in range(1, 5)]
    g += [[wread(u, kap, p, d, 0), wread(u, kap, p, d, 1)] for d in range(1, 4)]
    return g
def p1_mfma(p, g, czero=False):
    d = g // 5; t = g % 5
    a = vr(ACC(t, d), 4)
    return mfma(a, vr(PA(p, d), 4), ar(PB(p, t), 4), "0" if czero else a)

class VCount:
    def __init__(self): self.n = 0; self.last = {}
    def note(self, tag): self.n += 1; self.last[tag] = self.n
    def need(self, *tags): return self.n - max(self.last[t] for t in tags)

def p1_half(A, q, h, reads, dmas, advs, extra=None):
    p = h & 1
    sc = [[] for _ in range(20)]; ve = [[] for _ in range(20)]
    for k, grp in enumerate(reads): ve[k] = list(grp)
    n = len(dmas)
    gaps = [10, 12, 14, 16, 18][:n]
    assert n <= 5
    for (pre, d, tag), gg in zip(dmas, gaps):
        pre = [] if pre is None else (pre if isinstance(pre, list) else [pre])
        assert len(pre) <= 2
        for k, x in enumerate(pre):
            sc[gg - len(pre) + k].append(x)
        ve[gg].append(d); q.note(tag)
    k = 0
    for gg in range(0, 8):
        if k < len(advs) and not sc[gg]:
            sc[gg].append(advs[k]); k += 1
    assert k == len(advs)
    for gg, ops in (extra or {}).items():
        assert not any(o.startswith("buffer_") for o in ve[gg]), (gg, ve[gg])
        ve[gg] += ops
        assert len(ve[gg]) <= 2, (gg, ve[gg])
    mf = [p1_mfma(p, g, czero=(h == 0)) for g in range(20)]
    emit_gaps(A, mf, sc, ve)

def tagged(ops, tag): return [(pre, d, tag) for pre, d in ops]

def wof_dma_setup(A):
    T = V_X; L_ = V_LANE
    A(f"""
    s_lshr_b32 s10, s2, 1
    s_and_b32 s11, s2, 1
    s_mul_i32 s{S_T0}, s10, {32*1152}
    s_mul_i32 s{S_T1}, s11, 576
    s_add_u32 s{S_T0}, s{S_T0}, s{S_T1}
    s_add_u32 s{S_WOR}, s{S_WOR}, s{S_T0}
    s_addc_u32 s{S_WOR+1}, s{S_WOR+1}, 0
    s_sub_u32 s{S_WOR+2}, {4096*1152}, s{S_T0}
    s_mov_b32 s{S_WOR+3}, 0x20000
    v_lshrrev_b32 v{T}, 5, v{L_}
    v_and_b32 v{T+1}, 31, v{L_}
    v_lshlrev_b32 v{T+2}, 1, v{T}
    v_xor_b32 v{T+1}, v{T+1}, v{T+2}
    v_lshlrev_b32 v{T+1}, 4, v{T+1}
    s_lshl_b32 s{S_T0}, s{S_W}, 3
    v_add_u32 v{T}, s{S_T0}, v{T}
    v_mul_u32_u24 v{T}, 1152, v{T}
    v_add_u32 v{V_RWA}, v{T}, v{T+1}
    v_lshrrev_b32 v{T+2}, 2, v{L_}
    s_lshl_b32 s{S_T0}, s{S_J}, 4
    v_add_u32 v{T+2}, s{S_T0}, v{T+2}
    v_mul_u32_u24 v{T+2}, 1152, v{T+2}
    v_and_b32 v{T+3}, 3, v{L_}
    v_lshlrev_b32 v{T+3}, 4, v{T+3}
    v_add_u32 v{T+2}, v{T+2}, v{T+3}
    v_add_u32 v{V_RWB}, 512, v{T+2}
    """)

def wof_dma_issue(A):
    A(f"""
    s_mul_i32 s{S_T0}, s{S_I}, {RAW1-RAW0}
    s_mul_i32 s{S_T1}, s{S_J}, 4352
    s_add_u32 s{S_T0}, s{S_T0}, s{S_T1}
    s_add_u32 m0, s{S_T0}, {hex(RAW0)}
    """)
    for e in range(4):
        A(f"s_movk_i32 s{S_T1}, {e*1216}")
        off = f" offset:{e*1088}" if e else ""
        A(f"buffer_load_dwordx4 v{V_RWA}, {sr(S_WOR,4)}, s{S_T1} offen{off}{WO_AUX} lds")
    A(f"""
    s_mul_i32 s{S_T0}, s{S_J}, {RAW1-RAW0}
    s_add_u32 m0, s{S_T0}, {hex(RAW0+RAWB)}
    s_nop 0
    buffer_load_dwordx4 v{V_RWB}, {sr(S_WOR,4)}, 0 offen{WO_AUX} lds
    """)

def wof_addr_setup(A):
    T = V_X; L_ = V_LANE
    A(f"""
    v_lshrrev_b32 v{T}, 5, v{L_}
    v_mul_u32_u24 v{T}, 4352, v{T}
    v_lshrrev_b32 v{T+1}, 3, v{L_}
    v_and_b32 v{T+1}, 3, v{T+1}
    v_mul_u32_u24 v{T+1}, 1088, v{T+1}
    v_add_u32 v{T}, v{T}, v{T+1}
    v_lshrrev_b32 v{T+1}, 2, v{L_}
    v_and_b32 v{T+2}, 1, v{T+1}
    v_lshlrev_b32 v{T+3}, 9, v{T+2}
    v_add_u32 v{T}, v{T}, v{T+3}
    v_xor_b32 v{T+2}, s{S_W}, v{T+2}
    v_lshlrev_b32 v{T+2}, 5, v{T+2}
    v_add_u32 v{T}, v{T}, v{T+2}
    v_and_b32 v{T+2}, 3, v{L_}
    v_lshlrev_b32 v{T+2}, 3, v{T+2}
    v_add_u32 v{T}, v{T}, v{T+2}
    v_add_u32 v{V_WA}, {hex(RAW0)}, v{T}
    v_lshlrev_b32 v{T+1}, 6, v{T+1}
    v_add_u32 v{T+1}, v{T+1}, v{T+2}
    s_lshl_b32 s{S_T0}, s{S_J}, 5
    s_add_u32 s{S_T0}, s{S_T0}, {hex(RAW0+RAWB)}
    v_add_u32 v{V_WB}, s{S_T0}, v{T+1}
    v_lshlrev_b32 v{V_L16}, 4, v{L_}
    s_lshr_b32 s10, s2, 1
    s_and_b32 s11, s2, 1
    s_mul_i32 s11, s11, 18
    s_add_u32 s11, s11, s{S_W}
    s_lshl_b32 s11, s11, 7
    s_add_u32 s11, s11, s10
    s_lshl_b32 s11, s11, 10
    s_add_u32 s{S_WFS}, s11, {hex(WOF)}
    s_add_u32 s{S_WFS+1}, s{S_WFS}, 0x80000
    s_add_u32 s{S_WFS+2}, s{S_WFS+1}, 0x80000
    s_add_u32 s{S_WFS+3}, s{S_WFS+2}, 0x80000
    s_add_u32 s{S_WFS+4}, s{S_WFS+3}, 0x80000
    s_cmp_lt_u32 s{S_W}, 2
    s_cselect_b32 s{S_WFS+4}, s{S_WFS+4}, 0x10000000
    """)

def wof_produce(A):
    for e in range(5):
        dst = A_WF + 4*e
        for hf in range(2):
            if e < 4: A(f"ds_read_b64_tr_b16 {ar(dst+2*hf,2)}, v{V_WA} offset:{e*128 + hf*(RAW1-RAW0)}")
            else: A(f"ds_read_b64_tr_b16 {ar(dst+2*hf,2)}, v{V_WB} offset:{hf*(RAW1-RAW0)}")
    for e in range(5):
        A(f"s_waitcnt lgkmcnt({8 - 2*e})")
        A(f"buffer_store_dwordx4 {ar(A_WF+4*e,4)}, v{V_L16}, {sr(S_WS,4)}, s{S_WFS+e} offen sc1")

def phase_o_setup(A):
    A(f"""
    s_mul_i32 s10, s{S_SLOT}, 43
    s_lshr_b32 s10, s10, 8
    s_lshr_b32 s11, s{S_XCD}, 1
    s_mul_i32 s11, s11, 5
    s_add_u32 s11, s11, s10
    s_mul_i32 s10, s10, 6
    s_sub_u32 s10, s{S_SLOT}, s10
    s_and_b32 s{S_T0}, s{S_XCD}, 1
    s_mul_i32 s{S_T0}, s{S_T0}, 6
    s_add_u32 s10, s10, s{S_T0}
    s_lshl_b32 s{S_OO}, s11, 19
    s_mul_i32 s{S_OW}, s10, {3*131072}
    s_add_u32 s{S_OW}, s{S_OW}, {hex(WOF)}
    s_mul_i32 s{S_T0}, s11, {64*1152}
    s_mul_i32 s{S_T1}, s10, 96
    s_add_u32 s{S_T0}, s{S_T0}, s{S_T1}
    s_add_u32 s{S_OUT}, s{S_OUT}, s{S_T0}
    s_addc_u32 s{S_OUT+1}, s{S_OUT+1}, 0
    s_sub_u32 s{S_OUT+2}, {1280*1152}, s{S_T0}
    s_mov_b32 s{S_OUT+3}, 0x20000
    s_mov_b32 s{S_DBG+2}, 256
    s_mov_b32 s{S_DBG+3}, 0x20000
    s_cmp_lt_u32 s{S_SLOT}, 30
    s_cselect_b32 s{S_CONS}, 1, 0
    s_lshl_b32 s11, s11, 2
    """)
    def caddr(dst, b):
        A(f"""
        s_lshl_b32 s{S_T0}, s{b}, 5
        s_add_u32 s{S_T0}, s{S_T0}, s{S_SLOT}
        s_lshl_b32 s{S_T0}, s{S_T0}, 7
        s_add_u32 s{dst}, s{S_T0}, {hex(CNTB)}
        """)
    A(f"s_mul_i32 s10, s11, 103\ns_lshr_b32 s10, s10, 10")
    caddr(S_PA0, 10)
    A(f"s_add_u32 s11, s11, 3\ns_mul_i32 s10, s11, 103\ns_lshr_b32 s10, s10, 10")
    caddr(S_PA1, 10)
    A(f"s_lshl_b32 s{S_CO}, s{S_B}, 12\ns_add_u32 s{S_CO}, s{S_CO}, {hex(CNTB)}")
    A(f"""
    s_lshl_b32 s10, s2, 7
    s_add_u32 s10, s10, {hex(CNTB)}
    s_cmp_lg_u32 s{S_FB}, 0
    s_cselect_b32 s10, 0x10000000, s10
    v_and_b32 v{V_X}, 31, v{V_LANE}
    v_lshlrev_b32 v{V_X}, 2, v{V_X}
    v_mov_b32 v{V_X+1}, 0
    buffer_store_dword v{V_X+1}, v{V_X}, {sr(S_WS,4)}, s10 offen sc1
    """)
    A(f"""
    s_mul_i32 s{S_T0}, s{S_B}, 10
    s_mul_i32 s{S_T1}, s{S_I}, 5
    s_add_u32 s{S_T0}, s{S_T0}, s{S_T1}
    s_lshl_b32 s{S_T0}, s{S_T0}, 5
    s_add_u32 s{S_T0}, s{S_T0}, s{S_H}
    s_lshl_b32 s{S_T0}, s{S_T0}, 1
    s_add_u32 s{S_T0}, s{S_T0}, s{S_J}
    s_lshl_b32 s{S_OB}, s{S_T0}, 11
    """)

def p1(A, q):
    A(f"s_waitcnt vmcnt({q.need(('x',0), ('wq',0))})")
    A("s_barrier")
    stamp(A, 'first')
    for grp in p1_reads(bu(0), 0, 0):
        for x in grp: A(x)
    A("s_waitcnt lgkmcnt(0)")
    kv = {11: ('K', 0, 0), 12: ('K', 1, 1), 13: ('V', 0, 0), 14: ('K', 2, 2), 15: ('K', 3, 3), 16: ('V', 1, 1)}
    xadv_pending = wadv_pending = False
    for h in range(18):
        c = h >> 1
        if h == 12: stamp(A, 'c6')
        if h == 14: stamp(A, 'c7')
        dmas, advs = [], []
        if h & 1:
            if c + 4 <= 8: dmas = tagged(xdma_ops(bu(c + 4)), ('x', c + 4))
        else:
            if c >= 1 and c + 3 <= 8: dmas = tagged(wdma_ops(bu(c + 3)), ('wq', c + 3))
        if h in kv:
            kind, tile, slot = kv[h]
            assert not dmas
            dmas = tagged(kvdma_ops(kind, tile, slot), (kind, tile))
        if h >= 2 and not (h & 1) and (h - 1 >> 1) + 4 <= 7: advs = xadv()
        if h >= 3 and (h & 1) and (h - 1 >> 1) + 3 <= 7: advs = wadv()
        if h & 1: reads = p1_reads(bu(c + 1), 0, 0) if c < 8 else []
        else: reads = p1_reads(bu(c), 1, 1)
        extra = {k: [f"v_mov_b64 {vr(V_NM+2*k,2)}, 0"] for k in range(10)} if h == 17 else None
        p1_half(A, q, h, reads, dmas, advs, extra)
        if not (h & 1):
            if c < 8: A(f"s_waitcnt vmcnt({q.need(('x', c+1), ('wq', c+1))}) lgkmcnt(0)")
            else: A("s_waitcnt lgkmcnt(0)")
            A("s_barrier")
        elif c < 8: A("s_waitcnt lgkmcnt(0)")

def q_exchange(A):
    A("s_nop 7")
    for d in range(4):
        for t in range(5):
            a = ACC(t, d)
            A(f"v_pk_mul_f32 {vr(a,2)}, {vr(a,2)}, {sr(S_SC,2)}")
            A(f"v_pk_mul_f32 {vr(a+2,2)}, {vr(a+2,2)}, {sr(S_SC,2)}")
            A(f"v_cvt_pk_bf16_f32 {vr(a)}, {vr(a)}, {vr(a+1)}")
            A(f"v_cvt_pk_bf16_f32 {vr(a+1)}, {vr(a+2)}, {vr(a+3)}")
            A(f"ds_write_b64 {vr(V_QW)}, {vr(a,2)} offset:{t*4096 + (d>>1)*1024 + (d&1)*512}")
    A(f"""
    s_mul_i32 s{S_T0}, s{S_I}, 20480
    s_add_u32 s{S_T0}, s{S_T0}, {hex(QIMG)}
    v_lshlrev_b32 v{V_X}, 4, v{V_LANE}
    v_add_u32 v{V_X}, s{S_T0}, v{V_X}
    """)
    stamp(A, 'qw')
    A("s_waitcnt vmcnt(16) lgkmcnt(0)\ns_barrier")
    stamp(A, 'qbar')
    for t in range(5):
        for s in range(4):
            A(f"ds_read_b128 {ar(QF(t,s),4)}, v{V_X} offset:{(t*4+s)*1024}")

def qk0(A):
    for a in range(2):
        for s in range(4): A(kread(0, a, s))
    A("s_waitcnt lgkmcnt(0)")
    sc = [[] for _ in range(40)]; ve = [[] for _ in range(40)]
    k = 0
    for g in range(24, 40):
        t, r = k // 4, k % 4
        ve[g].append(exp_op(0, t, 0, r)); k += 1
    emit_gaps(A, [qk_mfma(0, g) for g in range(40)], sc, ve)
    stamp(A, 'qk0')
    for a in range(2):
        for s in range(4): A(kread(1, a, s))
    for r in range(4): A(exp_op(0, 4, 0, r))
    for t in range(5):
        A(cvt_op(0, t, 0, 0)); A(cvt_op(0, t, 0, 1))
    A("s_waitcnt lgkmcnt(0)\ns_barrier")
    emit_plain(A, kvdma_ops('K', 4, 0)); emit_plain(A, kvdma_ops('V', 2, 2))
    A(f"s_cmp_lg_u32 s{S_FB}, 0\ns_cbranch_scc1 L_no_raw")
    wof_dma_issue(A)
    A.label("L_no_raw")
    A(f"""
    s_mov_b32 s{S_KO0}, {hex(5*16384)}
    s_mov_b32 s{S_KO1}, {hex(5*16384+8192)}
    s_mov_b32 s{S_VO0}, {hex(3*16384)}
    s_mov_b32 s{S_VO1}, {hex(3*16384+8192)}
    s_mov_b32 s{S_CNT}, 7
    """)

def fallback(A):
    A.label("L_fallback")
    A(f"s_mov_b32 s{S_FB}, 1")
    A("s_waitcnt vmcnt(0) lgkmcnt(0)\ns_barrier\ns_branch L_restart")
    A.label("L_fb_max")
    VA, VW, VR_ = 31, 254, 255
    A("s_waitcnt vmcnt(0) lgkmcnt(0)\ns_barrier")
    for t in range(5):
        A(f"v_mov_b32 v{V_X+t}, 0xff800000")
    for r in range(V_NM, V_NM+20, 2): A(f"v_mov_b64 {vr(r,2)}, 0")
    A(f"s_mov_b32 s{S_K+2}, {hex(HEAD_BYTES)}\ns_mov_b32 s{S_V+2}, {hex(HEAD_BYTES)}")
    A(f"s_mov_b32 s{S_KO0}, 0\ns_mov_b32 s{S_KO1}, 0x2000")
    A.label("L_fb_loop")
    for grp in range(2):
        m0, dd = dma_ops('K', 0, grp)
        A(m0); A("s_nop 0"); A(dd[0]); A(dd[1])
    A("s_waitcnt vmcnt(0)\ns_barrier")
    for a in range(2):
        for s in range(4): A(kread(0, a, s))
    A("s_waitcnt lgkmcnt(0)\ns_barrier")
    for g in range(40): A(qk_mfma(0, g))
    A("s_nop 7")
    for t in range(5):
        s = [S(0, t, a, r) for a in range(2) for r in range(4)]
        for k in range(0, 8, 2):
            A(f"v_max3_f32 v{V_X+t}, v{s[k]}, v{s[k+1]}, v{V_X+t}")
    A(f"""
    s_add_u32 s{S_KO0}, s{S_KO0}, 0x4000
    s_add_u32 s{S_KO1}, s{S_KO1}, 0x4000
    s_cmp_lt_u32 s{S_KO0}, {hex(HEAD_BYTES)}
    s_cbranch_scc1 L_fb_loop
    """)
    for t in range(5):
        x = V_X + t; y = V_X + 5
        A(f"""
        v_mov_b32 v{y}, v{x}
        s_nop 1
        v_permlane32_swap_b32 v{x}, v{y}
        s_nop 1
        v_max_f32 v{x}, v{x}, v{y}
        v_mov_b32 v{y}, v{x}
        s_nop 1
        v_permlane16_swap_b32 v{x}, v{y}
        s_nop 1
        v_max_f32 v{x}, v{x}, v{y}
        """)
    A(f"""
    v_lshlrev_b32 v{VA}, 2, v{V_LANE}
    s_mul_i32 s{S_T0}, s{S_W}, 1280
    s_add_u32 s{S_T0}, s{S_T0}, {hex(LDS_SP)}
    v_add_u32 v{VW}, s{S_T0}, v{VA}
    s_xor_b32 s{S_T1}, s{S_W}, 1
    s_mul_i32 s{S_T1}, s{S_T1}, 1280
    s_add_u32 s{S_T1}, s{S_T1}, {hex(LDS_SP)}
    v_add_u32 v{VR_}, s{S_T1}, v{VA}
    """)
    for t in range(5): A(f"ds_write_b32 v{VW}, v{V_X+t} offset:{t*256}")
    A("s_waitcnt lgkmcnt(0)\ns_barrier")
    for t in range(5): A(f"ds_read_b32 v{V_S+t}, v{VR_} offset:{t*256}")
    A("s_waitcnt lgkmcnt(0)")
    for t in range(5):
        A(f"v_max_f32 v{V_X+t}, v{V_X+t}, v{V_S+t}")
        for r in range(4): A(f"v_sub_f32 v{NM(t)+r}, 0, v{V_X+t}")
    zero_state(A, acc=False, nm=False)
    emit_plain(A, kvdma_ops('K', 0, 0)); emit_plain(A, kvdma_ops('K', 1, 1)); emit_plain(A, kvdma_ops('V', 0, 0))
    emit_plain(A, kvdma_ops('K', 2, 2)); emit_plain(A, kvdma_ops('K', 3, 3)); emit_plain(A, kvdma_ops('V', 1, 1))
    A(f"s_mov_b32 s{S_SPM}, 0x03")
    A("s_waitcnt vmcnt(0)\ns_barrier\ns_branch L_qk0")

import os
EXP = os.environ.get('EXP', '')
NPRE = int(os.environ.get('NPRE', 6))
NPOLL = int(os.environ.get('NPOLL', 5))
RING = int(os.environ.get('RING', 6))
SPIN_MAX = 1 << 17

class VMQ:
    def __init__(self, A, limit=60):
        self.A = A; self.n = 0; self.last = {}; self.done = 0; self.limit = limit
    def note(self, tag, cnt):
        self.n += cnt; self.last[tag] = self.n
    def issue(self, tag, text):
        if self.n - self.done >= self.limit:
            keep = self.limit - 4
            self.A(f"s_waitcnt vmcnt({keep})"); self.done = self.n - keep
        self.A(text); self.n += 1; self.last[tag] = self.n
    def wait(self, *tags, extra=""):
        tgt = max(self.last[t] for t in tags)
        if tgt <= self.done:
            if extra: self.A(f"s_waitcnt {extra}")
            return
        N = self.n - tgt
        assert 0 <= N <= 63
        self.A(f"s_waitcnt vmcnt({N}) {extra}".strip()); self.done = tgt

V_OA = 1
V_OO = 5
V_PA = 6
V_PV = 7
V_XLW, V_XLR = 7, 8
V_LRA, V_LRB = 10, 11
V_D1, V_D2 = 28, 29
V_L = V_L16
V_L9 = 9
V_ACC = 12
V_RING = 60
V_WFV = 172
S_WFD = 40
def S_G(g): return 47 + g
S_LB = 55
LE_BASE = [0x22000, 0x25000, 0x14000, 0x17000]
assert V_RING + RING*16 <= V_WFV
def WF(p, nt):
    if p < 10: return ar((11 + p)*12 + nt*4, 4)
    if p < 21: return ar((p - 10)*12 + nt*4, 4)
    if p < 25: return ar((11 + p - 21)*12 + nt*4, 4)
    return vr(V_WFV + (p - 25)*12 + nt*4, 4)
def OB(i, tl): return V_RING + (i % RING)*16 + tl*4
def ACCO(tl, nt): return V_ACC + (tl*3 + nt)*4
def wf_loads(p):
    so = f"s{S_G(p >> 2)}" if p >> 2 else "0"
    off = f" offset:{(p & 3)*1024}" if p & 3 else ""
    return [(('w', p), f"buffer_load_dwordx4 {WF(p,nt)}, v{V_OA+nt}, {sr(S_WFD,4)}, {so} offen{off} sc1") for nt in range(3)]
def wf_dma(p):
    e = p - 21
    pre = [f"s_movk_i32 s{S_T1}, {p*1024}", f"s_add_u32 m0, s{S_LB}, {hex(LE_BASE[e])}"]
    v = [V_OA, V_D1, V_D2]
    return pre, [(('w', p), f"buffer_load_dwordx4 v{v[nt]}, {sr(S_WFD,4)}, s{S_T1} offen" + (f" offset:{nt*1024}" if nt else "") + " sc1 lds") for nt in range(3)]

class SOff:
    def __init__(self, A, reg): self.A = A; self.reg = reg; self.g = 0
    def at(self, i):
        g = i >> 2
        if g != self.g:
            self.A(f"s_add_u32 s{self.reg}, s{self.reg}, {(g - self.g)*4096}"); self.g = g
        return f"s{self.reg}", (f" offset:{(i & 3)*1024}" if i & 3 else "")

XL = LDS_SP
XF = LDS_SP + 5120

def place(dst, gaps, items):
    assert len(items) <= len(gaps), (len(items), len(gaps))
    for g, it in zip(gaps, items):
        dst.setdefault(g, []).extend(it if isinstance(it, list) else [it])

def tail_steps(A):
    T = V_X
    q = VMQ(A)
    q.note('s26', 8); q.note('s27', 8); q.note('s28', 8)
    A(f"""
    v_readfirstlane_b32 s{S_T0}, v{V_POLL}
    s_nop 0
    s_cmp_lg_u32 s{S_T0}, 256
    s_cbranch_scc1 L_wspin
    """)
    A.label("L_wok")
    xsc, xve = {}, {}
    place(xsc, range(41, 60), [
        [f"s_add_u32 s{S_WFD}, s{S_WS}, s{S_OW}", f"s_addc_u32 s{S_WFD+1}, s{S_WS+1}, 0"],
        [f"s_cmp_lg_u32 s{S_CONS}, 0", f"s_cselect_b32 s{S_WFD+2}, 0x60000, 0"],
        f"s_mov_b32 s{S_WFD+3}, 0x20000",
        f"s_mul_i32 s{S_LB}, s{S_W}, 0xc00",
        f"s_lshl_b32 s{S_T0}, s{S_W}, 15",
        ] + [f"s_movk_i32 s{S_G(g)}, {g*4096}" for g in range(1, 8)])
    place(xve, [45, 49, 53, 57], [
        [f"v_add_u32 v{V_OA}, s{S_T0}, v{V_L16}"],
        [f"v_add_u32 v{V_OA+1}, 0x20000, v{V_OA}", f"v_add_u32 v{V_OA+2}, 0x40000, v{V_OA}"],
        [f"v_add_u32 v{V_OA+3}, 0x60000, v{V_OA}", f"v_add_u32 v{V_D1}, {hex(0x20000-1024)}, v{V_OA}"],
        [f"v_add_u32 v{V_D2}, {hex(0x40000-2048)}, v{V_OA}", f"v_mov_b32 v{T+5}, {hex(XF)}"]])
    place(xsc, [60, 61, 64, 65, 68, 69], [
        f"s_lshl_b32 s{S_T0}, s{S_W}, 2", f"s_add_u32 s{S_T0}, s{S_T0}, {hex(XF)}",
        f"s_mul_i32 s{S_T0}, s{S_W}, 20480", f"s_xor_b32 s{S_T1}, s{S_W}, 1",
        f"s_mul_i32 s{S_T1}, s{S_T1}, 20480"])
    place(xve, [61, 65, 69], [
        f"v_mov_b32 v{T+4}, s{S_T0}",
        f"v_add_u32 v{T+6}, s{S_T0}, v{V_L16}",
        f"v_add_u32 v{T+7}, s{S_T1}, v{V_L16}"])
    step(A, 1, tail=dict(q=q, wait='s26', kread=True, vdma=True, xsc=xsc, xve=xve))
    xsc, xve = {}, {}
    slots = list(range(25, 85, 4))
    ops = wf_loads(7) + wf_loads(8) + wf_loads(9)
    place(xve, slots[:9], ops)
    for k, p in enumerate((21, 22)):
        pre, dd = wf_dma(p)
        g = slots[9 + 3*k]
        place(xsc, [g - 2, g - 1], pre)
        place(xve, slots[9 + 3*k: 12 + 3*k], dd)
    step(A, 2, tail=dict(q=q, wait='s27', kread=True, vdma=False, xsc=xsc, xve=xve))
    xsc, xve = {}, {}
    pre, dd = wf_dma(23)
    place(xsc, [23, 24], pre); place(xve, [25, 29, 33], dd)
    early = sum((wf_loads(p) for p in range(7)), [])
    n31 = 11
    place(xve, list(range(41, 85, 4)), early[:n31])
    place(xsc, [42, 43, 44, 46, 47, 48], [
        f"s_mul_i32 s{S_T0}, s{S_W}, 1280", f"s_add_u32 s{S_T0}, s{S_T0}, {hex(XL)}",
        f"s_xor_b32 s{S_T1}, s{S_W}, 1", f"s_mul_i32 s{S_T1}, s{S_T1}, 1280", f"s_add_u32 s{S_T1}, s{S_T1}, {hex(XL)}"])
    place(xve, [43, 47, 51], [
        f"v_lshlrev_b32 v{V_XLR}, 2, v{V_LANE}",
        f"v_add_u32 v{V_XLW}, s{S_T0}, v{V_XLR}",
        f"v_add_u32 v{V_XLR}, s{S_T1}, v{V_XLR}"])
    step(A, 3, tail=dict(q=q, wait='s28', kread=False, vdma=False, xsc=xsc, xve=xve))
    q.wait('v31', extra="lgkmcnt(0)")
    A("s_barrier")
    order = [4, 5, 6, 7, 0, 1, 2, 3]
    for db in order:
        for hf in range(2): A(vread(3, db, hf))
    for r in range(4): A(exp_op(1, 0, 1, r))
    A(cvt_op(1, 0, 1, 0)); A(cvt_op(1, 0, 1, 1))
    A("s_nop 1")
    rest = early[n31:]
    LV = V_KF
    def xw(t): return [f"ds_write_b128 v{T+6}, {O(t, 4+k)} offset:{(t*4+k)*1024}" for k in range(4)]
    for t in range(5):
        ve = [[] for _ in range(9)]; sc = [[] for _ in range(9)]
        if t < 4:
            for r in range(4): ve[r].append(exp_op(1, t+1, 1, r))
            ve[4].append(cvt_op(1, t+1, 1, 0)); ve[5].append(cvt_op(1, t+1, 1, 1))
        if t == 0:
            for k in range(8): sc[k].append(f"s_waitcnt lgkmcnt({14 - 2*k})")
        if t > 0:
            ve[0].append(f"v_accvgpr_read_b32 v{LV+t-1}, a{L(t-1)}")
            ve[2].append(f"ds_write_b32 v{V_XLW}, v{LV+t-1} offset:{(t-1)*256}")
            for k, w in enumerate(xw(t-1)): ve[[3, 5, 6, 8][k]].append(w)
        for g in (4, 7):
            if rest: ve[g].append(rest.pop(0))
        if t == 4:
            ve[1] += [f"v_max3_f32 v{T}, v{LV}, v{LV+1}, v{LV+2}", f"v_min3_f32 v{T+1}, v{LV}, v{LV+1}, v{LV+2}"]
            ve[4] += [f"v_add_f32 v{T+2}, v{LV}, v{LV+1}"]
            ve[7] += [f"v_add_f32 v{T+3}, v{LV+2}, v{LV+3}"]
        mf = [pv_mfma(1, 40 + t)] + [pv_mfma(1, db*5 + t) for db in order]
        emit_gaps_q(A, q, mf, sc, ve)
    assert not rest
    return q

def epilogue(A, stamps, q):
    T = V_X
    R = V_S
    LV = V_KF
    A(f"""
    v_accvgpr_read_b32 v{LV+4}, a{L(4)}
    s_mov_b32 s{S_T0}, {f32hex(T_HI)}
    s_mov_b32 s{S_T1}, {f32hex(T_LO)}
    v_max3_f32 v{T}, v{T}, v{LV+3}, v{LV+4}
    v_min3_f32 v{T+1}, v{T+1}, v{LV+3}, v{LV+4}
    v_add_f32 v{T+2}, v{T+2}, v{LV+4}
    ds_write_b32 v{V_XLW}, v{LV+4} offset:1024
    v_add_f32 v{T+2}, v{T+2}, v{T+3}
    v_cmp_nge_f32 vcc, s{S_T0}, v{T}
    v_cmp_nle_f32 s[{S_MSK}:{S_MSK+1}], s{S_T1}, v{T+1}
    v_cmp_u_f32 s[{S_MSK2}:{S_MSK2+1}], v{T+2}, v{T+2}
    """)
    for k in range(4): A(f"ds_write_b128 v{T+6}, {O(4, 4+k)} offset:{(16+k)*1024}")
    A(f"""
    s_or_b64 vcc, vcc, s[{S_MSK}:{S_MSK+1}]
    s_or_b64 vcc, vcc, s[{S_MSK2}:{S_MSK2+1}]
    s_cmp_lg_u64 vcc, 0
    s_cselect_b32 s{S_T0}, 1, 0
    v_mov_b32 v{T+3}, s{S_T0}
    ds_write_b32 v{T+4}, v{T+3}
    """)
    pre, dd = wf_dma(24)
    for x in pre: A(x)
    A("s_nop 0")
    for tag, x in dd: q.issue(tag, x)
    A("s_waitcnt lgkmcnt(0)\ns_barrier")
    stamp(A, 'ex1')
    A(f"ds_read_b128 {vr(V_KF+8,4)}, v{T+5}")
    for t in range(5): A(f"ds_read_b32 v{V_KF+16+2*t}, v{V_XLR} offset:{t*256}")
    for t in range(5):
        for k in range(4):
            A(f"ds_read_b128 {vr(R+(t*4+k)*4,4)}, v{T+7} offset:{(t*4+k)*1024}")
    for p in (18, 19, 20):
        for tag, x in wf_loads(p): q.issue(tag, x)
    A(f"""
    s_waitcnt lgkmcnt(14)
    v_or3_b32 v{T}, v{V_KF+8}, v{V_KF+9}, v{V_KF+10}
    v_or_b32 v{T}, v{T}, v{V_KF+11}
    s_nop 0
    v_readfirstlane_b32 s{S_T1}, v{T}
    s_nop 0
    s_andn2_b32 s{S_T1}, s{S_T1}, s{S_FB}
    s_cmp_lg_u32 s{S_T1}, 0
    s_cbranch_scc1 L_fallback
    """)
    for t in range(5):
        A(f"v_add_f32 v{V_KF+16+2*t}, v{V_KF+16+2*t}, v{V_KF+t}")
    for t in range(5):
        A(f"v_rcp_f32 v{V_KF+16+2*t}, v{V_KF+16+2*t}")
    for t in range(5):
        A(f"s_waitcnt lgkmcnt({min(14, 16-4*t)})" if t < 4 else "s_waitcnt lgkmcnt(0)")
        inv = V_KF + 16 + 2*t
        for mm in range(2):
            for e in range(2):
                qq = 2*mm + e
                o = V_OK + t*16 + qq*4; r = R + (t*4+qq)*4
                A(f"v_pk_add_f32 {vr(o,2)}, {vr(o,2)}, {vr(r,2)}")
                A(f"v_pk_add_f32 {vr(o+2,2)}, {vr(o+2,2)}, {vr(r+2,2)}")
                A(f"v_pk_mul_f32 {vr(o,2)}, {vr(o,2)}, {vr(inv,2)} op_sel_hi:[1,0]")
                A(f"v_pk_mul_f32 {vr(o+2,2)}, {vr(o+2,2)}, {vr(inv,2)} op_sel_hi:[1,0]")
            o = V_OK + t*16 + mm*8
            A(f"v_cvt_pk_bf16_f32 v{o}, v{o}, v{o+1}")
            A(f"v_cvt_pk_bf16_f32 v{o+1}, v{o+2}, v{o+3}")
            A(f"v_cvt_pk_bf16_f32 v{o+2}, v{o+4}, v{o+5}")
            A(f"v_cvt_pk_bf16_f32 v{o+3}, v{o+6}, v{o+7}")
            A(f"s_add_u32 s{S_T1}, s{S_OB}, {t*32*4*1024 + mm*1024}")
            q.issue('st', f"buffer_store_dwordx4 {vr(o,4)}, v{V_L}, {sr(S_WS,4)}, s{S_T1} offen sc1")
    stamp(A, 'stores')
    A(f"s_cmp_eq_u32 s{S_CONS}, 0\ns_cbranch_scc1 L_nocons")
    todo = list(range(10, 18)) + list(range(25, 32))
    def wload(p):
        for tag, x in wf_loads(p): q.issue(tag, x)
    for p in todo[:NPRE]: wload(p)
    q.wait('st')
    A("s_barrier")
    A(f"""
    s_cmp_lg_u32 s{S_W}, 0
    s_cbranch_scc1 L_no_arr_o
    s_mov_b32 exec_hi, 0
    v_mov_b32 v{V_PV}, 1
    v_lshlrev_b32 v{V_PV+1}, 7, v{V_LANE}
    buffer_atomic_add v{V_PV}, v{V_PV+1}, {sr(S_WS,4)}, s{S_CO} offen
    s_mov_b64 exec, -1
    """)
    A.label("L_no_arr_o")
    stamp(A, 'arr')
    A(f"""
    v_mov_b32 v{V_PA}, s{S_PA0}
    v_and_b32 v{V_OO}, 15, v{V_LANE}
    s_mul_i32 s{S_T0}, s{S_W}, 0xc00
    v_writelane_b32 v{V_PA}, s{S_PA1}, 1
    v_add_u32 v{V_LRB}, s{S_T0}, v{V_L}
    s_lshl_b32 s{S_T0}, s{S_W}, 4
    v_add_u32 v{V_OO}, s{S_T0}, v{V_OO}
    v_mul_u32_u24 v{V_OO}, 1152, v{V_OO}
    v_lshrrev_b32 v{V_PV+1}, 4, v{V_LANE}
    v_lshlrev_b32 v{V_PV+1}, 3, v{V_PV+1}
    v_add_u32 v{V_OO}, v{V_OO}, v{V_PV+1}
    v_add_u32 v{V_LRA}, {hex(LE_BASE[0])}, v{V_LRB}
    v_add_u32 v{V_LRB}, {hex(LE_BASE[2])}, v{V_LRB}
    v_mov_b32 v{V_L9}, v{V_L}
    """)
    rest = todo[NPRE:]
    for p in rest[:NPOLL]: wload(p)
    A(f"s_cmp_lg_u32 s{S_W}, 0\ns_cbranch_scc1 L_poll_skip1")
    A(f"buffer_load_dword v{V_PV}, v{V_PA}, {sr(S_WS,4)}, 0 offen sc1")
    A.label("L_poll_skip1")
    n0 = q.n
    for p in rest[NPOLL:]: wload(p)
    nB = q.n - n0
    A(f"""
    s_cmp_lg_u32 s{S_W}, 0
    s_cbranch_scc1 L_poll_done
    s_mov_b32 s{S_T1}, {SPIN_MAX}
    s_waitcnt vmcnt({nB})
    """)
    A.label("L_poll_chk")
    A(f"""
    v_cmp_eq_u32 vcc, 32, v{V_PV}
    s_nop 1
    s_cmp_eq_u64 vcc, -1
    s_cbranch_scc1 L_poll_done
    s_sub_u32 s{S_T1}, s{S_T1}, 1
    s_cmp_eq_u32 s{S_T1}, 0
    s_cbranch_scc1 L_poll_done
    s_sleep 2
    buffer_load_dword v{V_PV}, v{V_PA}, {sr(S_WS,4)}, 0 offen sc1
    s_waitcnt vmcnt(0)
    s_branch L_poll_chk
    """)
    A.label("L_poll_done")
    A("s_barrier")
    stamp(A, 'sync')
    so = SOff(A, S_OO)
    def oload(i):
        reg, off = so.at(i)
        for tl in range(4):
            q.issue(('o', i), f"buffer_load_dwordx4 {vr(OB(i,tl),4)}, v{V_OA+tl}, {sr(S_WS,4)}, {reg} offen{off} sc1")
    for i in range(RING): oload(i)
    for i in range(32):
        q.wait(('o', i), extra=("lgkmcnt(0)" if i == 21 else ""))
        for nt in range(3):
            for tl in range(4):
                a = vr(ACCO(tl, nt), 4)
                A(mfma(a, WF(i, nt), vr(OB(i, tl), 4), a if i else "0"))
        if i + RING < 32: oload(i + RING)
        if 4 <= i < 8:
            e = i - 4
            for nt in range(3):
                A(f"ds_read_b128 {WF(21+e, nt)}, v{V_LRA if e < 2 else V_LRB} offset:{(e & 1)*0x3000 + nt*0x400}")
    stamp(A, 'oend')
    A(f"""
    s_mul_i32 s{S_T0}, s{S_W}, 12288
    v_add_u32 v{V_PV}, s{S_T0}, v{V_L9}
    s_mul_i32 s{S_T0}, s{S_W}, 3072
    v_add_u32 v{V_PV+1}, s{S_T0}, v{V_L9}
    s_nop 4
    """)
    for tl in range(4):
        for nt in range(3):
            A(f"ds_write_b128 v{V_PV}, {vr(ACCO(tl,nt),4)} offset:{(tl*3+nt)*1024}")
    A("s_waitcnt lgkmcnt(0)\ns_barrier")
    RR = V_RING
    for nt in range(3):
        for w in range(4):
            A(f"ds_read_b128 {vr(RR+(nt*4+w)*4,4)}, v{V_PV+1} offset:{w*12288 + nt*1024}")
    for nt in range(3):
        A(f"s_waitcnt lgkmcnt({8 - 4*nt})")
        a = RR + nt*16
        A(f"v_pk_add_f32 {vr(a,2)}, {vr(a,2)}, {vr(a+4,2)}")
        A(f"v_pk_add_f32 {vr(a+2,2)}, {vr(a+2,2)}, {vr(a+6,2)}")
        A(f"v_pk_add_f32 {vr(a+8,2)}, {vr(a+8,2)}, {vr(a+12,2)}")
        A(f"v_pk_add_f32 {vr(a+10,2)}, {vr(a+10,2)}, {vr(a+14,2)}")
        A(f"v_pk_add_f32 {vr(a,2)}, {vr(a,2)}, {vr(a+8,2)}")
        A(f"v_pk_add_f32 {vr(a+2,2)}, {vr(a+2,2)}, {vr(a+10,2)}")
        A(f"v_cvt_pk_bf16_f32 v{a}, v{a}, v{a+1}")
        A(f"v_cvt_pk_bf16_f32 v{a+1}, v{a+2}, v{a+3}")
        A(f"buffer_store_dwordx2 {vr(a,2)}, v{V_OO}, {sr(S_OUT,4)}, 0 offen offset:{nt*32}")
    if stamps: write_stamps(A)
    A("s_endpgm")
    A.label("L_nocons")
    A(f"""
    s_waitcnt vmcnt(0)
    s_barrier
    s_cmp_lg_u32 s{S_W}, 0
    s_cbranch_scc1 L_a_end
    s_mov_b32 exec_hi, 0
    v_mov_b32 v{V_PV}, 1
    v_lshlrev_b32 v{V_PV+1}, 7, v{V_LANE}
    buffer_atomic_add v{V_PV}, v{V_PV+1}, {sr(S_WS,4)}, s{S_CO} offen
    s_waitcnt vmcnt(0)
    s_endpgm
    """)
    A.label("L_wspin")
    A(f"s_mov_b32 s{S_T1}, {SPIN_MAX}")
    A.label("L_wspin_loop")
    A(f"""
    s_sleep 4
    buffer_load_dword v{V_POLL}, off, {sr(S_DBG,4)}, 0 sc1
    s_waitcnt vmcnt(0)
    v_readfirstlane_b32 s{S_T0}, v{V_POLL}
    s_sub_u32 s{S_T1}, s{S_T1}, 1
    s_cmp_eq_u32 s{S_T1}, 0
    s_cbranch_scc1 L_wok
    s_cmp_lg_u32 s{S_T0}, 256
    s_cbranch_scc1 L_wspin_loop
    s_branch L_wok
    """)

RT_MODE = True
STSET = os.environ.get('STSET', 'main')
STAMP_SETS = {
  'main': {'start':0, 'p1s':1, 'p1e':2, 'loops':3, 'loope':4, 'stores':5, 'arr':6, 'sync':7, 'oend':8},
  'startup': {'start':0, 'dma0':1, 'dma1':2, 'dma2':3, 'p1s':4, 'first':5, 'c6':6, 'c7':7, 'p1e':8},
  'pre': {'start':0, 'p1e':1, 'qw':2, 'qbar':3, 'qk0':4, 'loops':5, 'loope':6, 'ex1':7, 'stores':8},
}
STAMPS_ON = False
def stamp(A, name):
    if not STAMPS_ON: return
    if isinstance(name, int): k = name
    else:
        k = STAMP_SETS[STSET].get(name)
        if k is None: return
    A(f"{'s_memrealtime' if RT_MODE else 's_memtime'} s[{S_ST+2*k}:{S_ST+2*k+1}]")

STAMP_BASE = 0x4000000
def write_stamps(A):
    A("s_waitcnt vmcnt(0)")
    stamp(A, 9)
    A("s_waitcnt lgkmcnt(0)")
    for k in range(10): A(f"v_mov_b32 v{32+k}, s{S_ST+2*k}")
    A(f"""
    v_mov_b32 v42, s2
    v_mov_b32 v43, s{S_FB}
    s_lshl_b32 s{S_T0}, s2, 2
    s_add_u32 s{S_T0}, s{S_T0}, s{S_W}
    s_lshl_b32 s{S_T0}, s{S_T0}, 6
    s_add_u32 s{S_T0}, s{S_T0}, {hex(STAMP_BASE)}
    v_mov_b32 v44, s{S_T0}
    s_mov_b64 exec, 1
    buffer_store_dwordx4 v[32:35], v44, {sr(S_WS,4)}, 0 offen
    buffer_store_dwordx4 v[36:39], v44, {sr(S_WS,4)}, 0 offen offset:16
    buffer_store_dwordx4 v[40:43], v44, {sr(S_WS,4)}, 0 offen offset:32
    s_waitcnt vmcnt(0)
    """)

KN = "standalone__gqa_block_cached__near_ridge_kernel"
TOUCH = int(os.environ.get('TOUCH', 0))
V_TCH = 32
def touch_ops(A):
    T = V_TCH
    A(f"""
    s_and_b32 s3, s{S_SLOT}, 7
    s_lshl_b32 s3, s3, 2
    s_add_u32 s3, s3, s{S_W}
    s_mul_i32 s3, s3, {5*1152}
    v_mul_u32_u24 v{T}, 52, v{V_LANE}
    v_lshrrev_b32 v{T}, 8, v{T}
    v_mul_u32_u24 v{T+1}, 5, v{T}
    v_sub_u32 v{T+1}, v{V_LANE}, v{T+1}
    v_lshlrev_b32 v{T+1}, 7, v{T+1}
    v_mul_u32_u24 v{T}, 1152, v{T}
    v_add_u32 v{T}, v{T}, v{T+1}
    s_add_u32 s3, s3, {4*128}
    s_mov_b32 exec_lo, 0x1ffffff
    s_mov_b32 exec_hi, 0
    buffer_load_dword a240, v{T}, {sr(S_X,4)}, s3 offen
    s_mov_b64 exec, -1
    s_lshr_b32 s3, s{S_SLOT}, 3
    s_lshl_b32 s3, s3, 2
    s_add_u32 s3, s3, s{S_W}
    s_mul_i32 s3, s3, {20*8192}
    s_add_u32 s3, s3, {256*8192}
    v_lshrrev_b32 v{T+2}, 1, v{V_LANE}
    v_lshlrev_b32 v{T+2}, 13, v{T+2}
    v_and_b32 v{T+3}, 1, v{V_LANE}
    v_lshlrev_b32 v{T+3}, 7, v{T+3}
    v_add_u32 v{T+2}, v{T+2}, v{T+3}
    s_mov_b32 exec_hi, 0xff
    buffer_load_dword a241, v{T+2}, {sr(S_WQ,4)}, s3 offen
    s_mov_b64 exec, -1
    """)
FILL_PER_DMA = int(os.environ.get('FPD', 10))
def kernel(A, stamps=False):
    A(f""".text
    .globl {KN}
    .p2align 8
    .type {KN},@function""")
    A.label(KN)
    A(f"s_mov_b32 s{S_FB}, 0")
    A.label("L_restart")
    late = setup_ids(A, "L_a_end")
    stamp(A, 'start')
    late2 = setup_dma_addrs(A)
    F = Asm()
    for x in late2 + late: F(x)
    setup_read_addrs(F)
    F(f"s_mov_b32 s{S_SPM}, 0x63")
    wof_addr_setup(F)
    phase_o_setup(F)
    zero_state(F, acc=False, nm=False)
    wof_dma_setup(F)
    fill = list(F.lines)
    q = VCount()
    def emit_fill(n):
        k = 0
        while fill and (k < n or fill[0].startswith(("s_addc", "s_subb", "s_cselect"))):
            x = fill.pop(0); A(x); k += 1
            if x.startswith("buffer_"): q.note('misc')
        if k == 0 and n == 1: A("s_nop 0")
    stamp(A, 'dma0')
    for c in range(4):
        for ops, tag in ((xdma_ops(bu(c)), ('x', c)), (wdma_ops(bu(c)), ('wq', c))):
            for pre, d in ops:
                if pre: A(pre); emit_fill(1)
                A(d); q.note(tag)
                if c or tag[0] == 'wq': emit_fill(FILL_PER_DMA)
            for x in (xadv() if tag[0] == 'x' else wadv()): A(x)
        if c == 0: stamp(A, 'dma1')
    if TOUCH:
        T = V_X
        tl = Asm(); touch_ops(tl)
        for x in tl.lines:
            A(x)
            if x.startswith("buffer_"): q.note('misc')
    stamp(A, 'dma2')
    emit_fill(10000)
    stamp(A, 'p1s')
    p1(A, q)
    stamp(A, 'p1e')
    q_exchange(A)
    A(f"s_cmp_lg_u32 s{S_FB}, 0\ns_cbranch_scc1 L_fb_max")
    A.label("L_qk0")
    qk0(A)
    stamp(A, 'loops')
    A(".p2align 6")
    A.label("L_loop")
    i0 = len(A.lines)
    for u in range(4):
        step(A, (1 + u) & 3, last_in_loop=(u == 3), loop_label="L_loop")
    i1 = len(A.lines)
    for p in check_hazards(A.lines[i0:i1]*2, "loop"): print("HAZARD", p)
    j0 = len(A.lines)
    qt = tail_steps(A)
    stamp(A, 'loope')
    epilogue(A, stamps, qt)
    A.label("L_a_end")
    A("s_endpgm")
    special_blocks(A)
    fallback(A)

KC = "gqa_probe_kernel"
def kernel_c(A, offa, offb, mult=16):
    A(f""".text
    .globl {KC}
    .p2align 8
    .type {KC},@function""")
    A.label(KC)
    A(f"""
    s_load_dwordx2 s[8:9], s[0:1], 56
    s_cmp_ge_u32 s2, 1
    s_cbranch_scc1 L_c_end
    s_memrealtime s[20:21]
    s_waitcnt lgkmcnt(0)
    s_add_u32 s10, s8, {hex(offa)}
    s_addc_u32 s11, s9, 0
    s_add_u32 s12, s8, {hex(offb)}
    s_addc_u32 s13, s9, 0
    s_load_dword s14, s[10:11], 0
    s_load_dword s15, s[12:13], 0
    s_waitcnt lgkmcnt(0)
    s_sub_u32 s14, s15, s14
    s_min_u32 s14, s14, 20000
    s_mul_i32 s14, s14, {mult}
    """)
    A.label("L_c_loop")
    A(f"""
    s_memrealtime s[22:23]
    s_waitcnt lgkmcnt(0)
    s_sub_u32 s16, s22, s20
    s_cmp_lt_u32 s16, s14
    s_cbranch_scc1 L_c_loop
    """)
    A.label("L_c_end")
    A("s_endpgm")

def descriptor(name, vgpr, accum, sgpr=102):
    return f""".amdhsa_kernel {name}
    .amdhsa_next_free_vgpr {vgpr}
    .amdhsa_next_free_sgpr {sgpr}
    .amdhsa_accum_offset {accum}
    .amdhsa_group_segment_fixed_size 0
    .amdhsa_kernarg_size 64
    .amdhsa_user_sgpr_count 2
    .amdhsa_user_sgpr_kernarg_segment_ptr 1
    .amdhsa_system_sgpr_workgroup_id_x 1
    .end_amdhsa_kernel"""

HEADER = """; Kernarg layout for this problem (64 bytes, ptrs only, base s[0:1]):
;   offset  24: d_in[3] wq  shape=(576, 4096) dtype=bfloat16 strides=(8192, 2) contiguous=True
"""

def gen(stamps=False, probe=None):
    global STAMPS_ON
    STAMPS_ON = bool(stamps)
    A = Asm()
    kernel(A, stamps)
    if probe: kernel_c(A, *probe)
    A('.section .rodata,"a"\n.p2align 6')
    if probe:
        A(descriptor(KC, 32, 32)); A(".p2align 6")
    A(descriptor(KN, 512, 256))
    for p in check_hazards(A.lines, "all"): print("HAZARD", p)
    hdr = HEADER
    if probe:
        hdr += f"; @launch kernel={KN} grid=(256,1,1) block=(256,1,1) lds={LDS_A}\n"
        hdr += f"; @launch kernel={KC} grid=(1,1,1) block=(64,1,1) lds=0\n"
    else:
        hdr += f"; @launch grid=(256,1,1) block=(256,1,1) lds={LDS_A}\n"
    return hdr + '.amdgcn_target "amdgcn-amd-amdhsa--gfx950"\n' + A.text()

if __name__ == "__main__":
    import sys
    from hiprt import add_meta
    mode = sys.argv[1] if len(sys.argv) > 1 else ""
    if mode == "probe":
        a = lambda k, wg=0: STAMP_BASE + wg*256 + 4*k
        P = {"p1": (a(0), a(2)), "pre": (a(2), a(3)), "loop": (a(3), a(4)), "epi": (a(4), a(5)), "arr": (a(5), a(6)),
             "sync": (a(6), a(7)), "oloop": (a(7), a(8)), "fin": (a(8), a(9))}
        for n, pr in P.items():
            open(f"../cdna_kernels/probe_{n}.s", "w").write(gen(1, pr))
        print("probes written"); sys.exit(0)
    if mode == "stamps":
        open(os.environ.get('OUT', "fused_st.s"), "w").write(add_meta(gen(1), [(KN, 512, 256)]))
    elif mode == "cyc":
        RT_MODE = False
        open(os.environ.get('OUT', "fused_cyc.s"), "w").write(add_meta(gen(1), [(KN, 512, 256)]))
    else:
        open(os.environ.get('OUT', "fused.s"), "w").write(gen(0))
    print("written")
```

```python
from asmlib import *
import struct, math

KA = "standalone__gqa_block_cached__near_ridge_kernel"
KB = "gqa_oproj_kernel"

V_KD0, V_KD1, V_VD0, V_VD1 = 1, 2, 3, 4
V_KR = 5
V_VR = 9
V_LANE = 17
V_XD0, V_XD1 = 18, 19
V_WD = 20
V_XR = 21
V_WR = 23
V_QW = 27
V_T = 28
V_S = 32
V_NM = 112
V_OK = 132
V_KF = 212
V_ONE = 244
V_X = 248
A_OS = 0
A_L = 80
A_VF = 100
A_Q = 132

def S(sig, t, a, r=0): return V_S + sig*40 + t*8 + a*4 + r
def NM(t): return V_NM + 4*t
def QF(t, s): return A_Q + (t*4 + s)*4
def KF(a, s): return V_KF + (a*4 + s)*4
def VF(db): return A_VF + db*4
def O(t, idx):
    return vr(V_OK + t*16 + idx*4, 4) if idx < 4 else ar(A_OS + t*16 + (idx-4)*4, 4)
def L(t): return A_L + 4*t
def ACC(t, d): return V_S + (t*4 + d)*4
def PA(p, d): return V_KF + p*16 + d*4
def PB(p, t): return A_Q + p*20 + t*4

S_K = 12; S_V = 16; S_WS = 20
S_W, S_I, S_J, S_M0 = 24, 25, 26, 27
S_KO0, S_KO1, S_VO0, S_VO1 = 28, 29, 30, 31
S_CNT = 32
S_B, S_H = 33, 34
S_T0, S_T1 = 35, 36
S_X = 40
S_WQ = 44
S_XO = 48
S_WO = 53
S_MX = 57
S_FB = 58
S_SC = 60
S_ST = 64
S_SLOT, S_XCD = 37, 38
S_CO = 39
S_MSK = 62
S_DBG = 84
S_OUT = 88
S_WOR = 92
S_MSK2 = 10
S_SPM = 101
S_WFS = 96
S_OO, S_OW, S_OW2, S_PA0, S_PA1, S_CONS = 4, 5, 6, 7, 8, 9
S_OB = 59
V_POLL = 31
V_WA = 28
V_WB = 29
V_L16 = 30
V_XR2 = 112
V_WR2 = 116
V_RWA, V_RWB = 254, 255
A_WF = 212
WOF = 0x1000000
CNTB = 0x2000000
RAW0, RAW1 = 0x20000, 0x24000
RAWB = 0x2400

LDS_K = 0; LDS_V = 0x10000; LDS_SP = 0x20000
HEAD_BYTES = 2048*128*2
PBUF = [0x4000 + u*0x9000 for u in range(4)]
XB = PBUF
WQB = [b + 0x5000 for b in PBUF]
def bu(c): return (c + 3) & 3
QIMG = 0x1E000
LDS_A = 163840

def f32hex(x): return hex(struct.unpack("<I", struct.pack("<f", x))[0])
SCALE = math.log2(math.e) / math.sqrt(128.0)
T_HI = 2.0**40
T_LO = 2.0**-40

def mfma(d, a, b, c): return f"v_mfma_f32_16x16x32_bf16 {d}, {a}, {b}, {c}"

def qk_mfma(sig, g):
    a = g // 20; s = (g % 20) // 5; t = g % 5
    d = vr(S(sig, t, a), 4)
    c = d if s else vr(NM(t), 4)
    return mfma(d, vr(KF(a, s), 4), ar(QF(t, s), 4), c)
def pv_mfma(sigp, idx):
    db = idx // 5; t = idx % 5
    p = vr(S(sigp, t, 0), 4)
    if db < 8: return mfma(O(t, db), ar(VF(db), 4), p, O(t, db))
    return mfma(ar(L(t), 4), vr(V_ONE, 4), p, ar(L(t), 4))

def exp_op(sig, t, a, r): return f"v_exp_f32 {vr(S(sig,t,a,r))}, {vr(S(sig,t,a,r))}"
def cvt_op(sig, t, a, h):
    return f"v_cvt_pk_bf16_f32 {vr(S(sig,t,0,2*a+h))}, {vr(S(sig,t,a,2*h))}, {vr(S(sig,t,a,2*h+1))}"
def kread(slot, a, s): return f"ds_read_b128 {vr(KF(a,s),4)}, {vr(V_KR+s)} offset:{slot*16384 + a*4096}"
def vread(slot, db, hf): return f"ds_read_b64_tr_b16 {ar(VF(db)+2*hf,2)}, {vr(V_VR+db)} offset:{slot*16384 + hf*4096}"

import os
KV_AUX = os.environ.get("KV_AUX", " nt")
X_AUX = os.environ.get("X_AUX", "")
WQ_AUX = os.environ.get("WQ_AUX", "")
WO_AUX = os.environ.get("WO_AUX", "")
def dma_ops(kind, slot, grp):
    base = (LDS_K if kind == 'K' else LDS_V) + slot*16384 + grp*8192
    srd = sr(S_K if kind == 'K' else S_V, 4)
    so = sr((S_KO0 if kind == 'K' else S_VO0) + grp)
    v0, v1 = (V_KD0, V_KD1) if kind == 'K' else (V_VD0, V_VD1)
    return (f"s_add_u32 m0, {sr(S_M0)}, {hex(base)}",
            [f"buffer_load_dwordx4 {vr(v0)}, {srd}, {so} offen{KV_AUX} lds",
             f"buffer_load_dwordx4 {vr(v1)}, {srd}, {so} offen offset:1024{KV_AUX} lds"])

def emit_gaps(A, mf, sc, ve):
    for g in range(len(mf)):
        A(mf[g])
        assert len(sc[g]) <= 1, (g, sc[g])
        for x in sc[g]: A(x)
        for x in ve[g]: A(x)

def step(A, n4, last_in_loop=False, loop_label=None, tail=None):
    sig = n4 & 1; sp = 1 - sig
    NG = 85
    sc = [[] for _ in range(NG)]
    ve = [[] for _ in range(NG)]
    for t in range(5):
        for r in range(4): ve[8*t + 2*r].append(exp_op(sp, t, 1, r))
    vslot = (n4 - 1) & 3
    vr_ops = [vread(vslot, db, hf) for db in range(8) for hf in range(2)]
    k = 0
    for g in range(1, 40, 2):
        if g % 4 == 1:
            if k < 16:
                ve[g].append(vr_ops[k]); k += 1
                if k < 16: ve[g].append(vr_ops[k]); k += 1
        else:
            if k < 16: ve[g].append(vr_ops[k]); k += 1
            t = g // 8; h = (g % 8) // 4
            ve[g].append(cvt_op(sp, t, 1, h))
    assert k == 16
    for t in range(5):
        for r in range(4): ve[40 + 8*t + 2*r].append(exp_op(sig, t, 0, r))
    kslot = (n4 + 1) & 3
    kr_ops = [kread(kslot, a, s) for a in range(2) for s in range(4)]
    if tail and not tail['kread']: kr_ops = []
    k = 0
    for g in range(43, 80, 4):
        if k < len(kr_ops): ve[g].append(kr_ops[k]); k += 1
        t = (g - 40) // 8; h = ((g - 40) % 8) // 4
        ve[g].append(cvt_op(sig, t, 0, h))
    dk = n4 & 3; dv = (n4 + 2) & 3
    if not tail:
        groups = [dma_ops('K', dk, 0), dma_ops('K', dk, 1), dma_ops('V', dv, 0), dma_ops('V', dv, 1)]
        dgaps = [25, 29, 33, 37, 41, 45, 49, 53]
        for q in range(4):
            m0, dd = groups[q]
            g0, g1 = dgaps[2*q], dgaps[2*q+1]
            assert not ve[g0] and not ve[g1], (g0, g1, ve[g0], ve[g1])
            sc[g0-1].append(m0)
            ve[g0].append(dd[0]); ve[g1].append(dd[1])
        sc[2].append(f"s_cmp_lt_u32 {sr(S_KO0)}, {hex(HEAD_BYTES)}")
        sc[3].append(f"s_cselect_b32 {sr(S_K+2)}, {hex(HEAD_BYTES)}, 0")
        sc[4].append(f"s_cmp_lt_u32 {sr(S_VO0)}, {hex(HEAD_BYTES)}")
        sc[5].append(f"s_cselect_b32 {sr(S_V+2)}, {hex(HEAD_BYTES)}, 0")
        sc[56].append(f"s_add_u32 {sr(S_KO0)}, {sr(S_KO0)}, 0x4000")
        sc[57].append(f"s_add_u32 {sr(S_KO1)}, {sr(S_KO1)}, 0x4000")
        sc[58].append(f"s_add_u32 {sr(S_VO0)}, {sr(S_VO0)}, 0x4000")
        sc[59].append(f"s_add_u32 {sr(S_VO1)}, {sr(S_VO1)}, 0x4000")
    sc[39].append("s_waitcnt lgkmcnt(0)")
    if last_in_loop:
        sc[82].append(f"s_sub_u32 {sr(S_CNT)}, {sr(S_CNT)}, 1")
    if not tail:
        A("s_waitcnt vmcnt(16) lgkmcnt(0)")
        A("s_barrier")
        mf = [qk_mfma(sig, g) if g < 40 else pv_mfma(sp, g - 40) for g in range(NG)]
        emit_gaps(A, mf, sc, ve)
    else:
        q = tail['q']
        q.wait(tail['wait'], extra="lgkmcnt(0)")
        A("s_barrier")
        if tail['vdma']:
            for grp, (g0, g1) in enumerate(((25, 29), (33, 37))):
                m0, dd = dma_ops('V', dv, grp)
                assert not ve[g0] and not ve[g1]
                sc[g0-1].append(m0)
                ve[g0].append(('v31', dd[0])); ve[g1].append(('v31', dd[1]))
        for g, ops in tail.get('xsc', {}).items(): sc[g] += ops
        for g, ops in tail.get('xve', {}).items():
            ve[g] += ops
            assert len(ve[g]) <= 2, (n4, g, ve[g])
        mf = [qk_mfma(sig, g) if g < 40 else pv_mfma(sp, g - 40) for g in range(NG)]
        emit_gaps_q(A, q, mf, sc, ve)
    if last_in_loop:
        A(f"s_bitcmp1_b32 {sr(S_SPM)}, {sr(S_CNT)}")
        A(f"s_cbranch_scc0 {loop_label}")
        A("s_branch L_special")
        A.label("L_loop_exit")

def emit_gaps_q(A, q, mf, sc, ve):
    for g in range(len(mf)):
        A(mf[g])
        assert len(sc[g]) <= 2, (g, sc[g])
        for x in sc[g]: A(x)
        for x in ve[g]:
            if isinstance(x, tuple): q.issue(x[0], x[1])
            else: A(x)

def special_blocks(A):
    A.label("L_special")
    A(f"""
    s_cmp_eq_u32 s{S_CNT}, 0
    s_cbranch_scc1 L_loop_exit
    s_cmp_eq_u32 s{S_CNT}, 1
    s_cbranch_scc1 L_sp_poll
    s_cmp_eq_u32 s{S_CNT}, 5
    s_cbranch_scc1 L_sp_arr
    """)
    wof_produce(A)
    A("s_branch L_loop")
    A.label("L_sp_arr")
    A(f"""
    s_cmp_lg_u32 s{S_W}, 0
    s_cbranch_scc1 L_loop
    s_mov_b64 exec, 1
    v_mov_b32 v{V_X}, 1
    buffer_atomic_add v{V_X}, off, {sr(S_DBG,4)}, 0
    s_mov_b64 exec, -1
    s_branch L_loop
    """)
    A.label("L_sp_poll")
    A(f"buffer_load_dword v{V_POLL}, off, {sr(S_DBG,4)}, 0 sc1")
    A("s_branch L_loop")

def setup_ids(A, endlabel):
    A(f"""
    s_load_dwordx4 s[4:7], s[0:1], 8
    s_load_dwordx2 s[8:9], s[0:1], 56
    s_load_dwordx2 s[{S_X}:{S_X+1}], s[0:1], 0
    s_load_dwordx2 s[{S_WQ}:{S_WQ+1}], s[0:1], 24
    s_load_dwordx2 s[{S_WOR}:{S_WOR+1}], s[0:1], 32
    s_load_dwordx2 s[{S_OUT}:{S_OUT+1}], s[0:1], 40
    s_load_dwordx2 s[{S_DBG}:{S_DBG+1}], s[0:1], 48
    s_cmp_ge_u32 s2, 256
    s_cbranch_scc1 {endlabel}
    v_lshrrev_b32 v{V_T}, 6, v0
    v_and_b32 v{V_LANE}, 63, v0
    v_readfirstlane_b32 s{S_W}, v{V_T}
    s_and_b32 s3, s2, 7
    s_lshr_b32 s10, s2, 3
    s_mov_b32 s{S_XCD}, s3
    s_mov_b32 s{S_SLOT}, s10
    s_and_b32 s11, s3, 1
    s_lshl_b32 s11, s11, 2
    s_lshr_b32 s{S_T0}, s10, 3
    s_add_u32 s{S_B}, s11, s{S_T0}
    s_lshr_b32 s11, s3, 1
    s_lshl_b32 s11, s11, 3
    s_and_b32 s{S_T0}, s10, 7
    s_add_u32 s{S_H}, s11, s{S_T0}
    s_lshr_b32 s{S_I}, s{S_W}, 1
    s_and_b32 s{S_J}, s{S_W}, 1
    s_lshl_b32 s{S_M0}, s{S_W}, 11
    s_mul_i32 s{S_MX}, s{S_W}, 5120
    s_lshl_b32 s11, s{S_B}, 4
    s_lshr_b32 s{S_T0}, s{S_H}, 1
    s_add_u32 s11, s11, s{S_T0}
    s_lshr_b32 s{S_KO0}, s11, 13
    s_lshl_b32 s{S_T0}, s11, 19
    s_mul_i32 s10, s{S_B}, 184320
    s_lshl_b32 s11, s{S_H}, 8
    s_waitcnt lgkmcnt(0)
    s_add_u32 s{S_X}, s{S_X}, s10
    s_addc_u32 s{S_X+1}, s{S_X+1}, 0
    s_mov_b32 s{S_X+2}, 184320
    s_mov_b32 s{S_X+3}, 0x20000
    s_add_u32 s{S_WQ}, s{S_WQ}, s11
    s_addc_u32 s{S_WQ+1}, s{S_WQ+1}, 0
    s_sub_u32 s{S_WQ+2}, {576*8192}, s11
    s_mov_b32 s{S_WQ+3}, 0x20000
    s_mov_b32 s3, s{S_T0}
    """)
    L = Asm()
    L(f"""
    s_add_u32 s{S_K}, s4, s3
    s_addc_u32 s{S_K+1}, s5, s{S_KO0}
    s_mov_b32 s{S_K+2}, {hex(HEAD_BYTES)}
    s_mov_b32 s{S_K+3}, 0x20000
    s_add_u32 s{S_V}, s6, s3
    s_addc_u32 s{S_V+1}, s7, s{S_KO0}
    s_mov_b32 s{S_V+2}, {hex(HEAD_BYTES)}
    s_mov_b32 s{S_V+3}, 0x20000
    s_mov_b32 s{S_WS}, s8
    s_mov_b32 s{S_WS+1}, s9
    s_mov_b32 s{S_WS+2}, 0x10000000
    s_mov_b32 s{S_WS+3}, 0x20000
    """)
    return L.lines

def setup_dma_addrs(A):
    T = V_X; L_ = V_LANE
    A(f"""
    v_lshrrev_b32 v{T}, 4, v{L_}
    v_and_b32 v{T+1}, 15, v{L_}
    v_lshrrev_b32 v{T+2}, 3, v{L_}
    v_and_b32 v{T+3}, 7, v{L_}
    s_mul_i32 s{S_T0}, s{S_W}, {40*1152}
    s_and_b32 s{S_T1}, s{S_W}, 1
    s_lshl_b32 s{S_T1}, s{S_T1}, 2
    v_mul_u32_u24 v{T+4}, 1152, v{T+2}
    v_add_u32 v{T+4}, s{S_T0}, v{T+4}
    v_xor_b32 v{T+5}, v{T+3}, v{T}
    v_xor_b32 v{T+5}, s{S_T1}, v{T+5}
    v_lshlrev_b32 v{T+6}, 4, v{T+5}
    v_add_u32 v{V_XD0}, v{T+4}, v{T+6}
    v_xor_b32 v{T+6}, 64, v{T+6}
    v_add_u32 v{V_XD1}, v{T+4}, v{T+6}
    """)
    A(f"""
    v_or_b32 v{T+4}, s{S_T1}, v{T}
    v_lshlrev_b32 v{T+4}, 1, v{T+4}
    v_xor_b32 v{T+4}, v{T+4}, v{T+1}
    v_lshlrev_b32 v{T+4}, 4, v{T+4}
    s_lshl_b32 s{S_T0}, s{S_W}, 3
    v_add_u32 v{T+5}, s{S_T0}, v{T}
    v_lshlrev_b32 v{T+6}, 13, v{T+5}
    v_add_u32 v{V_WD}, v{T+4}, v{T+6}
    """)
    for e in range(5): A(f"s_mov_b32 s{S_XO+e}, {e*8192 if e < 4 else 4*9216}")
    for e in range(4): A(f"s_mov_b32 s{S_WO+e}, {(e>>1)*32*8192 + (e&1)*(32768-1024)}")
    L = Asm()
    for e, (vk, vv) in enumerate([(V_KD0, V_VD0), (V_KD1, V_VD1)]):
        L(f"""
        v_add_u32 v{T+2}, {4*e}, v{T+5}
        v_and_b32 v{T+3}, 15, v{T+2}
        v_xor_b32 v{T+3}, v{T+3}, v{T+1}
        v_lshlrev_b32 v{T+3}, 4, v{T+3}
        v_lshlrev_b32 v{T+4}, 8, v{T+2}
        v_add_u32 v{vk}, v{T+3}, v{T+4}
        v_and_b32 v{T+3}, 7, v{T+2}
        v_lshlrev_b32 v{T+3}, 1, v{T+3}
        v_xor_b32 v{T+3}, v{T+3}, v{T+1}
        v_lshlrev_b32 v{T+3}, 4, v{T+3}
        v_add_u32 v{vv}, v{T+3}, v{T+4}
        """)
        if e:
            L(f"v_subrev_u32 v{vk}, 1024, v{vk}")
            L(f"v_subrev_u32 v{vv}, 1024, v{vv}")
    return L.lines

def xdma_ops(u):
    srd = sr(S_X, 4)
    out = []
    for e in range(5):
        m0 = None
        if e == 0: m0 = f"s_add_u32 m0, {sr(S_MX)}, {hex(XB[u])}"
        if e == 4: m0 = f"s_add_u32 m0, {sr(S_MX)}, {hex(XB[u] + 4096)}"
        v = V_XD0 if e % 2 == 0 else V_XD1
        off = f" offset:{e*1024}" if 0 < e < 4 else ""
        out.append((m0, f"buffer_load_dwordx4 {vr(v)}, {srd}, {sr(S_XO+e)} offen{off}{X_AUX} lds"))
    return out
def xadv(): return [f"s_add_u32 {sr(S_XO+e)}, {sr(S_XO+e)}, 128" for e in range(5)]
def wdma_ops(u):
    srd = sr(S_WQ, 4)
    out = []
    for e in range(4):
        m0 = f"s_add_u32 m0, {sr(S_M0)}, {hex(WQB[u] + (e>>1)*8192)}" if e % 2 == 0 else None
        off = " offset:1024" if e & 1 else ""
        out.append((m0, f"buffer_load_dwordx4 {vr(V_WD)}, {srd}, {sr(S_WO+e)} offen{off}{WQ_AUX} lds"))
    return out
def wadv(): return [f"s_add_u32 {sr(S_WO+e)}, {sr(S_WO+e)}, 0x80000" for e in range(4)]
def kvdma_ops(kind, tile_n, slot):
    out = []
    for grp in range(2):
        so = (S_KO0 if kind == 'K' else S_VO0) + grp
        m0, dd = dma_ops(kind, slot, grp)
        out.append(([f"s_mov_b32 s{so}, {hex(tile_n*16384 + grp*8192)}", m0], dd[0]))
        out.append(([], dd[1]))
    return out

def emit_plain(A, ops):
    for pre, d in ops:
        if pre:
            for x in (pre if isinstance(pre, list) else [pre]): A(x)
            A("s_nop 0")
        A(d)

def setup_read_addrs(A):
    T = V_X; L_ = V_LANE
    A(f"""
    v_lshrrev_b32 v{T}, 4, v{L_}
    v_and_b32 v{T+1}, 15, v{L_}
    """)
    A(f"""
    s_mul_i32 s{S_T0}, s{S_I}, {80*128}
    s_add_u32 s{S_T0}, s{S_T0}, {hex(XB[0])}
    v_lshrrev_b32 v{T+2}, 1, v{T+1}
    v_xor_b32 v{T+2}, v{T+2}, v{T}
    v_lshlrev_b32 v{T+2}, 4, v{T+2}
    v_lshlrev_b32 v{T+3}, 7, v{T+1}
    v_add_u32 v{T+3}, s{S_T0}, v{T+3}
    v_add_u32 v{V_XR}, v{T+2}, v{T+3}
    v_xor_b32 v{T+2}, 64, v{T+2}
    v_add_u32 v{V_XR+1}, v{T+2}, v{T+3}
    v_add_u32 v{V_XR2}, 0x12000, v{V_XR}
    v_add_u32 v{V_XR2+1}, 0x12000, v{V_XR+1}
    """)
    A(f"""
    v_lshrrev_b32 v{T+2}, 2, v{T+1}
    v_and_b32 v{T+3}, 1, v{T}
    v_lshlrev_b32 v{T+3}, 2, v{T+3}
    v_or_b32 v{T+3}, v{T+3}, v{T+2}
    v_lshlrev_b32 v{T+4}, 3, v{T}
    v_add_u32 v{T+4}, v{T+4}, v{T+2}
    v_lshlrev_b32 v{T+4}, 8, v{T+4}
    v_and_b32 v{T+5}, 3, v{L_}
    v_lshlrev_b32 v{T+5}, 3, v{T+5}
    v_add_u32 v{T+4}, v{T+4}, v{T+5}
    v_add_u32 v{T+4}, {hex(WQB[0])}, v{T+4}
    s_lshl_b32 s{S_T0}, s{S_J}, 2
    v_xor_b32 v{T+3}, s{S_T0}, v{T+3}
    """)
    for d in range(4):
        A(f"""
        v_xor_b32 v{T+5}, {d}, v{T+3}
        v_lshlrev_b32 v{T+5}, 5, v{T+5}
        v_add_u32 v{V_WR+d}, v{T+4}, v{T+5}
        v_add_u32 v{V_WR2+d}, 0x12000, v{V_WR+d}
        """)
    A(f"""
    s_mul_i32 s{S_T0}, s{S_I}, 20480
    s_lshl_b32 s{S_T1}, s{S_J}, 11
    s_add_u32 s{S_T0}, s{S_T0}, s{S_T1}
    s_add_u32 s{S_T0}, s{S_T0}, {hex(QIMG)}
    v_lshrrev_b32 v{T+2}, 1, v{T}
    v_lshlrev_b32 v{T+2}, 8, v{T+2}
    v_lshlrev_b32 v{T+3}, 4, v{T+1}
    v_add_u32 v{T+2}, v{T+2}, v{T+3}
    v_and_b32 v{T+3}, 1, v{T}
    v_lshlrev_b32 v{T+3}, 3, v{T+3}
    v_add_u32 v{T+2}, v{T+2}, v{T+3}
    v_add_u32 v{V_QW}, s{S_T0}, v{T+2}
    """)
    A(f"s_lshl_b32 s{S_T0}, s{S_J}, 13")
    for s in range(4):
        A(f"""
        v_add_u32 v{T+2}, {4*s}, v{T}
        v_xor_b32 v{T+2}, v{T+2}, v{T+1}
        v_lshlrev_b32 v{T+2}, 4, v{T+2}
        v_lshlrev_b32 v{T+3}, 8, v{T+1}
        v_add_u32 v{T+2}, v{T+2}, v{T+3}
        v_add_u32 v{V_KR+s}, s{S_T0}, v{T+2}
        """)
    A(f"""
    v_lshrrev_b32 v{T+2}, 2, v{T+1}
    v_lshlrev_b32 v{T+3}, 2, v{T}
    v_add_u32 v{T+2}, v{T+2}, v{T+3}
    v_and_b32 v{T+3}, 7, v{T+2}
    v_lshlrev_b32 v{T+2}, 8, v{T+2}
    v_and_b32 v{T+4}, 3, v{L_}
    v_lshlrev_b32 v{T+4}, 3, v{T+4}
    v_add_u32 v{T+2}, v{T+2}, v{T+4}
    s_add_u32 s{S_T0}, s{S_T0}, {hex(LDS_V)}
    v_add_u32 v{T+2}, s{S_T0}, v{T+2}
    s_lshl_b32 s{S_T1}, s{S_J}, 2
    v_xor_b32 v{T+3}, s{S_T1}, v{T+3}
    """)
    for idx in range(8):
        A(f"""
        v_xor_b32 v{T+4}, {idx}, v{T+3}
        v_lshlrev_b32 v{T+4}, 5, v{T+4}
        v_add_u32 v{V_VR+idx}, v{T+2}, v{T+4}
        """)
    A(f"""
    v_and_b32 v{T+2}, 3, v{L_}
    v_cmp_eq_u32 vcc, 0, v{T+2}
    v_mov_b32 v{T+3}, 0x3f803f80
    s_mov_b32 s{S_SC}, {f32hex(SCALE)}
    s_mov_b32 s{S_SC+1}, {f32hex(SCALE)}
    v_cndmask_b32 v{V_ONE}, 0, v{T+3}, vcc
    v_cndmask_b32 v{V_ONE+1}, 0, v{T+3}, vcc
    v_cndmask_b32 v{V_ONE+2}, 0, v{T+3}, vcc
    v_cndmask_b32 v{V_ONE+3}, 0, v{T+3}, vcc
    """)

def zero_state(A, acc=True, nm=True):
    if acc:
        for r in range(V_S, V_S+80, 2): A(f"v_mov_b64 {vr(r,2)}, 0")
    if nm:
        for r in range(V_NM, V_NM+20, 2): A(f"v_mov_b64 {vr(r,2)}, 0")
    for r in range(V_OK, V_OK+80, 2): A(f"v_mov_b64 {vr(r,2)}, 0")
    A("v_accvgpr_write_b32 a0, 0")
    A("s_nop 1")
    for r in range(1, 100): A(f"v_accvgpr_mov_b32 a{r}, a0")

def xread(u, kap, p, t):
    return f"ds_read_b128 {ar(PB(p,t),4)}, {vr((V_XR if u < 2 else V_XR2)+kap)} offset:{(u&1)*0x9000 + t*2048}"
def wread(u, kap, p, d, hf):
    return f"ds_read_b64_tr_b16 {vr(PA(p,d)+2*hf,2)}, {vr((V_WR if u < 2 else V_WR2)+d)} offset:{(u&1)*0x9000 + kap*8192 + hf*1024}"
def p1_reads(u, kap, p):
    g = [[xread(u, kap, p, 0)], [wread(u, kap, p, 0, 0), wread(u, kap, p, 0, 1)]]
    g += [[xread(u, kap, p, t)] for t in range(1, 5)]
    g += [[wread(u, kap, p, d, 0), wread(u, kap, p, d, 1)] for d in range(1, 4)]
    return g
def p1_mfma(p, g, czero=False):
    d = g // 5; t = g % 5
    a = vr(ACC(t, d), 4)
    return mfma(a, vr(PA(p, d), 4), ar(PB(p, t), 4), "0" if czero else a)

class VCount:
    def __init__(self): self.n = 0; self.last = {}
    def note(self, tag): self.n += 1; self.last[tag] = self.n
    def need(self, *tags): return self.n - max(self.last[t] for t in tags)

def p1_half(A, q, h, reads, dmas, advs, extra=None):
    p = h & 1
    sc = [[] for _ in range(20)]; ve = [[] for _ in range(20)]
    for k, grp in enumerate(reads): ve[k] = list(grp)
    n = len(dmas)
    gaps = [10, 12, 14, 16, 18][:n]
    assert n <= 5
    for (pre, d, tag), gg in zip(dmas, gaps):
        pre = [] if pre is None else (pre if isinstance(pre, list) else [pre])
        assert len(pre) <= 2
        for k, x in enumerate(pre):
            sc[gg - len(pre) + k].append(x)
        ve[gg].append(d); q.note(tag)
    k = 0
    for gg in range(0, 8):
        if k < len(advs) and not sc[gg]:
            sc[gg].append(advs[k]); k += 1
    assert k == len(advs)
    for gg, ops in (extra or {}).items():
        assert not any(o.startswith("buffer_") for o in ve[gg]), (gg, ve[gg])
        ve[gg] += ops
        assert len(ve[gg]) <= 2, (gg, ve[gg])
    mf = [p1_mfma(p, g, czero=(h == 0)) for g in range(20)]
    emit_gaps(A, mf, sc, ve)

def tagged(ops, tag): return [(pre, d, tag) for pre, d in ops]

def wof_dma_setup(A):
    T = V_X; L_ = V_LANE
    A(f"""
    s_lshr_b32 s10, s2, 1
    s_and_b32 s11, s2, 1
    s_mul_i32 s{S_T0}, s10, {32*1152}
    s_mul_i32 s{S_T1}, s11, 576
    s_add_u32 s{S_T0}, s{S_T0}, s{S_T1}
    s_add_u32 s{S_WOR}, s{S_WOR}, s{S_T0}
    s_addc_u32 s{S_WOR+1}, s{S_WOR+1}, 0
    s_sub_u32 s{S_WOR+2}, {4096*1152}, s{S_T0}
    s_mov_b32 s{S_WOR+3}, 0x20000
    v_lshrrev_b32 v{T}, 5, v{L_}
    v_and_b32 v{T+1}, 31, v{L_}
    v_lshlrev_b32 v{T+2}, 1, v{T}
    v_xor_b32 v{T+1}, v{T+1}, v{T+2}
    v_lshlrev_b32 v{T+1}, 4, v{T+1}
    s_lshl_b32 s{S_T0}, s{S_W}, 3
    v_add_u32 v{T}, s{S_T0}, v{T}
    v_mul_u32_u24 v{T}, 1152, v{T}
    v_add_u32 v{V_RWA}, v{T}, v{T+1}
    v_lshrrev_b32 v{T+2}, 2, v{L_}
    s_lshl_b32 s{S_T0}, s{S_J}, 4
    v_add_u32 v{T+2}, s{S_T0}, v{T+2}
    v_mul_u32_u24 v{T+2}, 1152, v{T+2}
    v_and_b32 v{T+3}, 3, v{L_}
    v_lshlrev_b32 v{T+3}, 4, v{T+3}
    v_add_u32 v{T+2}, v{T+2}, v{T+3}
    v_add_u32 v{V_RWB}, 512, v{T+2}
    """)

def wof_dma_issue(A):
    A(f"""
    s_mul_i32 s{S_T0}, s{S_I}, {RAW1-RAW0}
    s_mul_i32 s{S_T1}, s{S_J}, 4352
    s_add_u32 s{S_T0}, s{S_T0}, s{S_T1}
    s_add_u32 m0, s{S_T0}, {hex(RAW0)}
    """)
    for e in range(4):
        A(f"s_movk_i32 s{S_T1}, {e*1216}")
        off = f" offset:{e*1088}" if e else ""
        A(f"buffer_load_dwordx4 v{V_RWA}, {sr(S_WOR,4)}, s{S_T1} offen{off}{WO_AUX} lds")
    A(f"""
    s_mul_i32 s{S_T0}, s{S_J}, {RAW1-RAW0}
    s_add_u32 m0, s{S_T0}, {hex(RAW0+RAWB)}
    s_nop 0
    buffer_load_dwordx4 v{V_RWB}, {sr(S_WOR,4)}, 0 offen{WO_AUX} lds
    """)

def wof_addr_setup(A):
    T = V_X; L_ = V_LANE
    A(f"""
    v_lshrrev_b32 v{T}, 5, v{L_}
    v_mul_u32_u24 v{T}, 4352, v{T}
    v_lshrrev_b32 v{T+1}, 3, v{L_}
    v_and_b32 v{T+1}, 3, v{T+1}
    v_mul_u32_u24 v{T+1}, 1088, v{T+1}
    v_add_u32 v{T}, v{T}, v{T+1}
    v_lshrrev_b32 v{T+1}, 2, v{L_}
    v_and_b32 v{T+2}, 1, v{T+1}
    v_lshlrev_b32 v{T+3}, 9, v{T+2}
    v_add_u32 v{T}, v{T}, v{T+3}
    v_xor_b32 v{T+2}, s{S_W}, v{T+2}
    v_lshlrev_b32 v{T+2}, 5, v{T+2}
    v_add_u32 v{T}, v{T}, v{T+2}
    v_and_b32 v{T+2}, 3, v{L_}
    v_lshlrev_b32 v{T+2}, 3, v{T+2}
    v_add_u32 v{T}, v{T}, v{T+2}
    v_add_u32 v{V_WA}, {hex(RAW0)}, v{T}
    v_lshlrev_b32 v{T+1}, 6, v{T+1}
    v_add_u32 v{T+1}, v{T+1}, v{T+2}
    s_lshl_b32 s{S_T0}, s{S_J}, 5
    s_add_u32 s{S_T0}, s{S_T0}, {hex(RAW0+RAWB)}
    v_add_u32 v{V_WB}, s{S_T0}, v{T+1}
    v_lshlrev_b32 v{V_L16}, 4, v{L_}
    s_lshr_b32 s10, s2, 1
    s_and_b32 s11, s2, 1
    s_mul_i32 s11, s11, 18
    s_add_u32 s11, s11, s{S_W}
    s_lshl_b32 s11, s11, 7
    s_add_u32 s11, s11, s10
    s_lshl_b32 s11, s11, 10
    s_add_u32 s{S_WFS}, s11, {hex(WOF)}
    s_add_u32 s{S_WFS+1}, s{S_WFS}, 0x80000
    s_add_u32 s{S_WFS+2}, s{S_WFS+1}, 0x80000
    s_add_u32 s{S_WFS+3}, s{S_WFS+2}, 0x80000
    s_add_u32 s{S_WFS+4}, s{S_WFS+3}, 0x80000
    s_cmp_lt_u32 s{S_W}, 2
    s_cselect_b32 s{S_WFS+4}, s{S_WFS+4}, 0x10000000
    """)

def wof_produce(A):
    for e in range(5):
        dst = A_WF + 4*e
        for hf in range(2):
            if e < 4: A(f"ds_read_b64_tr_b16 {ar(dst+2*hf,2)}, v{V_WA} offset:{e*128 + hf*(RAW1-RAW0)}")
            else: A(f"ds_read_b64_tr_b16 {ar(dst+2*hf,2)}, v{V_WB} offset:{hf*(RAW1-RAW0)}")
    for e in range(5):
        A(f"s_waitcnt lgkmcnt({8 - 2*e})")
        A(f"buffer_store_dwordx4 {ar(A_WF+4*e,4)}, v{V_L16}, {sr(S_WS,4)}, s{S_WFS+e} offen sc1")

def phase_o_setup(A):
    A(f"""
    s_mul_i32 s10, s{S_SLOT}, 43
    s_lshr_b32 s10, s10, 8
    s_lshr_b32 s11, s{S_XCD}, 1
    s_mul_i32 s11, s11, 5
    s_add_u32 s11, s11, s10
    s_mul_i32 s10, s10, 6
    s_sub_u32 s10, s{S_SLOT}, s10
    s_and_b32 s{S_T0}, s{S_XCD}, 1
    s_mul_i32 s{S_T0}, s{S_T0}, 6
    s_add_u32 s10, s10, s{S_T0}
    s_lshl_b32 s{S_OO}, s11, 19
    s_mul_i32 s{S_OW}, s10, {3*131072}
    s_add_u32 s{S_OW}, s{S_OW}, {hex(WOF)}
    s_mul_i32 s{S_T0}, s11, {64*1152}
    s_mul_i32 s{S_T1}, s10, 96
    s_add_u32 s{S_T0}, s{S_T0}, s{S_T1}
    s_add_u32 s{S_OUT}, s{S_OUT}, s{S_T0}
    s_addc_u32 s{S_OUT+1}, s{S_OUT+1}, 0
    s_sub_u32 s{S_OUT+2}, {1280*1152}, s{S_T0}
    s_mov_b32 s{S_OUT+3}, 0x20000
    s_mov_b32 s{S_DBG+2}, 256
    s_mov_b32 s{S_DBG+3}, 0x20000
    s_cmp_lt_u32 s{S_SLOT}, 30
    s_cselect_b32 s{S_CONS}, 1, 0
    s_lshl_b32 s11, s11, 2
    """)
    def caddr(dst, b):
        A(f"""
        s_lshl_b32 s{S_T0}, s{b}, 5
        s_add_u32 s{S_T0}, s{S_T0}, s{S_SLOT}
        s_lshl_b32 s{S_T0}, s{S_T0}, 7
        s_add_u32 s{dst}, s{S_T0}, {hex(CNTB)}
        """)
    A(f"s_mul_i32 s10, s11, 103\ns_lshr_b32 s10, s10, 10")
    caddr(S_PA0, 10)
    A(f"s_add_u32 s11, s11, 3\ns_mul_i32 s10, s11, 103\ns_lshr_b32 s10, s10, 10")
    caddr(S_PA1, 10)
    A(f"s_lshl_b32 s{S_CO}, s{S_B}, 12\ns_add_u32 s{S_CO}, s{S_CO}, {hex(CNTB)}")
    A(f"""
    s_lshl_b32 s10, s2, 7
    s_add_u32 s10, s10, {hex(CNTB)}
    s_cmp_lg_u32 s{S_FB}, 0
    s_cselect_b32 s10, 0x10000000, s10
    v_and_b32 v{V_X}, 31, v{V_LANE}
    v_lshlrev_b32 v{V_X}, 2, v{V_X}
    v_mov_b32 v{V_X+1}, 0
    buffer_store_dword v{V_X+1}, v{V_X}, {sr(S_WS,4)}, s10 offen sc1
    """)
    A(f"""
    s_mul_i32 s{S_T0}, s{S_B}, 10
    s_mul_i32 s{S_T1}, s{S_I}, 5
    s_add_u32 s{S_T0}, s{S_T0}, s{S_T1}
    s_lshl_b32 s{S_T0}, s{S_T0}, 5
    s_add_u32 s{S_T0}, s{S_T0}, s{S_H}
    s_lshl_b32 s{S_T0}, s{S_T0}, 1
    s_add_u32 s{S_T0}, s{S_T0}, s{S_J}
    s_lshl_b32 s{S_OB}, s{S_T0}, 11
    """)

def p1(A, q):
    A(f"s_waitcnt vmcnt({q.need(('x',0), ('wq',0))})")
    A("s_barrier")
    stamp(A, 'first')
    for grp in p1_reads(bu(0), 0, 0):
        for x in grp: A(x)
    A("s_waitcnt lgkmcnt(0)")
    kv = {11: ('K', 0, 0), 12: ('K', 1, 1), 13: ('V', 0, 0), 14: ('K', 2, 2), 15: ('K', 3, 3), 16: ('V', 1, 1)}
    xadv_pending = wadv_pending = False
    for h in range(18):
        c = h >> 1
        if h == 12: stamp(A, 'c6')
        if h == 14: stamp(A, 'c7')
        dmas, advs = [], []
        if h & 1:
            if c + 4 <= 8: dmas = tagged(xdma_ops(bu(c + 4)), ('x', c + 4))
        else:
            if c >= 1 and c + 3 <= 8: dmas = tagged(wdma_ops(bu(c + 3)), ('wq', c + 3))
        if h in kv:
            kind, tile, slot = kv[h]
            assert not dmas
            dmas = tagged(kvdma_ops(kind, tile, slot), (kind, tile))
        if h >= 2 and not (h & 1) and (h - 1 >> 1) + 4 <= 7: advs = xadv()
        if h >= 3 and (h & 1) and (h - 1 >> 1) + 3 <= 7: advs = wadv()
        if h & 1: reads = p1_reads(bu(c + 1), 0, 0) if c < 8 else []
        else: reads = p1_reads(bu(c), 1, 1)
        extra = {k: [f"v_mov_b64 {vr(V_NM+2*k,2)}, 0"] for k in range(10)} if h == 17 else None
        p1_half(A, q, h, reads, dmas, advs, extra)
        if not (h & 1):
            if c < 8: A(f"s_waitcnt vmcnt({q.need(('x', c+1), ('wq', c+1))}) lgkmcnt(0)")
            else: A("s_waitcnt lgkmcnt(0)")
            A("s_barrier")
        elif c < 8: A("s_waitcnt lgkmcnt(0)")

def q_exchange(A):
    A("s_nop 7")
    for d in range(4):
        for t in range(5):
            a = ACC(t, d)
            A(f"v_pk_mul_f32 {vr(a,2)}, {vr(a,2)}, {sr(S_SC,2)}")
            A(f"v_pk_mul_f32 {vr(a+2,2)}, {vr(a+2,2)}, {sr(S_SC,2)}")
            A(f"v_cvt_pk_bf16_f32 {vr(a)}, {vr(a)}, {vr(a+1)}")
            A(f"v_cvt_pk_bf16_f32 {vr(a+1)}, {vr(a+2)}, {vr(a+3)}")
            A(f"ds_write_b64 {vr(V_QW)}, {vr(a,2)} offset:{t*4096 + (d>>1)*1024 + (d&1)*512}")
    A(f"""
    s_mul_i32 s{S_T0}, s{S_I}, 20480
    s_add_u32 s{S_T0}, s{S_T0}, {hex(QIMG)}
    v_lshlrev_b32 v{V_X}, 4, v{V_LANE}
    v_add_u32 v{V_X}, s{S_T0}, v{V_X}
    """)
    stamp(A, 'qw')
    A("s_waitcnt vmcnt(16) lgkmcnt(0)\ns_barrier")
    stamp(A, 'qbar')
    for t in range(5):
        for s in range(4):
            A(f"ds_read_b128 {ar(QF(t,s),4)}, v{V_X} offset:{(t*4+s)*1024}")

def qk0(A):
    for a in range(2):
        for s in range(4): A(kread(0, a, s))
    A("s_waitcnt lgkmcnt(0)")
    sc = [[] for _ in range(40)]; ve = [[] for _ in range(40)]
    k = 0
    for g in range(24, 40):
        t, r = k // 4, k % 4
        ve[g].append(exp_op(0, t, 0, r)); k += 1
    emit_gaps(A, [qk_mfma(0, g) for g in range(40)], sc, ve)
    stamp(A, 'qk0')
    for a in range(2):
        for s in range(4): A(kread(1, a, s))
    for r in range(4): A(exp_op(0, 4, 0, r))
    for t in range(5):
        A(cvt_op(0, t, 0, 0)); A(cvt_op(0, t, 0, 1))
    A("s_waitcnt lgkmcnt(0)\ns_barrier")
    emit_plain(A, kvdma_ops('K', 4, 0)); emit_plain(A, kvdma_ops('V', 2, 2))
    A(f"s_cmp_lg_u32 s{S_FB}, 0\ns_cbranch_scc1 L_no_raw")
    wof_dma_issue(A)
    A.label("L_no_raw")
    A(f"""
    s_mov_b32 s{S_KO0}, {hex(5*16384)}
    s_mov_b32 s{S_KO1}, {hex(5*16384+8192)}
    s_mov_b32 s{S_VO0}, {hex(3*16384)}
    s_mov_b32 s{S_VO1}, {hex(3*16384+8192)}
    s_mov_b32 s{S_CNT}, 7
    """)

def fallback(A):
    A.label("L_fallback")
    A(f"s_mov_b32 s{S_FB}, 1")
    A("s_waitcnt vmcnt(0) lgkmcnt(0)\ns_barrier\ns_branch L_restart")
    A.label("L_fb_max")
    VA, VW, VR_ = 31, 254, 255
    A("s_waitcnt vmcnt(0) lgkmcnt(0)\ns_barrier")
    for t in range(5):
        A(f"v_mov_b32 v{V_X+t}, 0xff800000")
    for r in range(V_NM, V_NM+20, 2): A(f"v_mov_b64 {vr(r,2)}, 0")
    A(f"s_mov_b32 s{S_K+2}, {hex(HEAD_BYTES)}\ns_mov_b32 s{S_V+2}, {hex(HEAD_BYTES)}")
    A(f"s_mov_b32 s{S_KO0}, 0\ns_mov_b32 s{S_KO1}, 0x2000")
    A.label("L_fb_loop")
    for grp in range(2):
        m0, dd = dma_ops('K', 0, grp)
        A(m0); A("s_nop 0"); A(dd[0]); A(dd[1])
    A("s_waitcnt vmcnt(0)\ns_barrier")
    for a in range(2):
        for s in range(4): A(kread(0, a, s))
    A("s_waitcnt lgkmcnt(0)\ns_barrier")
    for g in range(40): A(qk_mfma(0, g))
    A("s_nop 7")
    for t in range(5):
        s = [S(0, t, a, r) for a in range(2) for r in range(4)]
        for k in range(0, 8, 2):
            A(f"v_max3_f32 v{V_X+t}, v{s[k]}, v{s[k+1]}, v{V_X+t}")
    A(f"""
    s_add_u32 s{S_KO0}, s{S_KO0}, 0x4000
    s_add_u32 s{S_KO1}, s{S_KO1}, 0x4000
    s_cmp_lt_u32 s{S_KO0}, {hex(HEAD_BYTES)}
    s_cbranch_scc1 L_fb_loop
    """)
    for t in range(5):
        x = V_X + t; y = V_X + 5
        A(f"""
        v_mov_b32 v{y}, v{x}
        s_nop 1
        v_permlane32_swap_b32 v{x}, v{y}
        s_nop 1
        v_max_f32 v{x}, v{x}, v{y}
        v_mov_b32 v{y}, v{x}
        s_nop 1
        v_permlane16_swap_b32 v{x}, v{y}
        s_nop 1
        v_max_f32 v{x}, v{x}, v{y}
        """)
    A(f"""
    v_lshlrev_b32 v{VA}, 2, v{V_LANE}
    s_mul_i32 s{S_T0}, s{S_W}, 1280
    s_add_u32 s{S_T0}, s{S_T0}, {hex(LDS_SP)}
    v_add_u32 v{VW}, s{S_T0}, v{VA}
    s_xor_b32 s{S_T1}, s{S_W}, 1
    s_mul_i32 s{S_T1}, s{S_T1}, 1280
    s_add_u32 s{S_T1}, s{S_T1}, {hex(LDS_SP)}
    v_add_u32 v{VR_}, s{S_T1}, v{VA}
    """)
    for t in range(5): A(f"ds_write_b32 v{VW}, v{V_X+t} offset:{t*256}")
    A("s_waitcnt lgkmcnt(0)\ns_barrier")
    for t in range(5): A(f"ds_read_b32 v{V_S+t}, v{VR_} offset:{t*256}")
    A("s_waitcnt lgkmcnt(0)")
    for t in range(5):
        A(f"v_max_f32 v{V_X+t}, v{V_X+t}, v{V_S+t}")
        for r in range(4): A(f"v_sub_f32 v{NM(t)+r}, 0, v{V_X+t}")
    zero_state(A, acc=False, nm=False)
    emit_plain(A, kvdma_ops('K', 0, 0)); emit_plain(A, kvdma_ops('K', 1, 1)); emit_plain(A, kvdma_ops('V', 0, 0))
    emit_plain(A, kvdma_ops('K', 2, 2)); emit_plain(A, kvdma_ops('K', 3, 3)); emit_plain(A, kvdma_ops('V', 1, 1))
    A(f"s_mov_b32 s{S_SPM}, 0x03")
    A("s_waitcnt vmcnt(0)\ns_barrier\ns_branch L_qk0")

import os
EXP = os.environ.get('EXP', '')
NPRE = int(os.environ.get('NPRE', 6))
NPOLL = int(os.environ.get('NPOLL', 5))
RING = int(os.environ.get('RING', 6))
SPIN_MAX = 1 << 17

class VMQ:
    def __init__(self, A, limit=60):
        self.A = A; self.n = 0; self.last = {}; self.done = 0; self.limit = limit
    def note(self, tag, cnt):
        self.n += cnt; self.last[tag] = self.n
    def issue(self, tag, text):
        if self.n - self.done >= self.limit:
            keep = self.limit - 4
            self.A(f"s_waitcnt vmcnt({keep})"); self.done = self.n - keep
        self.A(text); self.n += 1; self.last[tag] = self.n
    def wait(self, *tags, extra=""):
        tgt = max(self.last[t] for t in tags)
        if tgt <= self.done:
            if extra: self.A(f"s_waitcnt {extra}")
            return
        N = self.n - tgt
        assert 0 <= N <= 63
        self.A(f"s_waitcnt vmcnt({N}) {extra}".strip()); self.done = tgt

V_OA = 1
V_OO = 5
V_PA = 6
V_PV = 7
V_XLW, V_XLR = 7, 8
V_LRA, V_LRB = 10, 11
V_D1, V_D2 = 28, 29
V_L = V_L16
V_L9 = 9
V_ACC = 12
V_RING = 60
V_WFV = 172
S_WFD = 40
def S_G(g): return 47 + g
S_LB = 55
LE_BASE = [0x22000, 0x25000, 0x14000, 0x17000]
assert V_RING + RING*16 <= V_WFV
def WF(p, nt):
    if p < 10: return ar((11 + p)*12 + nt*4, 4)
    if p < 21: return ar((p - 10)*12 + nt*4, 4)
    if p < 25: return ar((11 + p - 21)*12 + nt*4, 4)
    return vr(V_WFV + (p - 25)*12 + nt*4, 4)
def OB(i, tl): return V_RING + (i % RING)*16 + tl*4
def ACCO(tl, nt): return V_ACC + (tl*3 + nt)*4
def wf_loads(p):
    so = f"s{S_G(p >> 2)}" if p >> 2 else "0"
    off = f" offset:{(p & 3)*1024}" if p & 3 else ""
    return [(('w', p), f"buffer_load_dwordx4 {WF(p,nt)}, v{V_OA+nt}, {sr(S_WFD,4)}, {so} offen{off} sc1") for nt in range(3)]
def wf_dma(p):
    e = p - 21
    pre = [f"s_movk_i32 s{S_T1}, {p*1024}", f"s_add_u32 m0, s{S_LB}, {hex(LE_BASE[e])}"]
    v = [V_OA, V_D1, V_D2]
    return pre, [(('w', p), f"buffer_load_dwordx4 v{v[nt]}, {sr(S_WFD,4)}, s{S_T1} offen" + (f" offset:{nt*1024}" if nt else "") + " sc1 lds") for nt in range(3)]

class SOff:
    def __init__(self, A, reg): self.A = A; self.reg = reg; self.g = 0
    def at(self, i):
        g = i >> 2
        if g != self.g:
            self.A(f"s_add_u32 s{self.reg}, s{self.reg}, {(g - self.g)*4096}"); self.g = g
        return f"s{self.reg}", (f" offset:{(i & 3)*1024}" if i & 3 else "")

XL = LDS_SP
XF = LDS_SP + 5120

def place(dst, gaps, items):
    assert len(items) <= len(gaps), (len(items), len(gaps))
    for g, it in zip(gaps, items):
        dst.setdefault(g, []).extend(it if isinstance(it, list) else [it])

def tail_steps(A):
    T = V_X
    q = VMQ(A)
    q.note('s26', 8); q.note('s27', 8); q.note('s28', 8)
    A(f"""
    v_readfirstlane_b32 s{S_T0}, v{V_POLL}
    s_nop 0
    s_cmp_lg_u32 s{S_T0}, 256
    s_cbranch_scc1 L_wspin
    """)
    A.label("L_wok")
    xsc, xve = {}, {}
    place(xsc, range(41, 60), [
        [f"s_add_u32 s{S_WFD}, s{S_WS}, s{S_OW}", f"s_addc_u32 s{S_WFD+1}, s{S_WS+1}, 0"],
        [f"s_cmp_lg_u32 s{S_CONS}, 0", f"s_cselect_b32 s{S_WFD+2}, 0x60000, 0"],
        f"s_mov_b32 s{S_WFD+3}, 0x20000",
        f"s_mul_i32 s{S_LB}, s{S_W}, 0xc00",
        f"s_lshl_b32 s{S_T0}, s{S_W}, 15",
        ] + [f"s_movk_i32 s{S_G(g)}, {g*4096}" for g in range(1, 8)])
    place(xve, [45, 49, 53, 57], [
        [f"v_add_u32 v{V_OA}, s{S_T0}, v{V_L16}"],
        [f"v_add_u32 v{V_OA+1}, 0x20000, v{V_OA}", f"v_add_u32 v{V_OA+2}, 0x40000, v{V_OA}"],
        [f"v_add_u32 v{V_OA+3}, 0x60000, v{V_OA}", f"v_add_u32 v{V_D1}, {hex(0x20000-1024)}, v{V_OA}"],
        [f"v_add_u32 v{V_D2}, {hex(0x40000-2048)}, v{V_OA}", f"v_mov_b32 v{T+5}, {hex(XF)}"]])
    place(xsc, [60, 61, 64, 65, 68, 69], [
        f"s_lshl_b32 s{S_T0}, s{S_W}, 2", f"s_add_u32 s{S_T0}, s{S_T0}, {hex(XF)}",
        f"s_mul_i32 s{S_T0}, s{S_W}, 20480", f"s_xor_b32 s{S_T1}, s{S_W}, 1",
        f"s_mul_i32 s{S_T1}, s{S_T1}, 20480"])
    place(xve, [61, 65, 69], [
        f"v_mov_b32 v{T+4}, s{S_T0}",
        f"v_add_u32 v{T+6}, s{S_T0}, v{V_L16}",
        f"v_add_u32 v{T+7}, s{S_T1}, v{V_L16}"])
    step(A, 1, tail=dict(q=q, wait='s26', kread=True, vdma=True, xsc=xsc, xve=xve))
    xsc, xve = {}, {}
    slots = list(range(25, 85, 4))
    ops = wf_loads(7) + wf_loads(8) + wf_loads(9)
    place(xve, slots[:9], ops)
    for k, p in enumerate((21, 22)):
        pre, dd = wf_dma(p)
        g = slots[9 + 3*k]
        place(xsc, [g - 2, g - 1], pre)
        place(xve, slots[9 + 3*k: 12 + 3*k], dd)
    step(A, 2, tail=dict(q=q, wait='s27', kread=True, vdma=False, xsc=xsc, xve=xve))
    xsc, xve = {}, {}
    pre, dd = wf_dma(23)
    place(xsc, [23, 24], pre); place(xve, [25, 29, 33], dd)
    early = sum((wf_loads(p) for p in range(7)), [])
    n31 = 11
    place(xve, list(range(41, 85, 4)), early[:n31])
    place(xsc, [42, 43, 44, 46, 47, 48], [
        f"s_mul_i32 s{S_T0}, s{S_W}, 1280", f"s_add_u32 s{S_T0}, s{S_T0}, {hex(XL)}",
        f"s_xor_b32 s{S_T1}, s{S_W}, 1", f"s_mul_i32 s{S_T1}, s{S_T1}, 1280", f"s_add_u32 s{S_T1}, s{S_T1}, {hex(XL)}"])
    place(xve, [43, 47, 51], [
        f"v_lshlrev_b32 v{V_XLR}, 2, v{V_LANE}",
        f"v_add_u32 v{V_XLW}, s{S_T0}, v{V_XLR}",
        f"v_add_u32 v{V_XLR}, s{S_T1}, v{V_XLR}"])
    step(A, 3, tail=dict(q=q, wait='s28', kread=False, vdma=False, xsc=xsc, xve=xve))
    q.wait('v31', extra="lgkmcnt(0)")
    A("s_barrier")
    order = [4, 5, 6, 7, 0, 1, 2, 3]
    for db in order:
        for hf in range(2): A(vread(3, db, hf))
    for r in range(4): A(exp_op(1, 0, 1, r))
    A(cvt_op(1, 0, 1, 0)); A(cvt_op(1, 0, 1, 1))
    A("s_nop 1")
    rest = early[n31:]
    LV = V_KF
    def xw(t): return [f"ds_write_b128 v{T+6}, {O(t, 4+k)} offset:{(t*4+k)*1024}" for k in range(4)]
    for t in range(5):
        ve = [[] for _ in range(9)]; sc = [[] for _ in range(9)]
        if t < 4:
            for r in range(4): ve[r].append(exp_op(1, t+1, 1, r))
            ve[4].append(cvt_op(1, t+1, 1, 0)); ve[5].append(cvt_op(1, t+1, 1, 1))
        if t == 0:
            for k in range(8): sc[k].append(f"s_waitcnt lgkmcnt({14 - 2*k})")
        if t > 0:
            ve[0].append(f"v_accvgpr_read_b32 v{LV+t-1}, a{L(t-1)}")
            ve[2].append(f"ds_write_b32 v{V_XLW}, v{LV+t-1} offset:{(t-1)*256}")
            for k, w in enumerate(xw(t-1)): ve[[3, 5, 6, 8][k]].append(w)
        for g in (4, 7):
            if rest: ve[g].append(rest.pop(0))
        if t == 4:
            ve[1] += [f"v_max3_f32 v{T}, v{LV}, v{LV+1}, v{LV+2}", f"v_min3_f32 v{T+1}, v{LV}, v{LV+1}, v{LV+2}"]
            ve[4] += [f"v_add_f32 v{T+2}, v{LV}, v{LV+1}"]
            ve[7] += [f"v_add_f32 v{T+3}, v{LV+2}, v{LV+3}"]
        mf = [pv_mfma(1, 40 + t)] + [pv_mfma(1, db*5 + t) for db in order]
        emit_gaps_q(A, q, mf, sc, ve)
    assert not rest
    return q

def epilogue(A, stamps, q):
    T = V_X
    R = V_S
    LV = V_KF
    A(f"""
    v_accvgpr_read_b32 v{LV+4}, a{L(4)}
    s_mov_b32 s{S_T0}, {f32hex(T_HI)}
    s_mov_b32 s{S_T1}, {f32hex(T_LO)}
    v_max3_f32 v{T}, v{T}, v{LV+3}, v{LV+4}
    v_min3_f32 v{T+1}, v{T+1}, v{LV+3}, v{LV+4}
    v_add_f32 v{T+2}, v{T+2}, v{LV+4}
    ds_write_b32 v{V_XLW}, v{LV+4} offset:1024
    v_add_f32 v{T+2}, v{T+2}, v{T+3}
    v_cmp_nge_f32 vcc, s{S_T0}, v{T}
    v_cmp_nle_f32 s[{S_MSK}:{S_MSK+1}], s{S_T1}, v{T+1}
    v_cmp_u_f32 s[{S_MSK2}:{S_MSK2+1}], v{T+2}, v{T+2}
    """)
    for k in range(4): A(f"ds_write_b128 v{T+6}, {O(4, 4+k)} offset:{(16+k)*1024}")
    A(f"""
    s_or_b64 vcc, vcc, s[{S_MSK}:{S_MSK+1}]
    s_or_b64 vcc, vcc, s[{S_MSK2}:{S_MSK2+1}]
    s_cmp_lg_u64 vcc, 0
    s_cselect_b32 s{S_T0}, 1, 0
    v_mov_b32 v{T+3}, s{S_T0}
    ds_write_b32 v{T+4}, v{T+3}
    """)
    pre, dd = wf_dma(24)
    for x in pre: A(x)
    A("s_nop 0")
    for tag, x in dd: q.issue(tag, x)
    A("s_waitcnt lgkmcnt(0)\ns_barrier")
    stamp(A, 'ex1')
    A(f"ds_read_b128 {vr(V_KF+8,4)}, v{T+5}")
    for t in range(5): A(f"ds_read_b32 v{V_KF+16+2*t}, v{V_XLR} offset:{t*256}")
    for t in range(5):
        for k in range(4):
            A(f"ds_read_b128 {vr(R+(t*4+k)*4,4)}, v{T+7} offset:{(t*4+k)*1024}")
    for p in (18, 19, 20):
        for tag, x in wf_loads(p): q.issue(tag, x)
    A(f"""
    s_waitcnt lgkmcnt(14)
    v_or3_b32 v{T}, v{V_KF+8}, v{V_KF+9}, v{V_KF+10}
    v_or_b32 v{T}, v{T}, v{V_KF+11}
    s_nop 0
    v_readfirstlane_b32 s{S_T1}, v{T}
    s_nop 0
    s_andn2_b32 s{S_T1}, s{S_T1}, s{S_FB}
    s_cmp_lg_u32 s{S_T1}, 0
    s_cbranch_scc1 L_fallback
    """)
    for t in range(5):
        A(f"v_add_f32 v{V_KF+16+2*t}, v{V_KF+16+2*t}, v{V_KF+t}")
    for t in range(5):
        A(f"v_rcp_f32 v{V_KF+16+2*t}, v{V_KF+16+2*t}")
    for t in range(5):
        A(f"s_waitcnt lgkmcnt({min(14, 16-4*t)})" if t < 4 else "s_waitcnt lgkmcnt(0)")
        inv = V_KF + 16 + 2*t
        for mm in range(2):
            for e in range(2):
                qq = 2*mm + e
                o = V_OK + t*16 + qq*4; r = R + (t*4+qq)*4
                A(f"v_pk_add_f32 {vr(o,2)}, {vr(o,2)}, {vr(r,2)}")
                A(f"v_pk_add_f32 {vr(o+2,2)}, {vr(o+2,2)}, {vr(r+2,2)}")
                A(f"v_pk_mul_f32 {vr(o,2)}, {vr(o,2)}, {vr(inv,2)} op_sel_hi:[1,0]")
                A(f"v_pk_mul_f32 {vr(o+2,2)}, {vr(o+2,2)}, {vr(inv,2)} op_sel_hi:[1,0]")
            o = V_OK + t*16 + mm*8
            A(f"v_cvt_pk_bf16_f32 v{o}, v{o}, v{o+1}")
            A(f"v_cvt_pk_bf16_f32 v{o+1}, v{o+2}, v{o+3}")
            A(f"v_cvt_pk_bf16_f32 v{o+2}, v{o+4}, v{o+5}")
            A(f"v_cvt_pk_bf16_f32 v{o+3}, v{o+6}, v{o+7}")
            A(f"s_add_u32 s{S_T1}, s{S_OB}, {t*32*4*1024 + mm*1024}")
            q.issue('st', f"buffer_store_dwordx4 {vr(o,4)}, v{V_L}, {sr(S_WS,4)}, s{S_T1} offen sc1")
    stamp(A, 'stores')
    A(f"s_cmp_eq_u32 s{S_CONS}, 0\ns_cbranch_scc1 L_nocons")
    todo = list(range(10, 18)) + list(range(25, 32))
    def wload(p):
        for tag, x in wf_loads(p): q.issue(tag, x)
    for p in todo[:NPRE]: wload(p)
    q.wait('st')
    A("s_barrier")
    A(f"""
    s_cmp_lg_u32 s{S_W}, 0
    s_cbranch_scc1 L_no_arr_o
    s_mov_b32 exec_hi, 0
    v_mov_b32 v{V_PV}, 1
    v_lshlrev_b32 v{V_PV+1}, 7, v{V_LANE}
    buffer_atomic_add v{V_PV}, v{V_PV+1}, {sr(S_WS,4)}, s{S_CO} offen
    s_mov_b64 exec, -1
    """)
    A.label("L_no_arr_o")
    stamp(A, 'arr')
    A(f"""
    v_mov_b32 v{V_PA}, s{S_PA0}
    v_and_b32 v{V_OO}, 15, v{V_LANE}
    s_mul_i32 s{S_T0}, s{S_W}, 0xc00
    v_writelane_b32 v{V_PA}, s{S_PA1}, 1
    v_add_u32 v{V_LRB}, s{S_T0}, v{V_L}
    s_lshl_b32 s{S_T0}, s{S_W}, 4
    v_add_u32 v{V_OO}, s{S_T0}, v{V_OO}
    v_mul_u32_u24 v{V_OO}, 1152, v{V_OO}
    v_lshrrev_b32 v{V_PV+1}, 4, v{V_LANE}
    v_lshlrev_b32 v{V_PV+1}, 3, v{V_PV+1}
    v_add_u32 v{V_OO}, v{V_OO}, v{V_PV+1}
    v_add_u32 v{V_LRA}, {hex(LE_BASE[0])}, v{V_LRB}
    v_add_u32 v{V_LRB}, {hex(LE_BASE[2])}, v{V_LRB}
    v_mov_b32 v{V_L9}, v{V_L}
    """)
    rest = todo[NPRE:]
    for p in rest[:NPOLL]: wload(p)
    A(f"s_cmp_lg_u32 s{S_W}, 0\ns_cbranch_scc1 L_poll_skip1")
    A(f"buffer_load_dword v{V_PV}, v{V_PA}, {sr(S_WS,4)}, 0 offen sc1")
    A.label("L_poll_skip1")
    n0 = q.n
    for p in rest[NPOLL:]: wload(p)
    nB = q.n - n0
    A(f"""
    s_cmp_lg_u32 s{S_W}, 0
    s_cbranch_scc1 L_poll_done
    s_mov_b32 s{S_T1}, {SPIN_MAX}
    s_waitcnt vmcnt({nB})
    """)
    A.label("L_poll_chk")
    A(f"""
    v_cmp_eq_u32 vcc, 32, v{V_PV}
    s_nop 1
    s_cmp_eq_u64 vcc, -1
    s_cbranch_scc1 L_poll_done
    s_sub_u32 s{S_T1}, s{S_T1}, 1
    s_cmp_eq_u32 s{S_T1}, 0
    s_cbranch_scc1 L_poll_done
    s_sleep 2
    buffer_load_dword v{V_PV}, v{V_PA}, {sr(S_WS,4)}, 0 offen sc1
    s_waitcnt vmcnt(0)
    s_branch L_poll_chk
    """)
    A.label("L_poll_done")
    A("s_barrier")
    stamp(A, 'sync')
    so = SOff(A, S_OO)
    def oload(i):
        reg, off = so.at(i)
        for tl in range(4):
            q.issue(('o', i), f"buffer_load_dwordx4 {vr(OB(i,tl),4)}, v{V_OA+tl}, {sr(S_WS,4)}, {reg} offen{off} sc1")
    for i in range(RING): oload(i)
    for i in range(32):
        q.wait(('o', i), extra=("lgkmcnt(0)" if i == 21 else ""))
        for nt in range(3):
            for tl in range(4):
                a = vr(ACCO(tl, nt), 4)
                A(mfma(a, WF(i, nt), vr(OB(i, tl), 4), a if i else "0"))
        if i + RING < 32: oload(i + RING)
        if 4 <= i < 8:
            e = i - 4
            for nt in range(3):
                A(f"ds_read_b128 {WF(21+e, nt)}, v{V_LRA if e < 2 else V_LRB} offset:{(e & 1)*0x3000 + nt*0x400}")
    stamp(A, 'oend')
    A(f"""
    s_mul_i32 s{S_T0}, s{S_W}, 12288
    v_add_u32 v{V_PV}, s{S_T0}, v{V_L9}
    s_mul_i32 s{S_T0}, s{S_W}, 3072
    v_add_u32 v{V_PV+1}, s{S_T0}, v{V_L9}
    s_nop 4
    """)
    for tl in range(4):
        for nt in range(3):
            A(f"ds_write_b128 v{V_PV}, {vr(ACCO(tl,nt),4)} offset:{(tl*3+nt)*1024}")
    A("s_waitcnt lgkmcnt(0)\ns_barrier")
    RR = V_RING
    for nt in range(3):
        for w in range(4):
            A(f"ds_read_b128 {vr(RR+(nt*4+w)*4,4)}, v{V_PV+1} offset:{w*12288 + nt*1024}")
    for nt in range(3):
        A(f"s_waitcnt lgkmcnt({8 - 4*nt})")
        a = RR + nt*16
        A(f"v_pk_add_f32 {vr(a,2)}, {vr(a,2)}, {vr(a+4,2)}")
        A(f"v_pk_add_f32 {vr(a+2,2)}, {vr(a+2,2)}, {vr(a+6,2)}")
        A(f"v_pk_add_f32 {vr(a+8,2)}, {vr(a+8,2)}, {vr(a+12,2)}")
        A(f"v_pk_add_f32 {vr(a+10,2)}, {vr(a+10,2)}, {vr(a+14,2)}")
        A(f"v_pk_add_f32 {vr(a,2)}, {vr(a,2)}, {vr(a+8,2)}")
        A(f"v_pk_add_f32 {vr(a+2,2)}, {vr(a+2,2)}, {vr(a+10,2)}")
        A(f"v_cvt_pk_bf16_f32 v{a}, v{a}, v{a+1}")
        A(f"v_cvt_pk_bf16_f32 v{a+1}, v{a+2}, v{a+3}")
        A(f"buffer_store_dwordx2 {vr(a,2)}, v{V_OO}, {sr(S_OUT,4)}, 0 offen offset:{nt*32}")
    if stamps: write_stamps(A)
    A("s_endpgm")
    A.label("L_nocons")
    A(f"""
    s_waitcnt vmcnt(0)
    s_barrier
    s_cmp_lg_u32 s{S_W}, 0
    s_cbranch_scc1 L_a_end
    s_mov_b32 exec_hi, 0
    v_mov_b32 v{V_PV}, 1
    v_lshlrev_b32 v{V_PV+1}, 7, v{V_LANE}
    buffer_atomic_add v{V_PV}, v{V_PV+1}, {sr(S_WS,4)}, s{S_CO} offen
    s_waitcnt vmcnt(0)
    s_endpgm
    """)
    A.label("L_wspin")
    A(f"s_mov_b32 s{S_T1}, {SPIN_MAX}")
    A.label("L_wspin_loop")
    A(f"""
    s_sleep 4
    buffer_load_dword v{V_POLL}, off, {sr(S_DBG,4)}, 0 sc1
    s_waitcnt vmcnt(0)
    v_readfirstlane_b32 s{S_T0}, v{V_POLL}
    s_sub_u32 s{S_T1}, s{S_T1}, 1
    s_cmp_eq_u32 s{S_T1}, 0
    s_cbranch_scc1 L_wok
    s_cmp_lg_u32 s{S_T0}, 256
    s_cbranch_scc1 L_wspin_loop
    s_branch L_wok
    """)

RT_MODE = True
STSET = os.environ.get('STSET', 'main')
STAMP_SETS = {
  'main': {'start':0, 'p1s':1, 'p1e':2, 'loops':3, 'loope':4, 'stores':5, 'arr':6, 'sync':7, 'oend':8},
  'startup': {'start':0, 'dma0':1, 'dma1':2, 'dma2':3, 'p1s':4, 'first':5, 'c6':6, 'c7':7, 'p1e':8},
  'pre': {'start':0, 'p1e':1, 'qw':2, 'qbar':3, 'qk0':4, 'loops':5, 'loope':6, 'ex1':7, 'stores':8},
}
STAMPS_ON = False
def stamp(A, name):
    if not STAMPS_ON: return
    if isinstance(name, int): k = name
    else:
        k = STAMP_SETS[STSET].get(name)
        if k is None: return
    A(f"{'s_memrealtime' if RT_MODE else 's_memtime'} s[{S_ST+2*k}:{S_ST+2*k+1}]")

STAMP_BASE = 0x4000000
DBG_STAMPS = False
def write_stamps(A):
    A("s_waitcnt vmcnt(0)")
    stamp(A, 9)
    A("s_waitcnt lgkmcnt(0)")
    if DBG_STAMPS:
        A(f"s_not_b32 s{S_ST}, s{S_ST}")
        A("v_mov_b32 v32, 0")
        for k in range(10): A(f"v_writelane_b32 v32, s{S_ST+2*k}, {k}")
        A(f"""
        v_mbcnt_lo_u32_b32 v33, -1, 0
        v_lshlrev_b32 v33, 2, v33
        v_add_u32 v33, 4, v33
        s_mov_b32 exec_lo, 0x3ff
        s_mov_b32 exec_hi, 0
        buffer_atomic_umax v32, v33, {sr(S_DBG,4)}, 0 offen
        s_waitcnt vmcnt(0)
        """)
        return
    for k in range(10): A(f"v_mov_b32 v{32+k}, s{S_ST+2*k}")
    A(f"""
    v_mov_b32 v42, s2
    v_mov_b32 v43, s{S_FB}
    s_lshl_b32 s{S_T0}, s2, 2
    s_add_u32 s{S_T0}, s{S_T0}, s{S_W}
    s_lshl_b32 s{S_T0}, s{S_T0}, 6
    s_add_u32 s{S_T0}, s{S_T0}, {hex(STAMP_BASE)}
    v_mov_b32 v44, s{S_T0}
    s_mov_b64 exec, 1
    buffer_store_dwordx4 v[32:35], v44, {sr(S_WS,4)}, 0 offen
    buffer_store_dwordx4 v[36:39], v44, {sr(S_WS,4)}, 0 offen offset:16
    buffer_store_dwordx4 v[40:43], v44, {sr(S_WS,4)}, 0 offen offset:32
    s_waitcnt vmcnt(0)
    """)

KN = "standalone__gqa_block_cached__near_ridge_kernel"
TOUCH = int(os.environ.get('TOUCH', 0))
V_TCH = 32
def touch_ops(A):
    T = V_TCH
    A(f"""
    s_and_b32 s3, s{S_SLOT}, 7
    s_lshl_b32 s3, s3, 2
    s_add_u32 s3, s3, s{S_W}
    s_mul_i32 s3, s3, {5*1152}
    v_mul_u32_u24 v{T}, 52, v{V_LANE}
    v_lshrrev_b32 v{T}, 8, v{T}
    v_mul_u32_u24 v{T+1}, 5, v{T}
    v_sub_u32 v{T+1}, v{V_LANE}, v{T+1}
    v_lshlrev_b32 v{T+1}, 7, v{T+1}
    v_mul_u32_u24 v{T}, 1152, v{T}
    v_add_u32 v{T}, v{T}, v{T+1}
    s_add_u32 s3, s3, {4*128}
    s_mov_b32 exec_lo, 0x1ffffff
    s_mov_b32 exec_hi, 0
    buffer_load_dword a240, v{T}, {sr(S_X,4)}, s3 offen
    s_mov_b64 exec, -1
    s_lshr_b32 s3, s{S_SLOT}, 3
    s_lshl_b32 s3, s3, 2
    s_add_u32 s3, s3, s{S_W}
    s_mul_i32 s3, s3, {20*8192}
    s_add_u32 s3, s3, {256*8192}
    v_lshrrev_b32 v{T+2}, 1, v{V_LANE}
    v_lshlrev_b32 v{T+2}, 13, v{T+2}
    v_and_b32 v{T+3}, 1, v{V_LANE}
    v_lshlrev_b32 v{T+3}, 7, v{T+3}
    v_add_u32 v{T+2}, v{T+2}, v{T+3}
    s_mov_b32 exec_hi, 0xff
    buffer_load_dword a241, v{T+2}, {sr(S_WQ,4)}, s3 offen
    s_mov_b64 exec, -1
    """)
FILL_PER_DMA = int(os.environ.get('FPD', 10))
def kernel(A, stamps=False):
    A(f""".text
    .globl {KN}
    .p2align 8
    .type {KN},@function""")
    A.label(KN)
    A(f"s_mov_b32 s{S_FB}, 0")
    A.label("L_restart")
    late = setup_ids(A, "L_a_end")
    stamp(A, 'start')
    late2 = setup_dma_addrs(A)
    F = Asm()
    for x in late2 + late: F(x)
    setup_read_addrs(F)
    F(f"s_mov_b32 s{S_SPM}, 0x63")
    wof_addr_setup(F)
    phase_o_setup(F)
    zero_state(F, acc=False, nm=False)
    wof_dma_setup(F)
    fill = list(F.lines)
    q = VCount()
    def emit_fill(n):
        k = 0
        while fill and (k < n or fill[0].startswith(("s_addc", "s_subb", "s_cselect"))):
            x = fill.pop(0); A(x); k += 1
            if x.startswith("buffer_"): q.note('misc')
        if k == 0 and n == 1: A("s_nop 0")
    stamp(A, 'dma0')
    for c in range(4):
        for ops, tag in ((xdma_ops(bu(c)), ('x', c)), (wdma_ops(bu(c)), ('wq', c))):
            for pre, d in ops:
                if pre: A(pre); emit_fill(1)
                A(d); q.note(tag)
                if c or tag[0] == 'wq': emit_fill(FILL_PER_DMA)
            for x in (xadv() if tag[0] == 'x' else wadv()): A(x)
        if c == 0: stamp(A, 'dma1')
    if TOUCH:
        T = V_X
        tl = Asm(); touch_ops(tl)
        for x in tl.lines:
            A(x)
            if x.startswith("buffer_"): q.note('misc')
    stamp(A, 'dma2')
    emit_fill(10000)
    stamp(A, 'p1s')
    p1(A, q)
    stamp(A, 'p1e')
    q_exchange(A)
    A(f"s_cmp_lg_u32 s{S_FB}, 0\ns_cbranch_scc1 L_fb_max")
    A.label("L_qk0")
    qk0(A)
    stamp(A, 'loops')
    A(".p2align 6")
    A.label("L_loop")
    i0 = len(A.lines)
    for u in range(4):
        step(A, (1 + u) & 3, last_in_loop=(u == 3), loop_label="L_loop")
    i1 = len(A.lines)
    for p in check_hazards(A.lines[i0:i1]*2, "loop"): print("HAZARD", p)
    j0 = len(A.lines)
    qt = tail_steps(A)
    stamp(A, 'loope')
    epilogue(A, stamps, qt)
    A.label("L_a_end")
    A("s_endpgm")
    special_blocks(A)
    fallback(A)

KC = "gqa_probe_kernel"
def kernel_c(A, offa, offb, mult=16):
    A(f""".text
    .globl {KC}
    .p2align 8
    .type {KC},@function""")
    A.label(KC)
    A(f"""
    s_load_dwordx2 s[8:9], s[0:1], 56
    s_cmp_ge_u32 s2, 1
    s_cbranch_scc1 L_c_end
    s_memrealtime s[20:21]
    s_waitcnt lgkmcnt(0)
    s_add_u32 s10, s8, {hex(offa)}
    s_addc_u32 s11, s9, 0
    s_add_u32 s12, s8, {hex(offb)}
    s_addc_u32 s13, s9, 0
    s_load_dword s14, s[10:11], 0
    s_load_dword s15, s[12:13], 0
    s_waitcnt lgkmcnt(0)
    s_sub_u32 s14, s15, s14
    s_min_u32 s14, s14, 20000
    s_mul_i32 s14, s14, {mult}
    """)
    A.label("L_c_loop")
    A(f"""
    s_memrealtime s[22:23]
    s_waitcnt lgkmcnt(0)
    s_sub_u32 s16, s22, s20
    s_cmp_lt_u32 s16, s14
    s_cbranch_scc1 L_c_loop
    """)
    A.label("L_c_end")
    A("s_endpgm")

def descriptor(name, vgpr, accum, sgpr=102):
    return f""".amdhsa_kernel {name}
    .amdhsa_next_free_vgpr {vgpr}
    .amdhsa_next_free_sgpr {sgpr}
    .amdhsa_accum_offset {accum}
    .amdhsa_group_segment_fixed_size 0
    .amdhsa_kernarg_size 64
    .amdhsa_user_sgpr_count 2
    .amdhsa_user_sgpr_kernarg_segment_ptr 1
    .amdhsa_system_sgpr_workgroup_id_x 1
    .end_amdhsa_kernel"""

HEADER = """; Kernarg layout for this problem (64 bytes, ptrs only, base s[0:1]):
;   offset  24: d_in[3] wq  shape=(576, 4096) dtype=bfloat16 strides=(8192, 2) contiguous=True
"""

def gen(stamps=False, probe=None):
    global STAMPS_ON
    STAMPS_ON = bool(stamps)
    A = Asm()
    kernel(A, stamps)
    if probe: kernel_c(A, *probe)
    A('.section .rodata,"a"\n.p2align 6')
    if probe:
        A(descriptor(KC, 32, 32)); A(".p2align 6")
    A(descriptor(KN, 512, 256))
    for p in check_hazards(A.lines, "all"): print("HAZARD", p)
    hdr = HEADER
    if probe:
        hdr += f"; @launch kernel={KN} grid=(256,1,1) block=(256,1,1) lds={LDS_A}\n"
        hdr += f"; @launch kernel={KC} grid=(1,1,1) block=(64,1,1) lds=0\n"
    else:
        hdr += f"; @launch grid=(256,1,1) block=(256,1,1) lds={LDS_A}\n"
    return hdr + '.amdgcn_target "amdgcn-amd-amdhsa--gfx950"\n' + A.text()

if __name__ == "__main__":
    import sys
    from hiprt import add_meta
    mode = sys.argv[1] if len(sys.argv) > 1 else ""
    if mode == "probe":
        a = lambda k, wg=0: STAMP_BASE + wg*256 + 4*k
        P = {"p1": (a(0), a(2)), "pre": (a(2), a(3)), "loop": (a(3), a(4)), "epi": (a(4), a(5)), "arr": (a(5), a(6)),
             "sync": (a(6), a(7)), "oloop": (a(7), a(8)), "fin": (a(8), a(9))}
        for n, pr in P.items():
            open(f"../cdna_kernels/probe_{n}.s", "w").write(gen(1, pr))
        print("probes written"); sys.exit(0)
    if mode == "stamps":
        open(os.environ.get('OUT', "fused_st.s"), "w").write(add_meta(gen(1), [(KN, 512, 256)]))
    elif mode == "dbg":
        DBG_STAMPS = True
        open(os.environ.get('OUT', "fused_dbg.s"), "w").write(gen(1))
    elif mode == "cyc":
        RT_MODE = False
        open(os.environ.get('OUT', "fused_cyc.s"), "w").write(add_meta(gen(1), [(KN, 512, 256)]))
    else:
        open(os.environ.get('OUT', "fused.s"), "w").write(gen(0))
    print("written")
```
